```python
import torch

def _softmax(x, axis=-1):
    return torch.softmax(x, dim=axis)
def _gelu(x):
    return torch.nn.functional.gelu(x, approximate="tanh")
def _silu(x):
    return torch.nn.functional.silu(x)
def _sigmoid(x):
    return torch.sigmoid(x)
def _layernorm(x, axis=-1, eps=1e-5):
    m = x.mean(dim=axis, keepdim=True)
    v = x.var(dim=axis, keepdim=True, unbiased=False)
    return (x - m) / torch.sqrt(v + eps)
def _scatter_add(tgt, idx, src, axis=0):
    return tgt.clone().index_add_(axis, idx, src)
def _segment_sum(src, seg, n):
    out = torch.zeros((n,) + src.shape[1:], dtype=src.dtype)
    return out.index_add_(0, seg, src)
def _pad(x, pw):
    flat = tuple(v for pair in reversed(pw) for v in pair)
    return torch.nn.functional.pad(x, flat)

kernel_name = 'standalone__detection_seg_dino__vision'

def setup_inputs():

    _w = (lambda a: (lambda t: t.to(torch.bfloat16) if t.is_floating_point() else t)(torch.as_tensor(a)))
    H = W = (512 // 2) * 2
    C = 192
    Nq = 16
    sc = C ** -0.5
    return {
        "q": _w((lambda *s: torch.randn(*s, dtype=torch.bfloat16) * 0.2)(1, Nq, C)),
        "f0": _w((lambda *s: torch.randn(*s, dtype=torch.bfloat16) * 3.2)(1, H, W, C)),
        "f1": _w((lambda *s: torch.randn(*s, dtype=torch.bfloat16) * 3.2)(1, H // 2, W // 2, C)),
        "wq": _w((lambda *s: torch.randn(*s, dtype=torch.bfloat16) * 1.6)(C, C) * sc),
        "wk": _w((lambda *s: torch.randn(*s, dtype=torch.bfloat16) * 1.6)(C, C) * sc),
        "wv": _w((lambda *s: torch.randn(*s, dtype=torch.bfloat16) * 3.2)(C, C) * sc),
        "wo": _w((lambda *s: torch.randn(*s, dtype=torch.bfloat16) * 3.2)(C, C) * sc),
    }

def reference(q, f0, f1, wq, wk, wv, wo):
    B, H, W, C = f0.shape
    f1u = (lambda x, n, axis: torch.repeat_interleave(x, n, dim=axis))((lambda x, n, axis: torch.repeat_interleave(x, n, dim=axis))(f1, 2, axis=1), 2, axis=2)
    fused = f0 + f1u
    feats = _layernorm(fused.reshape(B, H * W, C), axis=-1)
    qn = _layernorm(q, axis=-1)
    Q = torch.einsum("bnc,cd->bnd", qn, wq)
    K = torch.einsum("bmc,cd->bmd", feats, wk)
    V = torch.einsum("bmc,cd->bmd", feats, wv)
    scale = C ** -0.5
    logits = torch.einsum("bnd,bmd->bnm", Q, K) * scale
    attn = _softmax(logits, axis=-1)
    ctx = torch.einsum("bnm,bmd->bnd", attn, V)
    return q + torch.einsum("bnd,dc->bnc", ctx, wo)
```

```python
class R:
    __slots__ = ("f", "i", "n")

    def __init__(self, f, i, n=1):
        self.f, self.i, self.n = f, i, n

    def __str__(self):
        if self.f in ("vcc", "exec", "m0", "scc"):
            return self.f
        if self.n == 1:
            return f"{self.f}{self.i}"
        return f"{self.f}[{self.i}:{self.i + self.n - 1}]"

    def regs(self):
        return [(self.f, self.i + k) for k in range(self.n)]

    def __getitem__(self, k):
        if isinstance(k, slice):
            start = k.start or 0
            stop = k.stop if k.stop is not None else self.n
            assert 0 <= start < stop <= self.n, (start, stop, self.n)
            return R(self.f, self.i + start, stop - start)
        assert 0 <= k < self.n, (k, self.n)
        return R(self.f, self.i + k, 1)


class Neg:
    def __init__(self, r):
        self.r = r

    def __str__(self):
        return f"-{self.r}"


def V(i, n=1):
    return R("v", i, n)


def S(i, n=1):
    return R("s", i, n)


def Acc(i, n=1):
    return R("a", i, n)


VCC = R("vcc", 0, 1)
EXEC = R("exec", 0, 1)
M0 = R("m0", 0, 1)

TRANS = ("v_exp_f32", "v_log_f32", "v_rcp_f32", "v_rsq_f32", "v_sqrt_f32", "v_sin_f32", "v_cos_f32")


def _regs(x):
    if isinstance(x, Neg):
        x = x.r
    if isinstance(x, R):
        return x.regs()
    return []


def fmt(x):
    if isinstance(x, float):
        import struct
        inl = {0.5: "0.5", -0.5: "-0.5", 1.0: "1.0", -1.0: "-1.0", 2.0: "2.0", -2.0: "-2.0", 4.0: "4.0", -4.0: "-4.0", 0.0: "0"}
        if x in inl:
            return inl[x]
        return hex(struct.unpack("<I", struct.pack("<f", x))[0])
    if isinstance(x, int):
        if -16 <= x <= 64:
            return str(x)
        return hex(x & 0xFFFFFFFF)
    return str(x)


class Em:
    def __init__(self):
        self.lines = []
        self.pos = 0
        self.cond = 0
        self.w = {}
        self.cread = {}
        self.stread = {}
        self.ninstr = 0
        self.drop = set()
        self.drop_mem = False
        self._lines = self.lines
        self._skip = False

    @property
    def skip(self):
        return self._skip

    @skip.setter
    def skip(self, v):
        self._skip = bool(v)
        self.lines = [] if v else self._lines

    def raw(self, text):
        self.lines.append(text)

    def comment(self, text):
        self.lines.append("    ; " + text)

    def _adv(self, n=1):
        if not self.cond:
            self.pos += n

    def nop(self, n):
        while n > 0:
            k = min(n, 16)
            self.lines.append(f"    s_nop {k - 1}")
            self.ninstr += 1
            self.pos += k
            if self.cond:
                self._condnops += k
            n -= k

    def begin_cond(self):
        if self.cond == 0:
            self._condnops = 0
        self.cond += 1

    def end_cond(self):
        self.cond -= 1
        if self.cond == 0:
            back = self._condnops
            self.pos -= back
            for d in (self.w, self.cread):
                for k, val in list(d.items()):
                    if val[0] > self.pos:
                        d[k] = (self.pos,) + tuple(val[1:])
            for k, p in list(self.stread.items()):
                if p > self.pos:
                    self.stread[k] = self.pos

    def _need(self, reg, gap):
        pass

    def fence(self):
        worst = 0
        for reg, (p, kind, info) in self.w.items():
            g = {"valu": 2, "trans": 2, "dot": 3, "xdl4": 8, "xdl8": 12, "sg8": 10, "vsgpr": 5, "salu_m0": 1, "none": 0}[kind]
            worst = max(worst, g - (self.pos - p - 1))
        for reg, (p, need) in self.cread.items():
            worst = max(worst, need - (self.pos - p - 1))
        for reg, p in self.stread.items():
            worst = max(worst, 2 - (self.pos - p - 1))
        if worst > 0:
            self.nop(worst)

    def label(self, name, fence=True):
        if fence:
            self.fence()
        self.lines.append(f"{name}:")

    def _pad(self, reqs):
        worst = 0
        for p, need in reqs:
            have = self.pos - p - 1
            if self.cond:
                have = self.pos - p - 1
            worst = max(worst, need - have)
        if worst > 0:
            self.nop(worst)

    def _emit(self, text):
        self.lines.append("    " + text)
        self.ninstr += 1

    def _setw(self, regs, kind, info=None):
        for r in regs:
            self.w[r] = (self.pos, kind, info)

    def salu(self, op, *ops):
        nodst = op.startswith(("s_cmp", "s_cbranch", "s_branch", "s_waitcnt", "s_barrier", "s_nop", "s_setprio", "s_endpgm", "s_sleep", "s_bitcmp", "s_setpc"))
        self._emit(op + (" " + ", ".join(fmt(x) for x in ops) if ops else ""))
        if not nodst and ops:
            d = ops[0]
            if isinstance(d, R):
                if d.f == "m0":
                    self.w[("m0", 0)] = (self.pos, "salu_m0", None)
                else:
                    for r in d.regs():
                        self.w[r] = (self.pos, "none", None)
        self._adv()

    def waitcnt(self, vm=None, lgkm=None):
        parts = []
        if vm is not None:
            assert 0 <= vm <= 63
            parts.append(f"vmcnt({vm})")
        if lgkm is not None:
            assert 0 <= lgkm <= 15
            parts.append(f"lgkmcnt({lgkm})")
        self._emit("s_waitcnt " + " ".join(parts))
        self._adv()

    def barrier(self):
        self._emit("s_barrier")
        self._adv()

    def valu(self, op, dst, *srcs, mods="", dst2=None, rmw=False):
        base = op.replace("_e32", "").replace("_e64", "").replace("_dpp", "").replace("_sdwa", "")
        if base in self.drop:
            return
        is_trans = base in TRANS
        is_dot = base.startswith("v_dot")
        is_perml = base.startswith("v_permlane")
        is_dpp = op.endswith("_dpp")
        is_rl = base in ("v_readfirstlane_b32", "v_readlane_b32")
        reads = []
        for k, s in enumerate(srcs):
            reads += [(r, k) for r in _regs(s)]
        if rmw or is_perml:
            reads += [(r, "c") for r in _regs(dst)]
        writes = _regs(dst) + (_regs(dst2) if dst2 is not None else [])
        if is_perml:
            writes += _regs(srcs[0])
        reqs = []
        for r, role in reads:
            if r not in self.w:
                continue
            p, kind, info = self.w[r]
            if r[0] in ("v", "a"):
                if kind == "xdl4":
                    reqs.append((p, 8))
                elif kind == "xdl8":
                    reqs.append((p, 12))
                elif kind == "sg8":
                    reqs.append((p, 10))
                elif kind == "dot":
                    same_c = is_dot and info == base and (role == "c" or role == 2)
                    if not same_c:
                        reqs.append((p, 3))
                if kind in ("valu", "trans", "dot"):
                    if is_perml or is_dpp:
                        reqs.append((p, 2))
                    if is_rl:
                        reqs.append((p, 1))
                if kind == "trans" and not is_trans:
                    reqs.append((p, 1))
            else:
                if kind == "vsgpr":
                    reqs.append((p, 2 if not is_rl else 4))
        for r in writes:
            if r in self.w:
                p, kind, info = self.w[r]
                if kind == "xdl4":
                    reqs.append((p, 8))
                elif kind == "xdl8":
                    reqs.append((p, 12))
                elif kind == "sg8":
                    reqs.append((p, 10))
                elif kind == "dot" and not (is_dot and info == base):
                    reqs.append((p, 3))
            if r in self.cread:
                reqs.append(self.cread[r])
            if r in self.stread:
                reqs.append((self.stread[r], 2))
        self._pad(reqs)
        ops = [dst] + ([dst2] if dst2 is not None else []) + list(srcs)
        self._emit(op + " " + ", ".join(fmt(x) for x in ops) + (" " + mods if mods else ""))
        kind = "trans" if is_trans else ("dot" if is_dot else "valu")
        for r in writes:
            if r[0] in ("v", "a"):
                self.w[r] = (self.pos, kind, base)
            else:
                self.w[r] = (self.pos, "vsgpr", base)
        self._adv()

    def mfma(self, op, d, a, b, c):
        if op in self.drop:
            return
        if op in ("v_mfma_f32_16x16x32_bf16", "v_mfma_f32_16x16x16_bf16"):
            kind = "xdl4"
        elif op in ("v_mfma_f32_32x32x16_bf16",):
            kind = "xdl8"
        elif op == "v_mfma_f32_16x16x4_f32":
            kind = "sg8"
        else:
            raise ValueError(op)
        reqs = []
        for role, x in (("a", a), ("b", b), ("c", c)):
            for r in _regs(x):
                if r not in self.w:
                    continue
                p, pk, info = self.w[r]
                if pk in ("valu", "trans"):
                    reqs.append((p, 2))
                elif pk == "dot":
                    reqs.append((p, 3))
                elif pk in ("xdl4", "xdl8"):
                    if role == "c":
                        exact = info == (x.f, x.i, x.n) and pk == kind
                        if not exact:
                            reqs.append((p, 6 if pk == "xdl4" else 10))
                    else:
                        reqs.append((p, 8 if pk == "xdl4" else 12))
                elif pk == "sg8":
                    if role == "c":
                        if kind == "sg8" and info != (x.f, x.i, x.n):
                            reqs.append((p, 8))
                    else:
                        reqs.append((p, 10))
        for r in _regs(d):
            if r in self.w:
                p, pk, info = self.w[r]
                if pk in ("xdl4", "xdl8", "sg8") and not (pk == kind and info == (d.f, d.i, d.n)):
                    reqs.append((p, {"xdl4": 8, "xdl8": 12, "sg8": 10}[pk]))
                if pk == "dot":
                    reqs.append((p, 3))
            if r in self.stread:
                reqs.append((self.stread[r], 2))
        self._pad(reqs)
        self._emit(f"{op} {d}, {a}, {b}, {fmt(c)}")
        for r in _regs(d):
            self.w[r] = (self.pos, kind, (d.f, d.i, d.n))
        if kind in ("xdl4", "xdl8"):
            for r in _regs(c):
                self.cread[r] = (self.pos, 3 if kind == "xdl4" else 7)
        self._adv()

    def mem(self, text, reads=(), writes=(), sreads=(), lds_dma=False, wide_store=None):
        reqs = []
        rr = []
        for x in reads:
            rr += _regs(x)
        ww = []
        for x in writes:
            ww += _regs(x)
        for r in rr + ww:
            if r in self.w:
                p, kind, info = self.w[r]
                g = {"xdl4": 8, "xdl8": 12, "sg8": 10, "dot": 3}.get(kind, 0)
                if g:
                    reqs.append((p, g))
        for r in ww:
            if r in self.stread:
                reqs.append((self.stread[r], 1))
            if r in self.cread:
                reqs.append(self.cread[r])
        for x in sreads:
            for r in _regs(x):
                if r in self.w and self.w[r][1] == "vsgpr":
                    reqs.append((self.w[r][0], 5))
        if lds_dma and ("m0", 0) in self.w:
            reqs.append((self.w[("m0", 0)][0], 1))
        self._pad(reqs)
        self._emit(text)
        for r in ww:
            self.w[r] = (self.pos, "none", None)
        if wide_store is not None:
            for r in _regs(wide_store):
                self.stread[r] = self.pos
        self._adv()

    def ds_read(self, op, dst, addr, offset=0):
        if op in self.drop:
            return
        assert 0 <= offset < 65536
        self.mem(f"{op} {dst}, {addr}" + (f" offset:{offset}" if offset else ""), reads=[addr], writes=[dst])

    def ds_write(self, op, addr, data, offset=0):
        assert 0 <= offset < 65536
        self.mem(f"{op} {addr}, {data}" + (f" offset:{offset}" if offset else ""), reads=[addr, data], wide_store=data if data.n > 2 else None)

    def buf_load(self, op, dst, voff, srd, soff=0, offset=0, flags=""):
        if self.drop_mem:
            return
        assert 0 <= offset < 4096
        t = f"{op} {dst}, {voff}, {srd}, {fmt(soff)} offen" + (f" offset:{offset}" if offset else "") + (" " + flags if flags else "")
        self.mem(t, reads=[voff], writes=[dst], sreads=[srd] + ([soff] if isinstance(soff, R) else []))

    def buf_load_lds(self, voff, srd, soff, offset=0, flags=""):
        assert 0 <= offset < 4096
        t = f"buffer_load_dwordx4 {voff}, {srd}, {fmt(soff)} offen" + (f" offset:{offset}" if offset else "") + (" " + flags if flags else "") + " lds"
        self.mem(t, reads=[voff], sreads=[srd] + ([soff] if isinstance(soff, R) else []), lds_dma=True)

    def buf_store(self, op, data, voff, srd, soff=0, offset=0, flags=""):
        assert 0 <= offset < 4096
        t = f"{op} {data}, {voff}, {srd}, {fmt(soff)} offen" + (f" offset:{offset}" if offset else "") + (" " + flags if flags else "")
        self.mem(t, reads=[voff, data], sreads=[srd] + ([soff] if isinstance(soff, R) else []), wide_store=data if data.n > 2 else None)

    def smem(self, text, dst):
        self._emit(text)
        for r in _regs(dst):
            self.w[r] = (self.pos, "none", None)
        self._adv()

    def text(self):
        return "\n".join(self._lines) + "\n"
```

```python
import sys
import os
sys.path.insert(0, os.path.dirname(os.path.abspath(__file__)))
from emit import Em, R, V, S, Neg, VCC, EXEC, M0

NAME = "standalone__detection_seg_dino__vision"
MAIN = NAME + "_kernel"

TILE = 6144
NSLOT = 6
WAVE_RING = NSLOT * TILE
QK = 0
SYNC = 6912
TAGS = SYNC + 128
STAGE = 7168
RING0 = 13312
LDS_BYTES = RING0 + 4 * WAVE_RING
STEPST = 6144
QL = QK
FRAG = 0
WST = 2 * TILE
CEX = RING0 + 4 * TILE


def wslot(t):
    return 6 * (t // 4) + 2 + t % 4


(S_LANDED, S_CONS, S_QKRDY, S_AUX, S_ISS, S_WL, S_EMPT, S_EMP, S_ZERO, S_FRC, S_WVL, S_FR) = [
    SYNC + 4 * k for k in (0, 4, 8, 9, 10, 11, 12, 13, 14, 15, 16, 20)]
ONES = SYNC + 144
THR = 32.0

WS_P = 0
PSZ = 8192
NCB = 128
WS_E = 0x400000
WS_QK = 0x500000
WS_WVO = 0x540000
WS_STAMP = 0x800000
DBG_WVO = 128

NWG = 256
NITER = 4
NQP = 3
NPR = 6
WOB = RING0 + 20 * TILE

QSCALE = (192 ** -0.5) * 1.4426950408889634
MF32, MF16, MFF = "v_mfma_f32_16x16x32_bf16", "v_mfma_f32_16x16x16_bf16", "v_mfma_f32_16x16x4_f32"
NEG1 = "neg_lo:[1,0,0] neg_hi:[1,0,0]"


def header(extra_lds=0):
    launch = f"; @launch grid=({NWG},1,1) block=(512,1,1) lds={LDS_BYTES + extra_lds}"
    return f"""; Kernarg layout for this problem (80 bytes, ptrs only, base s[0:1]):
{launch}
.amdgcn_target "amdgcn-amd-amdhsa--gfx950"
.text
"""


def kd(name, vgpr, sgpr):
    return f""".section .rodata,"a"
.p2align 6
.amdhsa_kernel {name}
  .amdhsa_next_free_vgpr {vgpr}
  .amdhsa_next_free_sgpr {sgpr}
  .amdhsa_accum_offset {(vgpr + 3) // 4 * 4}
  .amdhsa_group_segment_fixed_size 0
  .amdhsa_kernarg_size 80
  .amdhsa_user_sgpr_count 2
  .amdhsa_user_sgpr_kernarg_segment_ptr 1
  .amdhsa_system_sgpr_workgroup_id_x 1
  .amdhsa_float_denorm_mode_32 3
.end_amdhsa_kernel
"""


def srd(e, q, ptr, nbytes):
    e.salu("s_mov_b32", q[0], ptr[0])
    e.salu("s_mov_b32", q[1], ptr[1])
    e.salu("s_mov_b32", q[2], nbytes)
    e.salu("s_mov_b32", q[3], 0x20000)


def xg_reduce(e, op, x, t0, t1):
    for sw in ("v_permlane32_swap_b32", "v_permlane16_swap_b32"):
        e.valu("v_mov_b32", t0, x)
        e.valu("v_mov_b32", t1, x)
        e.valu(sw, t0, t1)
        e.valu(op, x, t0, t1)


def bf16_round(e, x):
    e.valu("v_cvt_pk_bf16_f32", x, x, x)
    e.valu("v_and_b32", x, 0xFFFF0000, x)


def tile_lane_offsets(e, lane, vDc, vDf, t0, t1):
    for i in range(3):
        e.valu("v_add_u32", t0, 64 * i, lane)
        e.valu("v_mul_u32_u24", t0, 0xAAB, t0)
        e.valu("v_lshrrev_b32", t0, 16, t0)
        e.valu("v_and_b32", t1, 6, t0)
        e.valu("v_xor_b32", t1, t1, lane)
        e.valu("v_lshlrev_b32", vDc[i], 4, t1)
        if vDf is not None:
            e.valu("v_mul_u32_u24", t0, 384, t0)
            e.valu("v_add_u32", vDf[i], t0, vDc[i])


def afrag_addrs(e, j, g, base, out, t0, t1):
    e.valu("v_and_b32", t0, 6, j)
    e.valu("v_xor_b32", t0, t0, g)
    e.valu("v_mul_u32_u24", t1, 384, j)
    if base is not None:
        e.valu("v_add_u32", t1, base, t1)
    e.valu("v_lshl_add_u32", out[0], t0, 4, t1)
    e.valu("v_xor_b32", t0, 4, t0)
    e.valu("v_lshl_add_u32", out[1], t0, 4, t1)


class Stamps:
    def __init__(self, e, on):
        self.e, self.on = e, on

    def mark(self, k):
        if self.on:
            self.e.smem(f"s_memrealtime s[{64 + 2 * k}:{65 + 2 * k}]", S(64 + 2 * k, 2))

    def cyc(self, k):
        if self.on:
            self.e.smem(f"s_memtime s[{64 + 2 * k}:{65 + 2 * k}]", S(64 + 2 * k, 2))

    def dump(self, sWS, nst, vt):
        if not self.on:
            return
        e = self.e
        e.waitcnt(lgkm=0)
        e.salu("s_lshl_b32", S(62), S(2), 3)
        e.salu("s_add_u32", S(62), S(62), S(3))
        e.salu("s_lshl_b32", S(62), S(62), 6)
        e.salu("s_add_u32", S(62), S(62), WS_STAMP)
        for k in range(nst):
            e.raw(f"    v_writelane_b32 {vt[0]}, s{64 + 2 * k}, {k}")
        e.valu("v_lshlrev_b32", vt[1], 2, V(0))
        e.salu("s_mov_b64", EXEC, 0xFFFF)
        e.buf_store("buffer_store_dword", vt[0], vt[1], sWS, S(62))
        e.salu("s_mov_b64", EXEC, -1)


class Leak:
    def __init__(self, e, which):
        self.e, self.which = e, which

    def start(self):
        if self.which:
            self.e.smem("s_memrealtime s[92:93]", S(92, 2))

    def at(self, k, vt0, vt1):
        if self.which == k:
            e = self.e
            e.smem("s_memrealtime s[90:91]", S(90, 2))
            e.waitcnt(lgkm=0)
            e.valu("v_mov_b32", vt0, S(90))
            e.valu("v_mov_b32", vt1, 0)
            e.ds_write("ds_write_b32", vt1, vt0, STEPST)
            e.waitcnt(lgkm=0)

    def spend(self, vt0, vt1):
        if not self.which:
            return
        e = self.e
        e.salu("s_cmp_lg_u32", S(2), 100)
        e.salu("s_cbranch_scc1", "L_leak_end")
        e.valu("v_mov_b32", vt1, 0)
        e.ds_read("ds_read_b32", vt0, vt1, STEPST)
        e.smem("s_memrealtime s[88:89]", S(88, 2))
        e.waitcnt(lgkm=0)
        e.valu("v_readfirstlane_b32", S(90), vt0)
        e.nop(3)
        e.salu("s_sub_u32", S(90), S(90), S(92))
        e.salu("s_lshl_b32", S(90), S(90), 3)
        e.salu("s_min_u32", S(90), S(90), 40000)
        e.label("L_leak")
        e.smem("s_memrealtime s[86:87]", S(86, 2))
        e.waitcnt(lgkm=0)
        e.salu("s_sub_u32", S(91), S(86), S(88))
        e.salu("s_cmp_lt_u32", S(91), S(90))
        e.salu("s_cbranch_scc1", "L_leak")
        e.raw("L_leak_end:")


class LQ:
    def __init__(self, e):
        self.e, self.q = e, []

    def add(self, tag=None):
        self.q.append(tag)

    def wait(self, tag):
        idx = max(i for i, t in enumerate(self.q) if t == tag)
        n = len(self.q) - 1 - idx
        self.e.waitcnt(lgkm=min(n, 15))
        self.q = self.q[idx + 1:]

    def drain(self):
        self.e.waitcnt(lgkm=0)
        self.q = []


LBL = [0]


def newlabel(p):
    LBL[0] += 1
    return f"L_{p}{LBL[0]}"


def lds_spin(e, vaddr, off, vt, sdst, need, sleep=1):
    top, done = newlabel("spin"), newlabel("spun")
    e.label(top)
    e.ds_read("ds_read_b32", vt, vaddr, off)
    e.waitcnt(lgkm=0)
    e.valu("v_readfirstlane_b32", sdst, vt)
    e.nop(1)
    e.salu("s_cmp_ge_u32", sdst, need)
    if sleep:
        e.salu("s_cbranch_scc1", done)
        e.salu("s_sleep", sleep)
        e.salu("s_branch", top)
        e.raw(f"{done}:")
    else:
        e.salu("s_cbranch_scc0", top)


def lds_inc(e, vz, vt, off):
    e.valu("v_mov_b32", vt, 1)
    e.salu("s_mov_b64", EXEC, 1)
    e.mem(f"ds_add_u32 {vz}, {vt} offset:{off}", reads=[vz, vt])
    e.salu("s_mov_b64", EXEC, -1)


def gen_main(stamps=False, opt=None):
    opt = opt or {}
    e = Em()
    st = Stamps(e, stamps)
    lk = Leak(e, opt.get("leak", 0))
    e.raw(f".globl {MAIN}")
    e.raw(".p2align 8")
    e.raw(f".type {MAIN},@function")
    e.raw(f"{MAIN}:")
    sWave = S(3)
    lane = V(0)
    e.salu("s_cmp_ge_u32", S(2), NWG)
    e.salu("s_cbranch_scc1", "L_exit")
    st.mark(0)
    lk.start()
    e.smem("s_load_dwordx16 s[4:19], s[0:1], 0", S(4, 16))
    e.smem("s_load_dwordx4 s[20:23], s[0:1], 64", S(20, 4))
    pQ, pF0, pF1, pWq, pWk, pWv, pWo = [S(4 + 2 * k, 2) for k in range(7)]
    pDbg, pWS = S(20, 2), S(22, 2)
    e.valu("v_lshrrev_b32", V(1), 6, V(0))
    e.valu("v_and_b32", V(0), 63, V(0))
    if opt.get("epf", 0):
        e.salu("s_getpc_b64", S(60, 2))
    e.valu("v_readfirstlane_b32", sWave, V(1))
    e.nop(3)
    if opt.get("rot", 0):
        e.salu("s_xor_b32", sWave, sWave, 4)
    if opt.get("epf", 0):
        e.salu("s_cmp_eq_u32", sWave, 4)
        e.salu("s_cbranch_scc1", "L_loader")
        e.salu("s_cmp_gt_u32", sWave, 4)
        e.salu("s_cbranch_scc1", "L_aux0")
        e.salu("s_lshl_b32", S(62), sWave, 7)
        e.salu("s_add_u32", S(60), S(60), S(62))
        e.salu("s_addc_u32", S(61), S(61), 0)
        for k in range(opt["epf"]):
            e.smem(f"s_load_dword s63, s[60:61], {128 + 512 * k}", S(63))
        e.salu("s_branch", "L_compute")
        e.raw("L_loader:")
    else:
        e.salu("s_cmp_lt_u32", sWave, 4)
        e.salu("s_cbranch_scc1", "L_compute")
        e.salu("s_cmp_gt_u32", sWave, 4)
        e.salu("s_cbranch_scc1", "L_aux0")

    vDc = [V(1), V(2), V(3)]
    vDf = [V(4), V(5), V(6)]
    vD = [V(7), V(8), V(9)]
    vZ, vt, vt2 = V(10), V(11), V(12)
    vLane4 = V(13)
    sSrc = S(24, 4)
    sWS = S(32, 4)
    sStep, sK, sH, sO1, sO0, sBase, sWst, sHalf, sLk = [S(36 + k) for k in range(9)]
    sT, sT2, sVal, sNeed = S(45), S(46), S(47), S(48)
    sCons = [S(50 + k) for k in range(4)]
    sRet = S(54, 2)
    sW = S(56)
    sSlot = S(57)
    FAST = opt.get("fast", 1)
    e.salu("s_setprio", 3)
    for i in range(3):
        e.valu("v_add_u32", vDf[i], 64 * i, lane)
        e.valu("v_mul_u32_u24", vDf[i], 0xAAB, vDf[i])
        e.valu("v_lshrrev_b32", vDf[i], 16, vDf[i])
        e.valu("v_and_b32", vt, 6, vDf[i])
        e.valu("v_xor_b32", vt, vt, lane)
        e.valu("v_lshlrev_b32", vDc[i], 4, vt)
    e.salu("s_and_b32", sH, S(2), 7)
    e.salu("s_lshl_b32", sH, sH, 5)
    e.salu("s_lshr_b32", sT, S(2), 3)
    e.salu("s_or_b32", sH, sH, sT)
    e.salu("s_lshl_b32", sH, sH, 2)
    e.salu("s_mov_b32", sSrc[3], 0x20000)
    e.salu("s_mov_b32", sSrc[2], 25165824)
    e.salu("s_mul_i32", sO1, sH, 6144)
    e.salu("s_mov_b32", sLk, RING0)
    e.salu("s_cmp_lt_u32", S(2), NPR)
    e.salu("s_cbranch_scc1", "L_ld_prod")
    e.waitcnt(lgkm=0)
    st.mark(1)
    e.salu("s_mov_b32", sSrc[0], pF1[0])
    e.salu("s_mov_b32", sSrc[1], pF1[1])
    e.raw("L_ld_first:")
    for h in range(2):
        e.salu("s_mov_b32" if h == 0 else "s_add_u32", M0, *([sLk] if h == 0 else [sLk, 3072]))
        e.salu("s_add_u32", sLk if h else sT2, sLk if h else sO1, WAVE_RING if h else 3072)
        for i in range(3):
            e.buf_load_lds(vDc[i], sSrc, sT2 if h else sO1, offset=1024 * i, flags="nt")
    e.salu("s_add_u32", sO1, sO1, 6144)
    e.salu("s_cmp_lt_u32", sLk, RING0 + 4 * WAVE_RING)
    e.salu("s_cbranch_scc1", "L_ld_first")
    st.mark(5)
    e.salu("s_branch", "L_ld_norm")

    e.raw("L_aux0:")
    aC, aW1, aW2 = S(24, 4), S(28, 4), S(40, 4)
    e.salu("s_getpc_b64", aC[0:2])
    e.raw("L_aux_pc:")
    e.raw(f"    s_sub_u32 {aC[0]}, {aC[0]}, L_aux_pc-{MAIN}")
    e.raw(f"    s_subb_u32 {aC[1]}, {aC[1]}, 0")
    e.raw(f"    s_mov_b32 {aC[2]}, L_code_end-{MAIN}")
    e.salu("s_mov_b32", aC[3], 0x20000)
    e.salu("s_lshr_b32", S(39), S(2), 3)
    e.salu("s_mul_i32", S(38), S(39), 3)
    e.salu("s_add_u32", S(38), S(38), sWave)
    e.salu("s_mul_i32", S(38), S(38), 320)
    e.salu("s_sub_u32", S(38), S(38), 5 * 320)
    e.valu("v_lshlrev_b32", V(14), 6, lane)
    e.salu("s_mov_b64", EXEC, 0x1F)
    e.buf_load("buffer_load_dword", V(253), V(14), aC, S(38))
    e.salu("s_mov_b64", EXEC, -1)
    e.salu("s_and_b32", S(38), S(2), 7)
    e.salu("s_mul_i32", S(37), sWave, 3)
    e.salu("s_add_u32", S(38), S(38), 18)
    e.salu("s_sub_u32", S(38), S(38), S(37))
    e.salu("s_cmp_ge_u32", S(38), 3)
    e.salu("s_cbranch_scc1", "L_aux")
    e.salu("s_mul_i32", S(37), S(39), 2304)
    e.valu("v_mul_u32_u24", V(13), 36, lane)
    e.salu("s_mov_b32", aW1[2], 73728)
    e.salu("s_mov_b32", aW2[2], 73728)
    e.salu("s_mov_b32", aW1[3], aC[3])
    e.salu("s_mov_b32", aW2[3], aC[3])
    e.salu("s_cmp_eq_u32", sWave, 6)
    e.waitcnt(lgkm=0)
    e.salu("s_cselect_b64", aW1[0:2], pWq, pWo)
    e.salu("s_cselect_b64", aW2[0:2], pWk, pWv)
    e.buf_load("buffer_load_dword", V(254), V(13), aW1, S(37))
    e.buf_load("buffer_load_dword", V(255), V(13), aW2, S(37))
    e.salu("s_branch", "L_aux")

    def publish(off, val):
        e.valu("v_mov_b32", vt, val)
        e.salu("s_mov_b64", EXEC, 1)
        e.mem(f"ds_max_u32 {vZ}, {vt} offset:{off}", reads=[vZ, vt])
        e.salu("s_mov_b64", EXEC, -1)

    def init(first):
        for i in range(3):
            e.valu("v_mul_u32_u24", vDf[i], 384, vDf[i])
            e.valu("v_add_u32", vDf[i], vDf[i], vDc[i])
        e.valu("v_mov_b32", vZ, 0)
        e.valu("v_lshlrev_b32", vLane4, 2, lane)
        e.salu("s_mov_b64", EXEC, 0xFFFFFFFF)
        e.ds_write("ds_write_b32", vLane4, vZ, SYNC)
        e.valu("v_mov_b32", vt, 0x3F803F80)
        e.salu("s_mov_b64", EXEC, 3)
        e.ds_write("ds_write_b32", vLane4, vt, ONES)
        e.salu("s_mov_b64", EXEC, -1)
        for k in range(4):
            e.salu("s_mov_b32", sCons[k], 0)
        for r_ in (sStep, sK, sSlot):
            e.salu("s_mov_b32", r_, first)
        if first:
            e.salu("s_lshr_b32", sT, sH, 4)
            e.salu("s_mul_i32", sO0, sT, 393216)
            e.salu("s_and_b32", sT, sH, 15)
            e.salu("s_mul_i32", sT, sT, 12288)
            e.salu("s_add_u32", sO0, sO0, sT)
            e.salu("s_add_u32", sH, sH, 1024)
        e.waitcnt(lgkm=0)
        e.barrier()

    sCnt = sNeed
    e.raw("L_ld_prod:")
    e.salu("s_mov_b32", sO1, 0)
    e.salu("s_cmp_lt_u32", S(2), NQP)
    e.salu("s_cbranch_scc0", "L_ld_wo0")
    e.salu("s_mov_b32", sSrc[2], 6144)
    e.salu("s_mov_b32", sLk, STAGE)
    e.salu("s_mov_b32", sCnt, 1)
    e.waitcnt(lgkm=0)
    st.mark(4)
    e.salu("s_mov_b64", sSrc[0:2], pQ)
    e.salu("s_call_b64", sRet, "L_ld_tiles")
    e.salu("s_branch", "L_ld_wq")
    e.raw("L_ld_tiles:")
    for h in range(2):
        e.salu("s_mov_b32" if h == 0 else "s_add_u32", M0, *([sLk] if h == 0 else [sLk, 3072]))
        e.salu("s_add_u32", sLk if h else sT2, sLk if h else sO1, TILE if h else 3072)
        for i in range(3):
            e.buf_load_lds(vDc[i], sSrc, sT2 if h else sO1, offset=1024 * i)
    e.salu("s_add_u32", sO1, sO1, TILE)
    e.salu("s_sub_u32", sCnt, sCnt, 1)
    e.salu("s_and_b32", sT, sCnt, 3)
    e.salu("s_cselect_b32", sT, 0, 2 * TILE)
    e.salu("s_add_u32", sLk, sLk, sT)
    e.salu("s_cmp_lg_u32", sCnt, 0)
    e.salu("s_cbranch_scc1", "L_ld_tiles")
    e.salu("s_setpc_b64", sRet)
    e.raw("L_ld_wq:")
    e.salu("s_mov_b64", sSrc[0:2], pWq)
    e.salu("s_mov_b32", sSrc[2], 73728)
    e.raw("L_ld_w12:")
    e.salu("s_mov_b32", sO1, 0)
    e.salu("s_mov_b32", sLk, RING0 + wslot(0) * TILE)
    e.salu("s_mov_b32", sCnt, 4)
    e.salu("s_call_b64", sRet, "L_ld_tiles")
    init(0)
    e.waitcnt(vm=24)
    publish(S_WL, 1)
    st.mark(5)
    e.salu("s_mov_b32", sCnt, 8)
    e.salu("s_call_b64", sRet, "L_ld_tiles")
    e.salu("s_cmp_ge_u32", S(2), NQP)
    e.salu("s_cbranch_scc1", "L_ld_stepp")
    e.salu("s_mov_b64", sSrc[0:2], pWk)
    e.salu("s_mul_i32", sO1, S(2), 4 * TILE)
    e.salu("s_mov_b32", sCnt, 4)
    e.salu("s_call_b64", sRet, "L_ld_tiles")
    st.mark(1)
    e.salu("s_branch", "L_ld_stepp")
    e.raw("L_ld_wo0:")
    e.salu("s_mov_b32", sSrc[2], 73728)
    e.valu("v_lshrrev_b32", vt, 3, lane)
    e.valu("v_mul_u32_u24", vt, 384, vt)
    e.valu("v_and_b32", vt2, 7, lane)
    e.valu("v_lshl_add_u32", vt, vt2, 4, vt)
    e.salu("s_sub_u32", sT2, S(2), NQP)
    e.salu("s_lshl_b32", sT2, sT2, 7)
    e.salu("s_mov_b32", sT, WOB)
    e.waitcnt(lgkm=0)
    st.mark(4)
    e.salu("s_mov_b64", sSrc[0:2], pWo)
    e.label("L_ld_wo")
    e.salu("s_mov_b32", M0, sT)
    e.salu("s_add_u32", sT, sT, 1024)
    e.buf_load_lds(vt, sSrc, sT2)
    e.salu("s_add_u32", sT2, sT2, 3072)
    e.salu("s_cmp_lt_u32", sT, WOB + 24576)
    e.salu("s_cbranch_scc1", "L_ld_wo")
    e.salu("s_mov_b64", sSrc[0:2], pWv)
    e.salu("s_branch", "L_ld_w12")
    e.raw("L_ld_norm:")
    init(1)
    lk.at(1, vt, vt2)

    PD = opt.get("pd", 6)
    FLG = {0: "", 1: "sc1", 2: "sc0 sc1", 3: "sc1 nt", 4: "sc0 sc1 nt", 5: "nt"}
    LFL, PFL, SFL = FLG[opt.get("lfl", 1)], FLG[opt.get("pfl", 1)], FLG[opt.get("sfl", 1)]
    WFL = {0: "", 1: "sc1", 2: "sc0", 3: "nt"}[opt.get("wfl", 1)]
    WVO = [[V(112 + 12 * kk + 4 * t3, 4) for t3 in range(3)] for kk in range(6)]

    def stream(D, tag):
        e.label(f"L_ld_step{tag}")
        e.salu("s_cmp_lg_u32", sK, 0)
        e.salu("s_cbranch_scc1", f"L_ld_fine{tag}")
        e.salu("s_mul_i32", sO1, sH, 6144)
        e.salu("s_lshr_b32", sT, sH, 4)
        e.salu("s_mul_i32", sO0, sT, 393216)
        e.salu("s_and_b32", sT, sH, 15)
        e.salu("s_mul_i32", sT, sT, 12288)
        e.salu("s_add_u32", sO0, sO0, sT)
        e.salu("s_add_u32", sH, sH, 1024)
        e.salu("s_mov_b32", sSrc[0], pF1[0])
        e.salu("s_mov_b32", sSrc[1], pF1[1])
        e.salu("s_mov_b32", sSrc[2], 25165824)
        e.salu("s_mov_b32", sBase, sO1)
        e.salu("s_mov_b32", sWst, 6144)
        e.salu("s_mov_b32", sHalf, 3072)
        for i in range(3):
            e.valu("v_mov_b32", vD[i], vDc[i])
        e.salu("s_branch", f"L_ld_issue{tag}")
        e.raw(f"L_ld_fine{tag}:")
        e.salu("s_mov_b32", sSrc[0], pF0[0])
        e.salu("s_mov_b32", sSrc[1], pF0[1])
        e.salu("s_mov_b32", sSrc[2], 100663296)
        e.salu("s_sub_u32", sT, sK, 1)
        e.salu("s_lshr_b32", sT2, sT, 1)
        e.salu("s_mul_i32", sT2, sT2, 196608)
        e.salu("s_and_b32", sT, sT, 1)
        e.salu("s_mul_i32", sT, sT, 384)
        e.salu("s_add_u32", sBase, sO0, sT2)
        e.salu("s_add_u32", sBase, sBase, sT)
        e.salu("s_mov_b32", sWst, 12288)
        e.salu("s_mov_b32", sHalf, 6144)
        for i in range(3):
            e.valu("v_mov_b32", vD[i], vDf[i])
        e.raw(f"L_ld_issue{tag}:")
        e.salu("s_mul_i32", sLk, sSlot, TILE)
        e.salu("s_add_u32", sLk, sLk, RING0)
        e.salu("s_sub_i32", sNeed, sStep, NSLOT - 1)
        for w in range(4):
            ok = newlabel("free")
            e.salu("s_cmp_ge_i32", sCons[w], sNeed)
            e.salu("s_cbranch_scc1", ok)
            e.begin_cond()
            e.salu("s_mov_b32", sW, w)
            e.salu("s_call_b64", sRet, "L_ld_wait")
            e.salu("s_mov_b32", sCons[w], sT)
            e.end_cond()
            e.raw(f"{ok}:")
            for h in range(2):
                e.salu("s_add_u32", M0, sLk, w * WAVE_RING + 3072 * h)
                if h == 0:
                    e.salu("s_mov_b32", sT2, sBase)
                else:
                    e.salu("s_add_u32", sT2, sBase, sHalf)
                for i in range(3):
                    e.buf_load_lds(vD[i], sSrc, sT2, offset=1024 * i, flags="nt")
                if h == 0 and tag == "" and opt.get("mid"):
                    e.waitcnt(vm=opt["mid"])
            e.salu("s_add_u32", sBase, sBase, sWst)
            e.salu("s_add_i32", sVal, sStep, ((w - D) >> 2) + 1)
            e.salu("s_max_i32", sVal, sVal, 0)
            e.waitcnt(vm=6 * D)
            publish(S_LANDED + 4 * ((w - D) & 3), sVal)
            if tag == "p" and w == D - 5:
                e.salu("s_add_u32", sVal, sStep, 2)
                e.salu("s_min_u32", sVal, sVal, 3)
                publish(S_WL, sVal)
        e.salu("s_add_u32", sK, sK, 1)
        e.salu("s_cmp_eq_u32", sK, 5)
        e.salu("s_cselect_b32", sK, 0, sK)
        e.salu("s_add_u32", sSlot, sSlot, 1)
        e.salu("s_cmp_eq_u32", sSlot, NSLOT)
        e.salu("s_cselect_b32", sSlot, 0, sSlot)
        if tag == "p":
            e.salu("s_cmp_lg_u32", sStep, 1)
            e.salu("s_cbranch_scc1", "L_ld_noiss")
            e.begin_cond()
            lds_spin(e, vZ, S_ISS, vt, sT, 4)
            e.end_cond()
            e.raw("L_ld_noiss:")
        if stamps and opt.get("stepst", 0):
            e.smem("s_memrealtime s[90:91]", S(90, 2))
            e.salu("s_lshl_b32", sT, sStep, 2)
            e.salu("s_add_u32", sT, sT, STEPST)
            e.valu("v_mov_b32", vt2, sT)
            e.waitcnt(lgkm=0)
            e.valu("v_mov_b32", vt, S(90))
            e.ds_write("ds_write_b32", vt2, vt, 0)
        e.salu("s_add_u32", sStep, sStep, 1)
        e.salu("s_cmp_lt_u32", sStep, 5 * NITER)
        e.fence()
        e.salu("s_cbranch_scc1", f"L_ld_step{tag}")
        st.mark(2)
        srd(e, sWS, pWS, 0x1000000)
        e.valu("v_lshlrev_b32", vt2, 4, lane)
        lds_spin(e, vZ, S_WVL, vt, sT, 1)
        NL = 0 if opt.get("nolf") else 18
        for t3 in range(3):
            for kk in range(6):
                if NL:
                    e.salu("s_mov_b32", sT2, WS_WVO + ((9 + t3) * 6 + kk) * 1024)
                    e.buf_load("buffer_load_dwordx4", WVO[kk][t3], vt2, sWS, sT2, flags=WFL)
        for i in range(80 - D, 80):
            e.waitcnt(vm=6 * (79 - i) + NL)
            publish(S_LANDED + 4 * (i & 3), (i >> 2) + 1)
        st.mark(3)
        lk.at(3, V(14), V(15))
        if stamps:
            e.salu("s_getreg_b32", S(80), "hwreg(HW_REG_XCC_ID)")
            if opt.get("stepst", 0):
                e.valu("v_add_u32", V(14), STEPST, vLane4)
                e.ds_read("ds_read_b32", vt, V(14), 0)
                e.salu("s_lshl_b32", sT, S(2), 8)
                e.salu("s_add_u32", sT, sT, WS_STAMP + 0x40000)
                e.waitcnt(lgkm=0)
                e.buf_store("buffer_store_dword", vt, vLane4, sWS, sT)
        e.salu("s_setprio", 0)
        e.salu("s_mov_b32", S(36), 3)
        e.valu("v_mov_b32", V(11), 0)
        e.valu("v_and_b32", V(1), 15, lane)
        e.fence()
        e.salu("s_branch", "L_tail")

    stream(opt.get("depth", 4), "")

    stream(PD, "p")

    e.raw("L_ld_wait:")
    e.salu("s_lshl_b32", sT, sW, 2)
    e.valu("v_mov_b32", vt2, sT)
    e.ds_read("ds_read_b32", vt, vt2, S_CONS)
    e.waitcnt(lgkm=0)
    e.valu("v_readfirstlane_b32", sT, vt)
    e.nop(1)
    e.salu("s_cmp_ge_i32", sT, sNeed)
    e.salu("s_cbranch_scc1", "L_ld_wait_ret")
    e.waitcnt(vm=0)
    e.valu("v_mov_b32", vt, sStep)
    e.valu("v_cmp_gt_u32", VCC, sW, lane)
    e.valu("v_addc_co_u32", vt, vt, 0, VCC, dst2=VCC)
    e.salu("s_mov_b64", EXEC, 0xF)
    e.mem(f"ds_max_u32 {vLane4}, {vt} offset:{S_LANDED}", reads=[vLane4, vt])
    e.salu("s_mov_b64", EXEC, -1)
    lds_spin(e, vt2, S_CONS, vt, sT, sNeed)
    e.raw("L_ld_wait_ret:")
    e.fence()
    e.salu("s_setpc_b64", sRet)

    e.w.clear(); e.cread.clear(); e.stread.clear()
    e.raw("L_compute:")
    vSy = V(1)
    vPc = V(2)
    vPoll = V(3)
    Gx = V(4, 4)
    vA = [V(8), V(9)]
    vT = [V(10 + k) for k in range(4)]
    vL2 = V(14, 2)
    vCs2 = V(16, 2)
    vNm2 = V(18, 2)
    vOne = V(20)
    tC = V(21)
    tA, tB = V(22), V(23)
    vOnes = V(24, 4)
    Qk = [V(28 + 4 * k, 4) for k in range(6)]
    acc = [V(52 + 4 * k, 4) for k in range(12)]
    A1 = [V(100 + 4 * k, 4) for k in range(6)]
    A0 = [V(124 + 4 * k, 4) for k in range(6)]
    T0 = [V(148 + 6 * k, 4) for k in range(12)]
    T1 = [V(152 + 6 * k, 2) for k in range(12)]
    TH = [V(150 + 6 * k, 4) for k in range(12)]
    Sc, Uc = V(220, 4), V(224, 4)
    Sx, Ux, SSx = V(228, 4), V(232, 4), V(236, 4)
    pc = V(240, 4)
    Pf = V(244, 4)
    pp = V(248, 4)
    mu2 = V(252, 2)
    vM = V(254)
    ss1 = V(255)
    X = Gx
    sWS = S(32, 4)
    sLds = S(36)
    sT, sT2 = S(40), S(42)
    sIt = S(41)
    sInv2, sEps2 = S(44, 2), S(46, 2)
    sInv, sEps = sInv2[0], sEps2[0]
    sRet = S(48, 2)
    sThr = S(50)
    sPc, sLand = S(51), S(52)
    sSl, sDl, sTile = S(54), S(55), S(56)
    sM1, sM2, sMd = S(58, 2), S(60, 2), S(38, 2)
    tmp = [V(228 + k) for k in range(12)]
    lq = LQ(e)
    EARLY = opt.get("early", 2)
    sEa = S(57)

    e.salu("s_mul_i32", sLds, sWave, WAVE_RING)
    e.salu("s_add_u32", sLds, sLds, RING0)
    if opt.get("cprio", 1):
        e.salu("s_setprio", opt.get("cprio", 1))
    e.barrier()
    j, g = tmp[0], tmp[1]
    e.valu("v_and_b32", j, 15, lane)
    e.valu("v_lshrrev_b32", g, 4, lane)
    afrag_addrs(e, j, g, sLds, vA, tmp[2], tmp[3])
    rp, c4, p_ = tmp[2], tmp[3], tmp[4]
    e.valu("v_lshrrev_b32", rp, 2, j)
    e.valu("v_and_b32", c4, 3, j)
    e.valu("v_lshl_add_u32", p_, g, 2, rp)
    e.valu("v_mul_u32_u24", tmp[5], 384, p_)
    e.valu("v_lshl_add_u32", tmp[5], c4, 3, tmp[5])
    e.valu("v_add_u32", tmp[5], sLds, tmp[5])
    e.valu("v_and_b32", tmp[6], 6, p_)
    for q in range(4):
        e.valu("v_xor_b32", tmp[7], 2 * q, tmp[6])
        e.valu("v_lshl_add_u32", vT[q], tmp[7], 4, tmp[5])
    vQa = [Pf[0], Pf[1]]
    e.valu("v_subrev_u32", vQa[0], sLds, vA[0])
    e.valu("v_subrev_u32", vQa[1], sLds, vA[1])
    for k in range(4):
        e.valu("v_mov_b32", vOnes[k], 0x3F803F80)
        e.valu("v_mov_b32", pc[k], 0)
        e.valu("v_mov_b32", pp[k], 0)
    e.valu("v_mov_b32", vOne, 1.0)
    for k in range(2):
        e.salu("s_mov_b32", sInv2[k], 1.0 / 192.0)
        e.salu("s_mov_b32", sEps2[k], 1.0e-5)
        e.salu("s_mov_b32", sM1[k], 0xAAAAAAAA)
        e.salu("s_mov_b32", sM2[k], 0xCCCCCCCC)
    e.salu("s_mov_b32", sMd[0], 0x00F0000F)
    e.salu("s_mov_b32", sMd[1], 0xF0000F00)
    e.salu("s_mov_b32", sThr, THR)
    e.salu("s_mov_b32", sIt, 0)
    e.salu("s_mov_b32", sPc, 0)
    e.salu("s_mov_b32", sLand, 0)
    e.salu("s_mov_b32", sSl, 0)
    e.salu("s_mov_b32", sTile, TILE)
    e.salu("s_lshl_b32", sT, sWave, 2)
    e.valu("v_mov_b32", vSy, sT)
    e.waitcnt(lgkm=0)
    srd(e, sWS, pWS, 0x1000000)
    e.salu("s_cmp_lt_u32", S(2), NQP)
    e.salu("s_cbranch_scc1", "L_qkprod")
    e.salu("s_cmp_lt_u32", S(2), NPR)
    e.salu("s_cbranch_scc1", "L_wvprod")
    e.label("L_c_start")

    def wait_piece(sleep=1):
        e.salu("s_add_u32", sPc, sPc, 1)
        have = newlabel("have")
        e.salu("s_cmp_ge_u32", sLand, sPc)
        e.salu("s_cbranch_scc1", have)
        e.begin_cond()
        lds_spin(e, vSy, S_LANDED, vPoll, sLand, sPc, sleep=sleep)
        e.end_cond()
        e.raw(f"{have}:")

    def release():
        if EARLY:
            e.ds_read("ds_read_b32", vPoll, vSy, S_LANDED)
            lq.add("p")
        e.valu("v_mov_b32", vPc, sPc)
        e.salu("s_add_u32", sSl, sSl, 1)
        e.salu("s_cmp_eq_u32", sSl, NSLOT)
        e.salu("s_cselect_b32", sDl, -(NSLOT - 1) * TILE, sTile)
        e.salu("s_cselect_b32", sSl, 0, sSl)
        for a_ in vA + vT:
            e.valu("v_add_u32", a_, sDl, a_)
        lq.drain()
        e.ds_write("ds_write_b32", vSy, vPc, S_CONS)
        lq.add()

    def early(AF, again=False):
        if not EARLY:
            return
        lb_ = newlabel("early")
        e.valu("v_readfirstlane_b32", sLand, vPoll)
        e.salu("s_mov_b32", sEa, 0)
        e.nop(1)
        e.salu("s_cmp_gt_u32", sLand, sPc)
        e.salu("s_cbranch_scc0", lb_)
        e.begin_cond()
        e.salu("s_mov_b32", sEa, 1)
        a_reads(AF)
        e.end_cond()
        e.raw(f"{lb_}:")
        lq.q = []
        if again:
            e.ds_read("ds_read_b32", vPoll, vSy, S_LANDED)

    def early2(AF):
        lb_ = newlabel("early")
        e.waitcnt(lgkm=0)
        e.valu("v_readfirstlane_b32", sLand, vPoll)
        e.salu("s_cmp_lg_u32", sEa, 0)
        e.salu("s_cbranch_scc1", lb_)
        e.salu("s_cmp_gt_u32", sLand, sPc)
        e.salu("s_cbranch_scc0", lb_)
        e.begin_cond()
        e.salu("s_mov_b32", sEa, 1)
        a_reads(AF)
        e.end_cond()
        e.raw(f"{lb_}:")
        lq.q = []

    def begin_piece(AF, sleep=1):
        if not EARLY:
            wait_piece(sleep)
            a_reads(AF)
            return
        lb_ = newlabel("begun")
        e.salu("s_add_u32", sPc, sPc, 1)
        e.salu("s_cmp_lg_u32", sEa, 0)
        e.salu("s_cbranch_scc1", lb_)
        e.begin_cond()
        lds_spin(e, vSy, S_LANDED, vPoll, sLand, sPc, sleep=sleep)
        a_reads(AF)
        e.end_cond()
        e.raw(f"{lb_}:")

    def a_reads(AF):
        for kk in range(6):
            e.ds_read("ds_read_b128", AF[kk], vA[kk & 1], (kk >> 1) * 128)
            lq.add(("a", kk))

    def tr_read(dst, cb):
        e.ds_read("ds_read_b64_tr_b16", dst, vT[cb & 3], (cb >> 2) * 128)
        lq.add(("t", cb))

    def ones_read(dst):
        e.ds_read("ds_read_b64", dst, tC, ONES)
        lq.add()

    def diag(G, out):
        e.valu("v_cndmask_b32", tA, G[0], G[1], sM1)
        e.valu("v_cndmask_b32", tB, G[2], G[3], sM1)
        e.valu("v_cndmask_b32", out, tA, tB, sM2)

    def sumsq_ops(SS):
        return [lambda: e.valu("v_cndmask_b32", tA, SS[0], SS[1], sM1),
                lambda: e.valu("v_cndmask_b32", tB, SS[2], SS[3], sM1),
                lambda: e.valu("v_cndmask_b32", Gx[0], Gx[0], Gx[1], sM1),
                lambda: e.valu("v_cndmask_b32", Gx[2], Gx[2], Gx[3], sM1),
                lambda: e.valu("v_cndmask_b32", tA, tA, tB, sM2),
                lambda: e.valu("v_cndmask_b32", Gx[0], Gx[0], Gx[2], sM2),
                lambda: e.valu("v_add_f32", tA, tA, ss1),
                lambda: e.valu("v_fma_f32", tA, Gx[0], 2.0, tA),
                lambda: e.valu("v_cndmask_b32", tA, 0, tA, sMd)]

    def stats_ops(U_, SS_, packed=True):
        fl = []
        if packed:
            for h in range(2):
                sl = slice(2 * h, 2 * h + 2)
                fl.append(lambda sl=sl: e.valu("v_pk_mul_f32", U_[sl], U_[sl], sInv2))
            for h in range(2):
                sl = slice(2 * h, 2 * h + 2)
                fl.append(lambda sl=sl: e.valu("v_pk_fma_f32", Gx[sl], U_[sl], U_[sl], sEps2, mods=NEG1))
            for h in range(2):
                sl = slice(2 * h, 2 * h + 2)
                fl.append(lambda sl=sl: e.valu("v_pk_fma_f32", SS_[sl], SS_[sl], sInv2, Gx[sl]))
        else:
            for r in range(4):
                fl.append(lambda r=r: e.valu("v_mul_f32", U_[r], sInv, U_[r]))
            for r in range(4):
                fl.append(lambda r=r: e.valu("v_fma_f32", Gx[r], Neg(U_[r]), U_[r], sEps))
            for r in range(4):
                fl.append(lambda r=r: e.valu("v_fma_f32", SS_[r], SS_[r], sInv, Gx[r]))
        for r in range(4):
            fl.append(lambda r=r: e.valu("v_max_f32", SS_[r], sEps, SS_[r]))
        for r in range(4):
            fl.append(lambda r=r: e.valu("v_rsq_f32", SS_[r], SS_[r]))
        return fl

    def coarse_phase(first):
        if first:
            wait_piece()
            a_reads(A1)
        else:
            begin_piece(A1)
        if first:
            for cb in range(6):
                tr_read(T1[cb], cb)
        else:
            for cb in range(12):
                e.mfma(MF32, acc[cb], TH[cb], Pf, acc[cb])
                tr_read(T1[cb], cb)
        for kk in range(6):
            if first or kk == 0:
                lq.wait(("a", kk if first else 5))
            e.mfma(MF32, SSx, A1[kk], A1[kk], SSx if kk else 0)
            e.mfma(MF32, Uc, A1[kk], vOnes, Uc if kk else 0)
            if first:
                tr_read(T1[6 + kk], 6 + kk)
        if not first:
            for kk in range(6):
                e.mfma(MF32, Sc, A1[kk], Qk[kk], Sc if kk else 0)
        release()
        if not first:
            early(A0)
        diag(SSx, ss1)

    def tile_mfmas(AF, U, SS, first, trs, waits, rel=True, nxt=None):
        trs = list(trs)
        for kk in range(6):
            if waits:
                lq.wait(("a", kk))
            e.mfma(MF32, SS, AF[kk], AF[kk], SS if kk else 0)
            if trs and kk >= 2:
                tr_read(*trs.pop(0))
            e.mfma(MF32, Gx, AF[kk], A1[kk], Gx if kk else 0)
            if trs:
                tr_read(*trs.pop(0))
        fl = sumsq_ops(SS)
        for kk in range(6):
            e.mfma(MF32, U, AF[kk], vOnes, U if kk else Uc)
            if kk < 2:
                if trs:
                    tr_read(*trs.pop(0))
                if kk == 1:
                    e.nop(8 - 3 - (2 if waits else 0))
            else:
                for _ in range(2):
                    fl.pop(0)()
        assert not trs
        if first:
            while fl:
                fl.pop(0)()
            e.mfma(MFF, SS, tA, vOne, 0)
            release()
            return
        fl.pop(0)()
        e.mfma(MF32, Sx, AF[0], Qk[0], Sc)
        e.nop(1)
        e.mfma(MFF, SS, tA, vOne, 0)
        fl = stats_ops(U, SS, packed=False)
        for kk in range(1, 6):
            e.mfma(MF32, Sx, AF[kk], Qk[kk], Sx)
            if kk >= 2:
                for _ in range(2):
                    fl.pop(0)()
        if rel:
            release()
        else:
            lq.drain()
        if nxt is not None:
            early(nxt, again=not waits and EARLY > 1)
        while fl:
            fl.pop(0)()

    def tile_phase(t, first, AF=None, U=None, SS=None):
        AF = AF or A0
        U = U or Ux
        SS = SS or SSx
        half = t & 1
        if first:
            wait_piece()
            a_reads(AF)
        else:
            begin_piece(AF)
        nxt = None if first else (A1 if t == 3 else A0)
        if t == 2:
            e.valu("v_mov_b32", tC, 0)
            for cb in range(12):
                e.mfma(MF32, acc[cb], T0[cb], Pf, acc[cb])
                tr_read(T0[cb][0:2], cb)
                ones_read(T0[cb][2:4])
            e.label("L_tile2b")
            lq.wait(("a", 5))
            tile_mfmas(AF, U, SS, first, [], False, nxt=nxt)
        else:
            tile_mfmas(AF, U, SS, first, [(T0[cb][2 * half:2 * half + 2], cb) for cb in range(12)], True, nxt=nxt)

    def softmax(t, last=False):
        half = t & 1
        for h in range(2):
            sl = slice(2 * h, 2 * h + 2)
            e.valu("v_pk_fma_f32", Sx[sl], Ux[sl], vCs2, Sx[sl], mods=NEG1)
        for h in range(2):
            e.valu("v_pk_fma_f32", X[2 * h:2 * h + 2], Sx[2 * h:2 * h + 2], SSx[2 * h:2 * h + 2], vNm2)
        e.valu("v_max3_f32", tC, X[0], X[1], X[2])
        e.valu("v_max_f32", tC, tC, X[3])
        e.valu("v_cmp_lt_f32", VCC, sThr, tC)
        lbl = newlabel("sm")
        e.salu("s_cbranch_vccz", lbl)
        e.begin_cond()
        e.salu("s_call_b64", sRet, "L_rescale")
        e.end_cond()
        e.raw(f"{lbl}:")
        for r in range(4):
            e.valu("v_exp_f32", X[r], X[r])
        dst = pp if half == 0 else Sx
        for h in range(2):
            e.valu("v_pk_mul_f32", dst[2 * h:2 * h + 2], X[2 * h:2 * h + 2], SSx[2 * h:2 * h + 2])
            if not last:
                e.valu("v_pk_add_f32", vL2, vL2, X[2 * h:2 * h + 2])
        for h in range(2):
            if t == 0:
                e.valu("v_mov_b32", pc[2 * h], dst[2 * h])
                e.valu("v_mov_b32", pc[2 * h + 1], dst[2 * h + 1])
            else:
                e.valu("v_pk_add_f32", pc[2 * h:2 * h + 2], pc[2 * h:2 * h + 2], dst[2 * h:2 * h + 2])
        if not last:
            for h in range(2):
                sl = slice(2 * h, 2 * h + 2)
                if t == 3 and h == 0:
                    e.valu("v_pk_mul_f32", mu2, dst[sl], Ux[sl])
                else:
                    e.valu("v_pk_fma_f32", mu2, dst[sl], Ux[sl], mu2)
        if t == 1:
            e.valu("v_cvt_pk_bf16_f32", Pf[0], pp[0], pp[1])
            e.valu("v_cvt_pk_bf16_f32", Pf[1], pp[2], pp[3])
            e.valu("v_cvt_pk_bf16_f32", Pf[2], Sx[0], Sx[1])
            e.valu("v_cvt_pk_bf16_f32", Pf[3], Sx[2], Sx[3])
        if t == 2:
            e.valu("v_cvt_pk_bf16_f32", Pf[0], pp[0], pp[1])
            e.valu("v_cvt_pk_bf16_f32", Pf[1], pp[2], pp[3])
            e.valu("v_cvt_pk_bf16_f32", Pf[2], Neg(mu2[0]), Neg(mu2[1]))
            e.valu("v_mov_b32", Pf[3], 0)
            if EARLY > 1:
                early2(A0)
            for cb in range(12):
                e.mfma(MF32, acc[cb], T0[cb], Pf, acc[cb])
        if t == 3:
            e.valu("v_cvt_pk_bf16_f32", Pf[0], Sx[0], Sx[1])
            e.valu("v_cvt_pk_bf16_f32", Pf[1], Sx[2], Sx[3])
            e.valu("v_cvt_pk_bf16_f32", Pf[2], pc[0], pc[1])
            e.valu("v_cvt_pk_bf16_f32", Pf[3], pc[2], pc[3])

    U1, SS1, S1 = acc[6], acc[7], acc[8]
    coarse_phase(True)
    tile_phase(0, True)
    e.salu("s_sub_u32", sT, S(2), NQP)
    e.salu("s_cmp_ge_u32", sT, NPR - NQP)
    e.salu("s_cbranch_scc1", "L_nowf")
    e.begin_cond()
    srd(e, S(24, 4), pDbg, 256)
    e.salu("s_lshl_b32", sT, sT, 4)
    e.valu("v_mov_b32", tA, 1)
    e.waitcnt(vm=0)
    e.salu("s_mov_b64", EXEC, 1)
    e.buf_store("buffer_store_dword", tA, vSy, S(24, 4), sT, offset=DBG_WVO, flags="sc1")
    e.salu("s_mov_b64", EXEC, -1)
    st.mark(11)
    e.end_cond()
    e.raw("L_nowf:")
    tile_phase(1, True, AF=acc[:6], U=U1, SS=SS1)
    for f_ in stats_ops(Ux, SSx) + stats_ops(U1, SS1):
        f_()
    wait_piece()
    st.mark(6)
    lk.at(9, tA, tB)
    e.valu("v_mov_b32", tC, 0)
    lds_spin(e, tC, S_QKRDY, vPoll, sT, 1, sleep=1)
    lq.q = []
    st.mark(2)
    lk.at(2, tA, tB)
    st.cyc(8)
    for kk in range(6):
        e.ds_read("ds_read_b128", Qk[kk], vQa[kk & 1], QK + (kk >> 1) * 128)
    for kk in range(6):
        e.waitcnt(lgkm=5 - kk)
        e.mfma(MF32, Sc, A1[kk], Qk[kk], Sc if kk else 0)
    for kk in range(6):
        e.mfma(MF32, Sx, A0[kk], Qk[kk], Sx if kk else Sc)
        e.mfma(MF32, S1, acc[kk], Qk[kk], S1 if kk else Sc)
    a_reads(A0)
    for n in range(24):
        d = vCs2[n & 1]
        e.valu("v_dot2_f32_bf16", d, Qk[n >> 2][n & 3], vOnes[0], d if n >= 2 else 0)
    e.valu("v_add_f32", vCs2[0], vCs2[0], vCs2[1])
    xg_reduce(e, "v_add_f32", vCs2[0], tA, tB)
    e.valu("v_mov_b32", vCs2[1], vCs2[0])
    for (U_, SS_, S_) in ((Ux, SSx, Sx), (U1, SS1, S1)):
        for h in range(2):
            sl = slice(2 * h, 2 * h + 2)
            e.valu("v_pk_fma_f32", S_[sl], U_[sl], vCs2, S_[sl], mods=NEG1)
            e.valu("v_pk_mul_f32", S_[sl], S_[sl], SS_[sl])
    e.valu("v_max3_f32", vM, Sx[0], Sx[1], Sx[2])
    e.valu("v_max3_f32", tC, Sx[3], S1[0], S1[1])
    e.valu("v_max3_f32", vM, vM, S1[2], S1[3])
    e.valu("v_max_f32", vM, vM, tC)
    xg_reduce(e, "v_max_f32", vM, tA, tB)
    e.valu("v_cmp_le_f32_e64", VCC, "|%s|" % vM, sThr)
    e.valu("v_cndmask_b32_e64", vM, vM, 0, VCC)
    e.valu("v_sub_f32", vNm2[0], 0, vM)
    e.valu("v_sub_f32", vNm2[1], 0, vM)
    for S_ in (Sx, S1):
        for h in range(2):
            sl = slice(2 * h, 2 * h + 2)
            e.valu("v_pk_add_f32", S_[sl], S_[sl], vNm2)
        for r in range(4):
            e.valu("v_exp_f32", S_[r], S_[r])
    e.valu("v_pk_add_f32", vL2, Sx[0:2], Sx[2:4])
    e.valu("v_pk_add_f32", vL2, vL2, S1[0:2])
    e.valu("v_pk_add_f32", vL2, vL2, S1[2:4])
    for (SS_, S_) in ((SSx, Sx), (SS1, S1)):
        for h in range(2):
            sl = slice(2 * h, 2 * h + 2)
            e.valu("v_pk_mul_f32", S_[sl], S_[sl], SS_[sl])
    e.valu("v_cvt_pk_bf16_f32", Pf[0], Sx[0], Sx[1])
    e.valu("v_cvt_pk_bf16_f32", Pf[1], Sx[2], Sx[3])
    e.valu("v_cvt_pk_bf16_f32", Pf[2], S1[0], S1[1])
    e.valu("v_cvt_pk_bf16_f32", Pf[3], S1[2], S1[3])
    for h in range(2):
        sl = slice(2 * h, 2 * h + 2)
        e.valu("v_pk_add_f32", pc[sl], Sx[sl], S1[sl])
    e.valu("v_pk_mul_f32", mu2, Sx[0:2], Ux[0:2])
    e.valu("v_pk_fma_f32", mu2, Sx[2:4], Ux[2:4], mu2)
    e.valu("v_pk_fma_f32", mu2, S1[0:2], U1[0:2], mu2)
    e.valu("v_pk_fma_f32", mu2, S1[2:4], U1[2:4], mu2)
    e.valu("v_mov_b32", tC, 0)
    for cb in range(12):
        e.mfma(MF32, acc[cb], T0[cb], Pf, 0)
        tr_read(T0[cb][0:2], cb)
        ones_read(T0[cb][2:4])
    e.fence()
    e.salu("s_branch", "L_tile2b")
    lq.q = []

    e.raw("L_rescale:")
    e.nop(16)
    for r in range(4):
        e.valu("v_mul_f32", X[r], Sx[r], SSx[r])
    e.valu("v_max3_f32", tC, X[0], X[1], X[2])
    e.valu("v_max3_f32", tC, tC, X[3], vM)
    xg_reduce(e, "v_max_f32", tC, tA, tB)
    al = V(22, 2)
    e.valu("v_sub_f32", al[0], vM, tC)
    e.valu("v_exp_f32", al[0], al[0])
    e.valu("v_mov_b32", vM, tC)
    e.valu("v_sub_f32", vNm2[0], 0, tC)
    e.valu("v_sub_f32", vNm2[1], 0, tC)
    e.valu("v_mov_b32", al[1], al[0])
    for r in range(4):
        e.valu("v_sub_f32", X[r], X[r], tC)
    for q_ in [vL2, mu2, pc[0:2], pc[2:4], pp[0:2], pp[2:4]] + [a_[2 * h:2 * h + 2] for a_ in acc for h in range(2)]:
        e.valu("v_pk_mul_f32", q_, q_, al)
    e.fence()
    e.salu("s_setpc_b64", sRet)

    e.label("L_loop")
    st.cyc(7)
    coarse_phase(False)
    tile_phase(0, False)
    softmax(0)
    tile_phase(1, False)
    softmax(1)
    tile_phase(2, False)
    softmax(2)
    e.salu("s_cmp_eq_u32", sIt, NITER - 1)
    e.salu("s_cbranch_scc1", "L_last")
    tile_phase(3, False)
    softmax(3)
    e.salu("s_add_u32", sIt, sIt, 1)
    e.fence()
    e.salu("s_branch", "L_loop")

    e.raw("L_last:")
    lq.q = [None]
    for a_ in acc:
        for r_ in a_.regs():
            e.w[r_] = (e.pos - 1, "xdl4", (a_.f, a_.i, a_.n))
    st.cyc(9)
    fr = [T0[cb][0:2] for cb in range(12)]
    vFr, vSt = fr[0][0], fr[0][1]
    vOn1, vZ0 = fr[1][0], fr[1][1]
    if opt.get("lprio", 2):
        e.salu("s_setprio", opt.get("lprio", 2))
    e.valu("v_and_b32", tA, 15, lane)
    e.valu("v_lshrrev_b32", tB, 4, lane)
    e.valu("v_lshlrev_b32", vFr, 4, lane)
    e.valu("v_lshlrev_b32", tB, 2, tB)
    e.valu("v_add_u32", vFr, sLds, vFr)
    e.valu("v_lshl_add_u32", vSt, tA, 4, tB)
    e.valu("v_add_u32", vSt, sLds, vSt)
    FINE = opt.get("fine", 0)
    if FINE:
        st.cyc(5)
    lq.q = []
    begin_piece(A0, sleep=0)
    if FINE:
        st.cyc(7)
    tile_mfmas(A0, Ux, SSx, False, [(T0[cb][2:4], cb) for cb in range(12)], True, rel=False)
    if FINE:
        st.cyc(8)
    softmax(3, True)
    st.mark(3)
    if FINE:
        st.cyc(11)

    def put(kk):
        pk = A1[kk]
        for q_ in range(2):
            e.valu("v_cvt_pk_bf16_f32", pk[2 * q_], acc[2 * kk + q_][0], acc[2 * kk + q_][1])
            e.valu("v_cvt_pk_bf16_f32", pk[2 * q_ + 1], acc[2 * kk + q_][2], acc[2 * kk + q_][3])
        e.ds_write("ds_write_b128", vFr, pk, FRAG + 1024 * kk)

    def flagval():
        e.salu("s_cmp_eq_u64", VCC, 0)
        e.salu("s_cselect_b32", sT, 1, 2)
        e.valu("v_mov_b32", vOn1, sT)
    fill = [lambda: e.valu("v_cmp_neq_f32", VCC, 0, vM),
            lambda: e.valu("v_add_f32", X[0], X[0], X[1]),
            lambda: e.valu("v_add_f32", X[2], X[2], X[3]),
            lambda: e.valu("v_add_f32", vL2[0], vL2[0], vL2[1]),
            lambda: e.valu("v_add_f32", X[0], X[0], X[2]),
            lambda: e.ds_write("ds_write_b32", vSt, vM, WST + 512),
            lambda: e.valu("v_add_f32", vL2[0], vL2[0], X[0]),
            flagval,
            lambda: e.ds_write("ds_write_b32", vSt, vL2[0], WST)]
    post = []
    for kk in range(6):
        pk = A1[kk]
        for q_ in range(2):
            for h in range(2):
                post.append(lambda kk=kk, q_=q_, h=h, pk=pk: e.valu("v_cvt_pk_bf16_f32", pk[2 * q_ + h], acc[2 * kk + q_][2 * h], acc[2 * kk + q_][2 * h + 1]))
        post.append(lambda kk=kk, pk=pk: e.ds_write("ds_write_b128", vFr, pk, FRAG + 1024 * kk))
    for cb in range(12):
        e.mfma(MF32, acc[cb], TH[cb], Pf, acc[cb])
        if cb < 3:
            for _ in range(3):
                fill.pop(0)()
        else:
            for _ in range(2 + (cb & 1 ^ 1)):
                post.pop(0)()
    while post:
        post.pop(0)()
    e.ds_write("ds_write_b32", vSy, vOn1, S_FR)
    st.mark(4)
    if FINE:
        st.cyc(1)
    e.salu("s_setprio", 0)

    sId = S(53)
    e.salu("s_cmp_lt_u32", S(2), NWG - NCB)
    e.salu("s_cbranch_scc1", "L_r_end")
    e.salu("s_sub_u32", sId, S(2), NWG - NCB)
    e.salu("s_and_b32", sT, sId, 7)
    e.salu("s_lshr_b32", sT2, sId, 4)
    e.salu("s_lshl_b32", sT2, sT2, 3)
    e.salu("s_or_b32", sT, sT, sT2)
    e.salu("s_lshl_b32", sT, sT, 1)
    e.salu("s_bfe_u32", sT2, sId, 0x10003)
    e.salu("s_or_b32", sId, sT, sT2)
    sQ, sO = S(24, 4), S(28, 4)
    srd(e, sQ, pQ, 6144)
    srd(e, sO, S(18, 2), 6144)
    nq, wgp, vP, vO, c0, c1, vW, vR, c2, vAlt, tg = [V(28 + k) for k in range(11)]
    e.valu("v_and_b32", nq, 3, lane)
    e.valu("v_lshrrev_b32", wgp, 2, lane)
    e.valu("v_lshlrev_b32", vP, 15, wgp)
    e.valu("v_lshl_add_u32", vP, nq, 4, vP)
    e.valu("v_lshlrev_b32", c0, 2, nq)
    e.ds_read("ds_read_b32", tg, c0, TAGS)
    e.salu("s_lshl_b32", sT, sWave, 19)
    e.salu("s_lshl_b32", sT2, sId, 6)
    e.salu("s_add_u32", sT, sT, sT2)
    sC = [S(4), S(5), S(6)]
    e.salu("s_and_b32", sT2, sId, 3)
    e.salu("s_mul_i32", sT2, sT2, 4 * 384)
    e.valu("v_mul_u32_u24", vO, 384, nq)
    e.valu("v_add_u32", vO, sT2, vO)
    e.salu("s_lshr_b32", sT2, sId, 5)
    e.salu("s_mul_i32", sC[2], sT2, 96)
    e.salu("s_bfe_u32", sT2, sId, 0x20002)
    e.salu("s_lshl_b32", sT2, sT2, 3)
    e.salu("s_add_u32", sC[2], sC[2], sT2)
    e.salu("s_bitcmp1_b32", sId, 4)
    e.salu("s_cselect_b32", sC[0], 36, 0)
    e.salu("s_cselect_b32", sC[1], 64, 4)
    e.salu("s_cselect_b32", sT2, 68, 32)
    e.salu("s_add_u32", sC[0], sC[0], sC[2])
    e.salu("s_add_u32", sC[1], sC[1], sC[2])
    e.salu("s_add_u32", sC[2], sC[2], sT2)
    qv = V(56, 3)
    for k in range(3):
        e.buf_load("buffer_load_dword", qv[k], vO, sQ, sC[k])
    e.valu("v_lshrrev_b32", c0, 4, lane)
    e.valu("v_lshlrev_b32", vW, 7, c0)
    e.valu("v_lshl_add_u32", vW, nq, 5, vW)
    e.salu("s_lshl_b32", sT2, sWave, 9)
    e.salu("s_add_u32", sT2, sT2, CEX)
    e.valu("v_add_u32", vW, sT2, vW)
    e.valu("v_and_b32", vR, 15, lane)
    e.valu("v_lshlrev_b32", vR, 5, vR)
    P = [V(40 + 4 * i, 4) for i in range(4)]
    R8 = V(60, 8)
    a6, L, M = R8[0:6], R8[6], R8[7]
    qf = V(120, 6)
    sBad = [S(44, 2), S(46, 2), S(58, 2), S(60, 2)]
    sLo1, sHi1 = S(38), S(39)
    e.valu("v_mov_b32", c0, 0)
    for k in range(8):
        e.valu("v_mov_b32", R8[k], 0)
    e.valu("v_mov_b32", vAlt, 0)
    for i in range(4):
        e.salu("s_mov_b64", sBad[i], -1)
    e.salu("s_mov_b32", sLo1, 0x00003F80)
    e.salu("s_mov_b32", sHi1, 0x3F800000)
    e.waitcnt(vm=0, lgkm=0)
    for k in range(3):
        e.valu("v_lshlrev_b32", qf[2 * k], 16, qv[k])
        e.valu("v_and_b32", qf[2 * k + 1], 0xFFFF0000, qv[k])
    if opt.get("gate", 1):
        lds_spin(e, c0, S_EMP, c1, sT2, 4)
    if opt.get("pre", 4):
        e.salu("s_mov_b64", EXEC, {1: 0x1, 2: 0x10001, 4: 0x1111, 8: 0x11111111}[opt.get("pre", 4)])
        e.label("L_tpre")
        e.buf_load("buffer_load_dword", c0, vP, sWS, sT, offset=12, flags=PFL)
        e.waitcnt(vm=0)
        e.valu("v_xor_b32", c0, c0, tg)
        e.valu("v_and_b32", c0, 0xFFFE, c0)
        e.valu("v_cmp_ne_u32", VCC, 0, c0)
        e.salu("s_cbranch_vccnz", "L_tpre")
        e.salu("s_mov_b64", EXEC, -1)
    e.label("L_tpoll")
    for i in range(4):
        lb_ = newlabel("tskip")
        e.salu("s_add_u32", sT2, sT, PSZ * i)
        e.salu("s_cmp_eq_u64", sBad[i], 0)
        e.salu("s_cbranch_scc1", lb_)
        e.begin_cond()
        e.salu("s_mov_b64", EXEC, sBad[i])
        e.buf_load("buffer_load_dwordx4", P[i], vP, sWS, sT2, flags=LFL)
        e.end_cond()
        e.raw(f"{lb_}:")
    e.waitcnt(vm=0)
    for i in range(4):
        lb_ = newlabel("tchk")
        e.salu("s_cmp_eq_u64", sBad[i], 0)
        e.salu("s_cbranch_scc1", lb_)
        e.begin_cond()
        e.salu("s_mov_b64", EXEC, sBad[i])
        e.valu("v_xor_b32", c2, P[i][3], tg)
        e.valu("v_and_b32", c0, 0xFFFE, c2)
        e.valu("v_and_b32", c1, 0xFFFF0000, P[i][3])
        e.valu("v_or_b32_dpp", c0, c0, c0, mods="quad_perm:[1,0,3,2] row_mask:0xf bank_mask:0xf")
        e.valu("v_or_b32_dpp", c0, c0, c0, mods="quad_perm:[2,3,0,1] row_mask:0xf bank_mask:0xf")
        e.valu("v_cmp_eq_u32", VCC, 0, c0)
        e.nop(1)
        e.salu("s_andn2_b64", sBad[i], sBad[i], VCC)
        e.salu("s_and_b64", EXEC, VCC, VCC)
        e.salu("s_cbranch_scc0", lb_)
        for k in range(6):
            e.valu("v_dot2_f32_bf16", a6[k], P[i][k >> 1], sHi1 if k & 1 else sLo1, a6[k])
        e.valu("v_add_f32", L, L, c1)
        e.valu("v_or_b32", vAlt, vAlt, c2)
        e.end_cond()
        e.raw(f"{lb_}:")
    e.salu("s_mov_b64", EXEC, -1)
    sCn, sPi, sMk = S(54), S(55), S(56, 2)
    e.salu("s_or_b64", sMk, sBad[0], sBad[1])
    e.salu("s_or_b64", VCC, sBad[2], sBad[3])
    e.salu("s_or_b64", sMk, sMk, VCC)
    e.salu("s_cbranch_scc0", "L_tfull")
    e.salu("s_mov_b32", sCn, 0)
    for i in (3, 2, 1, 0):
        e.salu("s_bcnt1_i32_b64", sT2, sBad[i])
        e.salu("s_cselect_b32", sPi, PSZ * i if i else 0, sPi)
        e.salu("s_cselect_b64", sMk, sBad[i], sMk)
        e.salu("s_add_u32", sCn, sCn, sT2)
    e.salu("s_cmp_le_u32", sCn, 4 * opt.get("tfew", 8))
    e.salu("s_cbranch_scc1", "L_tpoll")
    e.salu("s_ff1_i32_b64", sT2, sMk)
    e.salu("s_lshl_b64", EXEC, 1, sT2)
    e.salu("s_add_u32", sPi, sPi, sT)
    e.label("L_tprobe")
    e.buf_load("buffer_load_dword", c0, vP, sWS, sPi, offset=12, flags=PFL)
    e.waitcnt(vm=0)
    e.valu("v_xor_b32", c0, c0, tg)
    e.valu("v_and_b32", c0, 0xFFFE, c0)
    e.valu("v_cmp_ne_u32", VCC, 0, c0)
    e.salu("s_cbranch_vccnz", "L_tprobe")
    e.salu("s_mov_b64", EXEC, -1)
    e.salu("s_branch", "L_tpoll")
    e.label("L_tfull")
    st.mark(10)
    lk.at(6, c0, c1)
    e.valu("v_and_b32", c0, 1, vAlt)
    e.valu("v_cmp_ne_u32", VCC, 0, c0)
    e.salu("s_cbranch_vccnz", "L_tgen")
    e.label("L_trows")
    for k in (4, 8):
        for x in range(7):
            e.valu("v_add_f32_dpp", R8[x], R8[x], R8[x], mods=f"row_ror:{k} row_mask:0xf bank_mask:0xf")
    e.salu("s_mov_b32", S(46), 0x000F000F)
    e.salu("s_mov_b32", S(47), 0x000F000F)
    e.salu("s_mov_b64", EXEC, S(46, 2))
    e.ds_write("ds_write_b128", vW, R8[0:4], 0)
    e.ds_write("ds_write_b128", vW, R8[4:8], 16)
    e.salu("s_mov_b64", EXEC, -1)
    e.waitcnt(lgkm=0)
    e.barrier()
    e.salu("s_cmp_lg_u32", sWave, 0)
    e.salu("s_cbranch_scc1", "L_r_end")
    Xv = [V(80 + 8 * v, 8) for v in range(4)]
    for v in range(4):
        e.ds_read("ds_read_b128", Xv[v][4:8], vR, CEX + 512 * v + 16)
    for v in range(4):
        e.ds_read("ds_read_b128", Xv[v][0:4], vR, CEX + 512 * v)
    e.waitcnt(lgkm=4)
    e.valu("v_or3_b32", c0, Xv[0][7], Xv[1][7], Xv[2][7])
    e.valu("v_or_b32", c0, c0, Xv[3][7])
    e.valu("v_cmp_ne_u32", VCC, 0, c0)
    e.salu("s_cbranch_vccnz", "L_fgen")
    e.label("L_fsum")
    for h in (3, 2, 0, 1):
        sl = slice(2 * h, 2 * h + 2)
        if h == 0:
            e.waitcnt(lgkm=0)
        e.valu("v_pk_add_f32", R8[sl], Xv[0][sl], Xv[1][sl])
        e.valu("v_pk_add_f32", Xv[2][sl], Xv[2][sl], Xv[3][sl])
    for h in (3, 2, 0, 1):
        sl = slice(2 * h, 2 * h + 2)
        e.valu("v_pk_add_f32", R8[sl], R8[sl], Xv[2][sl])
    for k in (4, 8):
        for x in (6, 0, 1, 2, 3, 4, 5):
            e.valu("v_add_f32_dpp", R8[x], R8[x], R8[x], mods=f"row_ror:{k} row_mask:0xf bank_mask:0xf")
            if k == 8 and x == 1:
                e.valu("v_rcp_f32", L, L)
    for h in range(3):
        sl = slice(2 * h, 2 * h + 2)
        e.valu("v_pk_mul_f32", a6[sl], a6[sl], R8[6:8], mods="op_sel_hi:[1,0]")
    for h in range(3):
        e.valu("v_cvt_pk_bf16_f32", qv[h], a6[2 * h], a6[2 * h + 1])
    for h in range(3):
        e.valu("v_lshlrev_b32", a6[2 * h], 16, qv[h])
        e.valu("v_and_b32", a6[2 * h + 1], 0xFFFF0000, qv[h])
    for h in range(3):
        sl = slice(2 * h, 2 * h + 2)
        e.valu("v_pk_add_f32", a6[sl], a6[sl], qf[sl])
    e.salu("s_mov_b64", EXEC, 0xF)
    for h in range(3):
        e.valu("v_cvt_pk_bf16_f32", qv[h], a6[2 * h], a6[2 * h + 1])
        e.buf_store("buffer_store_dword", qv[h], vO, sO, sC[h])
    e.salu("s_mov_b64", EXEC, -1)
    st.mark(12)
    lk.at(7, c0, c1)
    lk.spend(c0, c1)
    e.label("L_r_end")
    st.dump(sWS, 13, [V(126), V(127)])
    e.salu("s_endpgm")

    e.raw("L_tgen:")
    e.nop(4)
    Fv = [V(112 + 2 * i, 2) for i in range(4)]
    tw, vE = V(70), V(71)
    e.valu("v_mov_b32", c0, 0)
    e.ds_read("ds_read_b64", V(72, 2), c0, TAGS)
    e.valu("v_lshlrev_b32", vE, 9, wgp)
    e.valu("v_lshl_add_u32", vE, nq, 3, vE)
    e.salu("s_and_b32", sT2, sId, 3)
    e.salu("s_lshl_b32", sT2, sT2, 5)
    e.salu("s_lshl_b32", sPi, sWave, 13)
    e.salu("s_add_u32", sPi, sPi, sT2)
    e.salu("s_add_u32", sPi, sPi, WS_E)
    e.waitcnt(lgkm=0)
    e.valu("v_lshl_or_b32", tw, V(73), 16, V(72))
    for i in range(4):
        e.valu("v_mov_b32", Fv[i][0], 0)
        e.valu("v_and_b32", c0, 1, P[i][3])
        e.valu("v_cmp_ne_u32", VCC, 0, c0)
        e.nop(1)
        e.salu("s_and_b64", EXEC, VCC, VCC)
        e.salu("s_cbranch_scc0", f"L_tg{i}e")
        e.label(f"L_tg{i}")
        e.buf_load("buffer_load_dwordx2", Fv[i], vE, sWS, sPi, offset=128 * i, flags="sc1")
        e.waitcnt(vm=0)
        e.valu("v_cmp_ne_u32", VCC, Fv[i][1], tw)
        e.salu("s_cbranch_vccnz", f"L_tg{i}")
        e.raw(f"L_tg{i}e:")
        e.salu("s_mov_b64", EXEC, -1)
    e.valu("v_max3_f32", M, Fv[0][0], Fv[1][0], Fv[2][0])
    e.valu("v_max_f32", M, M, Fv[3][0])
    for k in (4, 8):
        e.valu("v_max_f32_dpp", M, M, M, mods=f"row_ror:{k} row_mask:0xf bank_mask:0xf")
    xg_reduce(e, "v_max_f32", M, c0, c1)
    for k in range(7):
        e.valu("v_mov_b32", R8[k], 0)
    for i in range(4):
        e.valu("v_sub_f32", c2, Fv[i][0], M)
        e.valu("v_exp_f32", c2, c2)
        for k in range(7):
            if k & 1 or k == 6:
                e.valu("v_and_b32", c0, 0xFFFF0000, P[i][k >> 1])
            else:
                e.valu("v_lshlrev_b32", c0, 16, P[i][k >> 1])
            e.valu("v_fmac_f32", R8[k], c2, c0, rmw=True)
    e.fence()
    e.salu("s_branch", "L_trows")

    e.raw("L_fgen:")
    e.waitcnt(lgkm=0)
    e.valu("v_max3_f32", M, Xv[0][7], Xv[1][7], Xv[2][7])
    e.valu("v_max_f32", M, M, Xv[3][7])
    for v in range(4):
        e.valu("v_sub_f32", c0, Xv[v][7], M)
        e.valu("v_exp_f32", c0, c0)
        for k in range(7):
            e.valu("v_mul_f32", Xv[v][k], Xv[v][k], c0)
    e.fence()
    e.salu("s_branch", "L_fsum")

    e.w.clear(); e.cread.clear(); e.stread.clear()
    e.raw("L_qkprod:")
    pj, pg, pz, p0, p1 = V(28), V(29), V(30), V(31), V(32)
    vB = [V(34 + k) for k in range(4)]
    vTp = [V(38 + k) for k in range(3)]
    vTq = [V(41 + k) for k in range(3)]
    vXw = [V(44 + k) for k in range(3)]
    vL16 = V(47)
    qp = [V(52 + k) for k in range(24)]
    sCb = S(53)
    sCode = S(28, 4)
    e.salu("s_getpc_b64", sCode[0:2])
    e.salu("s_mov_b32", sCode[2], 4096)
    e.salu("s_mov_b32", sCode[3], 0x20000)
    e.valu("v_lshlrev_b32", p0, 6, lane)
    e.buf_load("buffer_load_dword", V(50), p0, sCode, 0)
    e.valu("v_and_b32", pj, 15, lane)
    e.valu("v_lshrrev_b32", pg, 4, lane)
    e.valu("v_mov_b32", pz, 0)
    e.valu("v_lshlrev_b32", vL16, 4, lane)
    e.valu("v_add_u32", vL16, QL, vL16)
    e.valu("v_mul_u32_u24", p0, 384, pj)
    e.valu("v_and_b32", p1, 1, pg)
    e.valu("v_lshl_add_u32", p0, p1, 3, p0)
    e.valu("v_add_u32", p0, STAGE, p0)
    e.valu("v_lshrrev_b32", p1, 1, pg)
    e.valu("v_and_b32", vB[3], 6, pj)
    e.valu("v_xor_b32", p1, p1, vB[3])
    for q in range(4):
        e.valu("v_xor_b32", vB[q], 2 * q, p1)
        e.valu("v_lshl_add_u32", vB[q], vB[q], 4, p0)
    e.valu("v_lshrrev_b32", p0, 2, pj)
    e.valu("v_lshl_add_u32", p0, pg, 2, p0)
    e.valu("v_and_b32", p1, 6, p0)
    e.valu("v_mul_u32_u24", p0, 384, p0)
    e.valu("v_and_b32", vTq[0], 3, pj)
    e.valu("v_lshl_add_u32", p0, vTq[0], 3, p0)
    for c in range(3):
        e.salu("s_mul_i32", sCb, sWave, 3)
        e.salu("s_add_u32", sCb, sCb, c)
        e.salu("s_and_b32", sT, sCb, 3)
        e.salu("s_lshl_b32", sT, sT, 1)
        e.valu("v_xor_b32", vTp[c], sT, p1)
        e.valu("v_lshl_add_u32", vTp[c], vTp[c], 4, p0)
        e.salu("s_lshr_b32", sT, sCb, 2)
        e.salu("s_lshl_b32", sT, sT, 7)
        e.salu("s_add_u32", sT, sT, RING0 + wslot(0) * TILE)
        e.valu("v_add_u32", vTp[c], sT, vTp[c])
        e.valu("v_add_u32", vTq[c], (wslot(8) - wslot(0)) * TILE, vTp[c])
        e.salu("s_lshr_b32", sT, sCb, 1)
        e.salu("s_lshl_b32", sT, sT, 10)
        e.salu("s_and_b32", sT2, sCb, 1)
        e.salu("s_lshl_b32", sT2, sT2, 3)
        e.salu("s_add_u32", sT, sT, sT2)
        e.valu("v_add_u32", vXw[c], sT, vL16)
    lds_spin(e, pz, S_WL, p0, sT, 1)
    st.mark(5)
    for kk in range(6):
        for hf in range(2):
            e.ds_read("ds_read_b64", V(52 + 4 * kk + 2 * hf, 2), vB[2 * (kk & 1) + hf], (kk >> 1) * 128)
    sm, one2 = V(76), V(77)
    mean, var = V(78, 2), V(80, 2)
    xs = [V(82, 2), V(84, 2)]
    e.valu("v_mov_b32", one2, 0x3F803F80)
    e.waitcnt(lgkm=0)
    for k in range(24):
        e.valu("v_dot2_f32_bf16", sm, qp[k], one2, sm if k else 0)
    xg_reduce(e, "v_add_f32", sm, p0, p1)
    e.valu("v_mul_f32", mean[0], sInv, sm)
    e.valu("v_mul_f32", mean[1], sInv, sm)
    for k in range(24):
        x = xs[k & 1]
        e.valu("v_lshlrev_b32", x[0], 16, qp[k])
        e.valu("v_and_b32", x[1], 0xFFFF0000, qp[k])
        e.valu("v_pk_add_f32", x, x, mean, mods="neg_lo:[0,1] neg_hi:[0,1]")
        if k == 0:
            e.valu("v_pk_mul_f32", var, x, x)
        else:
            e.valu("v_pk_fma_f32", var, x, x, var)
    e.valu("v_add_f32", var[0], var[0], var[1])
    xg_reduce(e, "v_add_f32", var[0], p0, p1)
    e.valu("v_mul_f32", var[0], sInv, var[0])
    bf16_round(e, mean[0])
    e.valu("v_mov_b32", mean[1], mean[0])
    bf16_round(e, var[0])
    e.valu("v_add_f32", var[0], 1.0e-5, var[0])
    bf16_round(e, var[0])
    e.valu("v_sqrt_f32", var[0], var[0])
    bf16_round(e, var[0])
    e.valu("v_rcp_f32", var[0], var[0])
    e.valu("v_mov_b32", var[1], var[0])
    for k in range(24):
        x = xs[k & 1]
        e.valu("v_lshlrev_b32", x[0], 16, qp[k])
        e.valu("v_and_b32", x[1], 0xFFFF0000, qp[k])
        e.valu("v_pk_add_f32", x, x, mean, mods="neg_lo:[0,1] neg_hi:[0,1]")
        e.valu("v_cvt_pk_bf16_f32", qp[k], x[0], x[1])
        e.valu("v_lshlrev_b32", x[0], 16, qp[k])
        e.valu("v_and_b32", x[1], 0xFFFF0000, qp[k])
        e.valu("v_pk_mul_f32", x, x, var)
        e.valu("v_cvt_pk_bf16_f32", qp[k], x[0], x[1])
    st.mark(10)
    lds_spin(e, pz, S_WL, p0, sT, 2)
    e.waitcnt(vm=0)
    Fr = [[V(100 + 12 * kk + 4 * c, 4) for c in range(3)] for kk in range(6)]
    Dq = [V(88 + 4 * c, 4) for c in range(3)]
    for kk in range(6):
        for c in range(3):
            for hf in range(2):
                t = 2 * kk + hf
                base = vTp[c] if t < 8 else vTq[c]
                e.ds_read("ds_read_b64_tr_b16", Fr[kk][c][2 * hf:2 * hf + 2], base, (wslot(t) - wslot(0 if t < 8 else 8)) * TILE)
        if kk >= 2:
            e.waitcnt(lgkm=12)
            for c in range(3):
                e.mfma(MF32, Dq[c], Fr[kk - 2][c], V(52 + 4 * (kk - 2), 4), Dq[c] if kk - 2 else 0)
    for kk in (4, 5):
        e.waitcnt(lgkm=6 * (5 - kk))
        for c in range(3):
            e.mfma(MF32, Dq[c], Fr[kk][c], V(52 + 4 * kk, 4), Dq[c])
    for c in range(3):
        pk = V(76 + 2 * c, 2)
        e.valu("v_cvt_pk_bf16_f32", pk[0], Dq[c][0], Dq[c][1])
        e.valu("v_cvt_pk_bf16_f32", pk[1], Dq[c][2], Dq[c][3])
        e.ds_write("ds_write_b64", vXw[c], pk, 0)
    lds_inc(e, pz, p0, S_AUX)
    e.salu("s_cmp_ge_u32", sWave, 2)
    e.salu("s_cbranch_scc1", "L_qkp_done")
    lds_spin(e, pz, S_WL, p0, sT, 3)
    e.salu("s_mul_i32", sT, sWave, 2 * TILE)
    e.salu("s_add_u32", sT, sT, RING0 + wslot(12) * TILE - STAGE)
    for q in range(4):
        e.valu("v_add_u32", vB[q], sT, vB[q])
    for c in range(2):
        for kk in range(6):
            for hf in range(2):
                e.ds_read("ds_read_b64", V(100 + 24 * c + 4 * kk + 2 * hf, 2), vB[2 * (kk & 1) + hf], c * TILE + (kk >> 1) * 128)
    lds_spin(e, pz, S_AUX, p0, sT, 4)
    for kk in range(6):
        e.ds_read("ds_read_b128", V(52 + 4 * kk, 4), vL16, 1024 * kk)
    e.salu("s_lshl_b32", sT2, S(2), 1)
    e.salu("s_add_u32", sT2, sT2, sWave)
    e.salu("s_lshl_b32", sT2, sT2, 10)
    e.salu("s_add_u32", sT2, sT2, WS_QK)
    e.valu("v_lshlrev_b32", V(33), 4, lane)
    for kk in range(6):
        e.waitcnt(lgkm=5 - kk)
        for c in range(2):
            e.mfma(MF32, Dq[c], V(100 + 24 * c + 4 * kk, 4), V(52 + 4 * kk, 4), Dq[c] if kk else 0)
    lds_spin(e, pz, S_EMPT, p0, sT, 1)
    e.salu("s_mov_b32", sT, QSCALE)
    pk = V(76, 4)
    for c in range(2):
        for r in range(4):
            e.valu("v_mul_f32", Dq[c][r], sT, Dq[c][r])
        e.valu("v_cvt_pk_bf16_f32", pk[2 * c], Dq[c][0], Dq[c][1])
        e.valu("v_cvt_pk_bf16_f32", pk[2 * c + 1], Dq[c][2], Dq[c][3])
    for k in range(4):
        e.valu("v_min_u32", pk[k], -2, pk[k])
    e.buf_store("buffer_store_dwordx4", pk, V(33), sWS, sT2, flags="sc1")
    st.mark(11)
    e.label("L_qkp_done")
    lds_inc(e, pz, p0, S_ISS)
    e.waitcnt(lgkm=0)
    e.fence()
    e.salu("s_branch", "L_c_start")

    e.w.clear(); e.cread.clear(); e.stread.clear()
    e.raw("L_wvprod:")
    Bw = [V(28 + 4 * kd, 4) for kd in range(6)]
    Dv = [V(52 + 4 * t, 4) for t in range(12)]
    Av = [[V(100 + 24 * b_ + 4 * kd, 4) for kd in range(6)] for b_ in range(2)]
    w0, w1, wz, vTw = V(148), V(149), V(150), V(151)
    vAb = [[V(152), V(153)], [V(154), V(155)]]
    e.salu("s_getpc_b64", sCode[0:2])
    e.salu("s_mov_b32", sCode[2], 4096)
    e.salu("s_mov_b32", sCode[3], 0x20000)
    e.valu("v_lshlrev_b32", w0, 6, lane)
    e.buf_load("buffer_load_dword", V(156), w0, sCode, 0)
    e.valu("v_mov_b32", wz, 0)
    for b_ in range(2):
        for k in range(2):
            e.valu("v_add_u32", vAb[b_][k], RING0 + wslot(8 * b_) * TILE, vQa[k])
    e.valu("v_lshrrev_b32", w0, 4, lane)
    e.valu("v_bfe_u32", w1, lane, 2, 2)
    e.valu("v_lshl_add_u32", w0, w0, 3, w1)
    e.valu("v_and_b32", w1, 3, lane)
    e.valu("v_lshlrev_b32", w1, 3, w1)
    e.valu("v_lshl_add_u32", vTw, w0, 7, w1)
    e.salu("s_lshl_b32", sT, sWave, 5)
    e.salu("s_add_u32", sT, sT, WOB)
    e.valu("v_add_u32", vTw, sT, vTw)
    lds_spin(e, wz, S_WL, w0, sT, 1)
    for kd in range(6):
        for hf in range(2):
            e.ds_read("ds_read_b64_tr_b16", Bw[kd][2 * hf:2 * hf + 2], vTw, (32 * kd + 4 * hf) * 128)

    def wv_reads(t):
        return [lambda kd=kd: e.ds_read("ds_read_b128", Av[t & 1][kd], vAb[t >> 3][kd & 1], (wslot(t) - wslot(t & 8)) * TILE + (kd >> 1) * 128)
                for kd in range(6)]
    lds_spin(e, wz, S_WL, w0, sT, 2)
    e.waitcnt(vm=0)
    st.mark(5)
    for f_ in wv_reads(0):
        f_()
    for t in range(12):
        if t == 7:
            lds_spin(e, wz, S_WL, w0, sT, 3)
        nx = wv_reads(t + 1) if t < 11 else []
        for kd in range(6):
            e.waitcnt(lgkm=5)
            e.mfma(MF32, Dv[t], Av[t & 1][kd], Bw[kd], Dv[t] if kd else 0)
            if nx:
                nx.pop(0)()
            elif kd < 5:
                e.waitcnt(lgkm=4 - kd)
    lds_inc(e, wz, w0, S_ISS)
    m2 = V(158, 2)
    n2 = V(160, 2)
    for t in range(1, 12):
        e.valu("v_pk_add_f32", m2, Dv[0][0:2] if t == 1 else m2, Dv[t][0:2])
        e.valu("v_pk_add_f32", n2, Dv[0][2:4] if t == 1 else n2, Dv[t][2:4])
    e.valu("v_pk_add_f32", m2, m2, n2)
    e.valu("v_add_f32", m2[0], m2[0], m2[1])
    xg_reduce(e, "v_add_f32", m2[0], w0, w1)
    e.valu("v_mul_f32", m2[0], sInv, m2[0])
    e.salu("s_sub_u32", sT, S(2), NQP)
    e.salu("s_lshl_b32", sT, sT, 2)
    e.salu("s_add_u32", sT, sT, sWave)
    e.salu("s_mul_i32", sT, sT, 6144)
    e.salu("s_add_u32", sT, sT, WS_WVO)
    e.valu("v_lshlrev_b32", w0, 4, lane)
    for kk in range(6):
        pk = V(164 + 4 * kk, 4)
        for c in range(2):
            for h in range(2):
                x = Dv[2 * kk + c][2 * h:2 * h + 2]
                e.valu("v_pk_add_f32", x, x, m2, mods="op_sel_hi:[1,0] neg_lo:[0,1] neg_hi:[0,1]")
                e.valu("v_cvt_pk_bf16_f32", pk[2 * c + h], x[0], x[1])
        e.salu("s_add_u32", sT2, sT, 1024 * kk)
        e.buf_store("buffer_store_dwordx4", pk, w0, sWS, sT2, flags="sc1")
    st.mark(10)
    e.waitcnt(lgkm=0)
    e.nop(2)
    e.fence()
    e.salu("s_branch", "L_c_start")

    e.w.clear(); e.cread.clear(); e.stread.clear()
    e.raw("L_aux:")
    sA = S(36)
    sT, sT2, sT3 = S(37), S(38), S(39)
    sW0, sW1, sW2, sWS, sDbg = S(24, 4), S(28, 4), S(40, 4), S(32, 4), S(44, 4)
    sStg = S(48)
    j, g = V(1), V(2)
    vSl = V(3)
    vSt = V(4)
    vTr = [V(5 + k) for k in range(4)]
    vZ = V(11)
    vLn16 = V(12)
    vX = V(13)
    t0, t1 = V(14), V(15)
    e.salu("s_sub_u32", sA, sWave, 5)
    e.valu("v_mov_b32", vZ, 0)
    e.valu("v_and_b32", j, 15, lane)
    e.valu("v_lshrrev_b32", g, 4, lane)
    e.valu("v_lshlrev_b32", vLn16, 4, lane)
    for k in range(4):
        e.valu("v_mov_b32", V(16 + k), -1)
    e.waitcnt(lgkm=0)
    srd(e, sWS, pWS, 0x1000000)
    e.salu("s_cmp_ge_u32", S(2), NQP)
    e.salu("s_cbranch_scc1", "L_aux_noinv0")
    e.salu("s_cmp_lg_u32", sA, 1)
    e.salu("s_cbranch_scc1", "L_aux_noinv0")
    e.begin_cond()
    e.salu("s_lshl_b32", sT2, S(2), 11)
    e.salu("s_add_u32", sT2, sT2, WS_QK)
    for k in range(2):
        e.buf_store("buffer_store_dwordx4", V(16, 4), vLn16, sWS, sT2, offset=1024 * k, flags="sc1")
    e.smem("s_memrealtime s[52:53]", S(52, 2))
    e.waitcnt(lgkm=0)
    e.salu("s_mul_i32", S(54), S(52), 0x9E3779B1)
    e.salu("s_mov_b32", S(55), S(53))
    for r in range(3):
        e.salu("s_lshr_b64", S(56, 2), S(54, 2), 15 * r)
        e.salu("s_lshl_b32", sT3, S(56), 1)
        e.salu("s_and_b32", sT3, sT3, 0xFFFE)
        e.valu("v_mov_b32", V(20 + r), sT3)
    e.salu("s_mul_i32", sT3, S(54), 0x85EBCA6B)
    e.salu("s_lshr_b32", sT3, sT3, 16)
    e.salu("s_and_b32", sT3, sT3, 0xFFFE)
    e.valu("v_mov_b32", V(23), sT3)
    e.salu("s_lshl_b32", sT2, S(2), 7)
    e.salu("s_add_u32", sT2, sT2, WS_QK + 6144)
    e.salu("s_mov_b64", EXEC, 1)
    e.buf_store("buffer_store_dwordx4", V(20, 4), vZ, sWS, sT2, flags="sc1")
    e.salu("s_mov_b64", EXEC, -1)
    e.end_cond()
    e.raw("L_aux_noinv0:")
    e.barrier()
    srd(e, sDbg, pDbg, 256)
    e.salu("s_cmp_ge_u32", S(2), NQP)
    e.salu("s_cbranch_scc1", "L_aux_noinv")
    e.salu("s_cmp_lg_u32", sA, 1)
    e.salu("s_cbranch_scc1", "L_aux_noinv")
    e.begin_cond()
    e.valu("v_mov_b32", t0, 1)
    e.salu("s_lshl_b32", sT2, S(2), 5)
    e.waitcnt(vm=0)
    e.ds_write("ds_write_b32", vZ, t0, S_EMPT)
    e.salu("s_mov_b64", EXEC, 1)
    e.buf_store("buffer_store_dword", t0, vZ, sDbg, sT2, flags="sc1")
    e.salu("s_mov_b64", EXEC, -1)
    st.mark(8)
    e.end_cond()
    e.label("L_aux_noinv")

    e.salu("s_cmp_lt_u32", S(2), NQP)
    e.salu("s_cselect_b32", sT3, S_ISS - S_LANDED, 0)
    e.valu("v_mov_b32", t1, sT3)

    e.salu("s_cmp_lg_u32", sA, 0)
    e.salu("s_cbranch_scc1", "L_aux_w")
    vQw = [V(232 + k) for k in range(4)]
    QR = 208
    e.valu("v_mul_u32_u24", t0, 384, j)
    e.valu("v_and_b32", V(16), 1, g)
    e.valu("v_lshl_add_u32", t0, V(16), 3, t0)
    e.valu("v_lshrrev_b32", V(16), 1, g)
    e.valu("v_and_b32", vX, 6, j)
    e.valu("v_xor_b32", V(16), V(16), vX)
    for q in range(4):
        e.valu("v_xor_b32", vX, 2 * q, V(16))
        e.valu("v_lshl_add_u32", vQw[q], vX, 4, t0)
    e.valu("v_lshlrev_b32", vX, 5, lane)
    e.salu("s_cmp_lt_u32", S(2), NPR)
    e.salu("s_cselect_b32", sT2, 1, opt.get("fstart", 3))
    lds_spin(e, t1, S_LANDED, t0, sT, sT2, sleep=4)
    e.salu("s_mov_b64", EXEC, (1 << NQP) - 1)
    e.label("L_qpoll")
    e.buf_load("buffer_load_dword", t0, vX, sDbg, 0, flags="sc1")
    e.waitcnt(vm=0)
    e.valu("v_cmp_eq_u32", VCC, 0, t0)
    e.salu("s_cbranch_vccz", "L_qpolled")
    e.salu("s_sleep", 8)
    e.salu("s_branch", "L_qpoll")
    e.raw("L_qpolled:")
    e.salu("s_mov_b64", EXEC, -1)
    st.mark(7)
    e.salu("s_cmp_lt_u32", S(2), NPR)
    e.salu("s_cselect_b32", sT2, opt.get("wqstart", 3), opt.get("qstart", 6))
    e.salu("s_cmp_lt_u32", S(2), NQP)
    e.salu("s_cselect_b32", sT2, 4, sT2)
    lds_spin(e, t1, S_LANDED, t0, sT, sT2, sleep=2)
    st.mark(5)
    e.salu("s_mov_b32", sT2, WS_QK + 6144)
    e.buf_load("buffer_load_dwordx4", V(236, 4), vZ, sWS, sT2, flags="sc1")
    e.label("L_qdata")
    for k in range(6):
        e.salu("s_mov_b32", sT2, WS_QK + 1024 * k)
        e.buf_load("buffer_load_dwordx4", V(QR + 4 * k, 4), vLn16, sWS, sT2, flags="sc1")
    e.waitcnt(vm=0)
    e.valu("v_max3_u32", t0, V(QR), V(QR + 1), V(QR + 2))
    for k in range(3, 23, 2):
        e.valu("v_max3_u32", t0, t0, V(QR + k), V(QR + k + 1))
    e.valu("v_max_u32", t0, t0, V(QR + 23))
    e.valu("v_cmp_eq_u32", VCC, -1, t0)
    e.salu("s_cbranch_vccnz", "L_qdata")
    st.mark(6)
    e.ds_write("ds_write_b128", vZ, V(236, 4), TAGS)
    for ct in range(12):
        e.ds_write("ds_write_b64", vQw[ct & 3], V(QR + 2 * ct, 2), QK + (ct >> 2) * 128)
    e.valu("v_mov_b32", t0, 1)
    e.ds_write("ds_write_b32", vZ, t0, S_QKRDY)
    st.mark(1)

    e.label("L_aux_w")
    e.salu("s_cmp_lg_u32", sA, 2)
    e.salu("s_cbranch_scc1", "L_aux_wf2")
    e.valu("v_lshlrev_b32", vX, 2, lane)
    lds_spin(e, vZ, S_LANDED, t0, sT, opt.get("wstart", 10), sleep=8)
    lds_spin(e, vZ, S_QKRDY, t0, sT, 1, sleep=8)
    e.salu("s_mov_b64", EXEC, 0xFFF)
    e.label("L_wpoll")
    e.buf_load("buffer_load_dword", t0, vX, sDbg, 0, offset=DBG_WVO, flags="sc1")
    e.waitcnt(vm=0)
    e.valu("v_cmp_eq_u32", VCC, 0, t0)
    e.salu("s_cbranch_vccz", "L_wpolled")
    e.salu("s_sleep", opt.get("wsleep", 16))
    e.salu("s_branch", "L_wpoll")
    e.raw("L_wpolled:")
    e.salu("s_mov_b64", EXEC, -1)
    e.valu("v_mov_b32", t0, 1)
    e.ds_write("ds_write_b32", vZ, t0, S_WVL)
    e.label("L_aux_wf2")
    lds_spin(e, vZ, S_WVL, t0, sT, 1, sleep=8)
    st.mark(9)
    lk.at(8, t0, t1)
    e.salu("s_mul_i32", sT, sA, 3 * 6144)
    e.salu("s_add_u32", sT, sT, WS_WVO)
    WB = opt.get("wfb", 3)
    n = 0
    for t3 in range(3):
        for kk in range(6):
            if opt.get("noaf"):
                continue
            e.salu("s_add_u32", sT2, sT, (t3 * 6 + kk) * 1024)
            e.buf_load("buffer_load_dwordx4", WVO[kk][t3], vLn16, sWS, sT2, flags=WFL)
            n += 1
            if n % WB == 0:
                e.waitcnt(vm=0)
    st.mark(2)
    lk.at(4, t0, t1)

    e.label("L_tail")
    D = [V(16 + 4 * t3, 4) for t3 in range(3)]
    Dw2 = [V(32 + 4 * t3, 4) for t3 in range(3)]
    Bf = [[V(48 + 32 * b_ + 4 * kk, 4) for kk in range(6)] for b_ in range(2)]
    l4 = [V(72, 4), V(104, 4)]
    fl_ = [V(76), V(108)]
    G2 = [V(192, 4), V(196, 4)]
    vTg = V(200)
    vF0, vF2, vS0, vS2, vS = V(2), V(3), V(4), V(5), V(6)
    lt, lr = V(7), V(8)
    e.valu("v_lshlrev_b32", vS, 4, j)
    e.valu("v_add_u32", vF0, RING0, vLn16)
    e.valu("v_add_u32", vF2, RING0 + 2 * WAVE_RING, vLn16)
    e.valu("v_add_u32", vS0, RING0 + WST, vS)
    e.valu("v_add_u32", vS2, RING0 + WST + 2 * WAVE_RING, vS)
    sP = S(49)
    e.salu("s_lshl_b32", sP, S(2), 13)
    e.salu("s_lshl_b32", sT2, sA, 11)
    e.salu("s_add_u32", sP, sP, sT2)
    sHi = S(51)
    e.salu("s_mov_b32", sHi, 40.0)
    e.valu("v_and_b32", lr, 3, j)
    e.valu("v_lshlrev_b32", lr, 2, lr)
    e.ds_read("ds_read_b32", vTg, lr, TAGS)
    lds_spin(e, vZ, S_FR, t1, sT, 1, sleep=opt.get("fsleep", 1))
    if opt.get("fine"):
        st.cyc(5)

    def batch(w):
        fb, sb = (vF0, vS0) if w < 2 else (vF2, vS2)
        o = (w & 1) * WAVE_RING
        ops = [lambda: e.ds_read("ds_read_b32", fl_[w & 1], vZ, S_FR + 4 * w)]
        for kk in range(6):
            ops.append(lambda kk=kk: e.ds_read("ds_read_b128", Bf[w & 1][kk], fb, FRAG + o + 1024 * kk))
        ops.append(lambda: e.ds_read("ds_read_b128", l4[w & 1], sb, o))
        return ops

    def arrived(w):
        top, ok = newlabel("bt"), newlabel("bo")
        e.label(top, fence=False)
        e.waitcnt(lgkm=0)
        e.valu("v_readfirstlane_b32", sT, fl_[w & 1])
        e.nop(1)
        e.salu("s_cmp_eq_u32", sT, 1)
        e.salu("s_cbranch_scc1", ok)
        e.salu("s_cmp_eq_u32", sT, 2)
        e.salu("s_cbranch_scc1", "L_agen")
        e.begin_cond()
        for f_ in batch(w):
            f_()
        e.end_cond()
        e.salu("s_branch", top)
        e.raw(f"{ok}:")

    def meta():
        return [lambda: e.valu("v_cvt_pk_bf16_f32", lr, 0, lt),
                lambda: e.valu("v_or_b32", G2[0][3], lr, vTg),
                lambda: e.valu("v_or_b32", G2[1][3], lr, vTg)]

    def cv(g_, k, t3, r):
        return lambda: e.valu("v_cvt_pk_bf16_f32", G2[g_][k], D[t3][r], D[t3][r + 1])

    def stg(g_):
        return lambda: e.buf_store("buffer_store_dwordx4", G2[g_], vLn16, sWS, sP, offset=1024 * g_, flags=SFL)
    fin0 = [cv(0, 0, 0, 0), cv(0, 1, 0, 2), cv(0, 2, 1, 0), stg(0), cv(1, 0, 1, 2)]
    fin1 = [cv(1, 1, 2, 0), cv(1, 2, 2, 2), stg(1)]

    for f_ in batch(0):
        f_()
    e.waitcnt(vm=0)
    arrived(0)
    for w in range(4):
        B, lw = Bf[w & 1], l4[w & 1]
        fill = [lambda lw=lw: e.valu("v_add_f32", lw[0], lw[0], lw[1]),
                lambda lw=lw: e.valu("v_add_f32", lw[2], lw[2], lw[3])]
        if w == 0:
            fill.append(lambda lw=lw: e.valu("v_add_f32", lt, lw[0], lw[2]))
        else:
            fill.append(lambda lw=lw: e.valu("v_add_f32", lw[0], lw[0], lw[2]))
            fill.append(lambda lw=lw: e.valu("v_add_f32", lt, lt, lw[0]))
        if w < 3:
            fill = batch(w + 1) + fill
            for kk in range(6):
                for t3 in range(3):
                    e.mfma(MF32, D[t3], WVO[kk][t3], B[kk], D[t3] if kk or w else 0)
                    if fill:
                        fill.pop(0)()
            assert not fill
            arrived(w + 1)
            if opt.get("fine"):
                st.cyc((6, 7, 10)[w])
            elif w == 2:
                st.mark(10)
        else:
            fill += meta()
            for kk in range(6):
                for t3 in range(2):
                    e.mfma(MF32, D[t3], WVO[kk][t3], B[kk], D[t3])
                    if fill:
                        fill.pop(0)()
            while fill:
                fill.pop(0)()
            fill = list(fin0)
            for kk in range(6):
                e.mfma(MF32, D[2], WVO[kk][2], B[kk], D[2])
                if kk == 2:
                    e.nop(3)
                if kk >= 2:
                    for _ in range(2):
                        if fill:
                            fill.pop(0)()
            if opt.get("fine"):
                st.cyc(1)
            for f_ in fill + fin1:
                f_()
    e.label("L_aend", fence=False)
    lds_inc(e, vZ, t1, S_EMP)
    st.mark(4)
    lk.at(5, V(14), V(15))
    if opt.get("fine"):
        st.cyc(11)
    st.dump(sWS, 12, [V(14), V(15)])
    e.salu("s_endpgm")

    e.raw("L_agen:")
    sAlt, sW_, sOff = S(56, 2), S(58), S(59)
    Mx, ref, be, c0, c1, mw = V(9), V(10), V(13), V(14), V(204), V(205)
    vFa, vSa = V(2), V(3)
    B = Bf[0]
    lw = l4[0]
    for w in range(4):
        lds_spin(e, vZ, S_FR + 4 * w, t1, sT, 1)
        e.valu("v_add_u32", vSa, RING0 + WST + w * WAVE_RING, vS)
        e.ds_read("ds_read_b32", mw, vSa, 512)
        e.waitcnt(lgkm=0)
        if w == 0:
            e.valu("v_mov_b32", Mx, mw)
        else:
            e.valu("v_max_f32", Mx, Mx, mw)
    e.valu("v_cmp_nlt_f32_e64", sAlt, "|%s|" % Mx, sHi)
    e.valu("v_cndmask_b32", ref, 0, Mx, sAlt)
    e.valu("v_mov_b32", lt, 0)
    for t3 in range(3):
        for r in range(4):
            e.valu("v_mov_b32", D[t3][r], 0)
    e.salu("s_mov_b32", sW_, 0)
    e.label("L_agen_w")
    e.salu("s_mul_i32", sOff, sW_, WAVE_RING)
    e.salu("s_add_u32", sOff, sOff, RING0)
    e.valu("v_add_u32", vFa, sOff, vLn16)
    e.valu("v_add_u32", vSa, sOff, vS)
    for kk in range(6):
        e.ds_read("ds_read_b128", B[kk], vFa, FRAG + 1024 * kk)
    e.ds_read("ds_read_b32", mw, vSa, WST + 512)
    e.ds_read("ds_read_b128", lw, vSa, WST)
    e.waitcnt(lgkm=0)
    for kk in range(6):
        for t3 in range(3):
            e.mfma(MF32, Dw2[t3], WVO[kk][t3], B[kk], Dw2[t3] if kk else 0)
    e.valu("v_sub_f32", c0, mw, ref)
    e.valu("v_exp_f32", be, c0)
    e.valu("v_add_f32", lw[0], lw[0], lw[1])
    e.valu("v_add_f32", lw[2], lw[2], lw[3])
    e.valu("v_add_f32", lw[0], lw[0], lw[2])
    e.valu("v_fmac_f32", lt, be, lw[0], rmw=True)
    for t3 in range(3):
        for r in range(4):
            e.valu("v_fmac_f32", D[t3][r], be, Dw2[t3][r], rmw=True)
    e.salu("s_add_u32", sW_, sW_, 1)
    e.salu("s_cmp_lt_u32", sW_, 4)
    e.fence()
    e.salu("s_cbranch_scc1", "L_agen_w")
    e.valu("v_cndmask_b32", c0, 0, 1, sAlt)
    e.valu("v_or_b32", vTg, vTg, c0)
    e.ds_read("ds_read_b64", lw[2:4], vZ, TAGS)
    e.valu("v_mov_b32", lw[0], ref)
    e.valu("v_lshrrev_b32", c0, 1, vS)
    e.salu("s_lshl_b32", sT2, S(2), 7)
    e.salu("s_add_u32", sT2, sT2, WS_E)
    e.waitcnt(lgkm=0)
    e.valu("v_lshl_or_b32", lw[1], lw[3], 16, lw[2])
    e.salu("s_mov_b64", EXEC, 0xFFFF)
    e.buf_store("buffer_store_dwordx2", lw[0:2], c0, sWS, sT2, flags="sc1")
    e.salu("s_mov_b64", EXEC, -1)
    for f_ in meta() + fin0 + fin1:
        f_()
    e.fence()
    e.salu("s_branch", "L_aend")
    e.raw("L_exit:")
    e.salu("s_endpgm")
    return e


def build(stamps=False, opt=None):
    m = gen_main(stamps, opt)
    return header(0) + m.text() + "L_code_end:\n" + kd(MAIN, 256, 96)


if __name__ == "__main__":
    import argparse
    ap = argparse.ArgumentParser()
    ap.add_argument("-o", default=os.path.join(os.path.dirname(os.path.abspath(__file__)), "..", NAME + ".s"))
    ap.add_argument("--stamps", action="store_true")
    ap.add_argument("--opt", default="")
    a = ap.parse_args()
    opt = {}
    for kv in a.opt.split(","):
        if kv:
            k, _, v = kv.partition("=")
            opt[k] = int(v) if v else 1
    open(a.o, "w").write(build(a.stamps, opt))
```

```python
import sys
import os
sys.path.insert(0, os.path.dirname(os.path.abspath(__file__)))
from emit import Em, R, V, S, Neg, VCC, EXEC, M0

NAME = "standalone__detection_seg_dino__vision"
MAIN = NAME + "_kernel"

TILE = 6144
NSLOT = 6
WAVE_RING = NSLOT * TILE
QK = 0
SYNC = 6912
TAGS = SYNC + 128
STAGE = 7168
RING0 = 13312
LDS_BYTES = RING0 + 4 * WAVE_RING
STEPST = 6144
QL = QK
FRAG = 0
WST = 2 * TILE
CEX = RING0 + 4 * TILE


def wslot(t):
    return 6 * (t // 4) + 2 + t % 4


(S_LANDED, S_CONS, S_QKRDY, S_AUX, S_ISS, S_WL, S_EMPT, S_EMP, S_ZERO, S_FRC, S_WVL, S_FR) = [
    SYNC + 4 * k for k in (0, 4, 8, 9, 10, 11, 12, 13, 14, 15, 16, 20)]
ONES = SYNC + 144
THR = 32.0

WS_P = 0
PSZ = 8192
NCB = 128
WS_E = 0x400000
WS_QK = 0x500000
WS_WVO = 0x540000
WS_STAMP = 0x800000
DBG_WVO = 80
WS_PRG = 0x580000

NWG = 256
NITER = 4
NQP = 3
NPR = 6
WOB = RING0 + 20 * TILE

QSCALE = (192 ** -0.5) * 1.4426950408889634
MF32, MF16, MFF = "v_mfma_f32_16x16x32_bf16", "v_mfma_f32_16x16x16_bf16", "v_mfma_f32_16x16x4_f32"
NEG1 = "neg_lo:[1,0,0] neg_hi:[1,0,0]"


def header(extra_lds=0):
    launch = f"; @launch grid=({NWG},1,1) block=(512,1,1) lds={LDS_BYTES + extra_lds}"
    return f"""; Kernarg layout for this problem (80 bytes, ptrs only, base s[0:1]):
{launch}
.amdgcn_target "amdgcn-amd-amdhsa--gfx950"
.text
"""


def kd(name, vgpr, sgpr):
    return f""".section .rodata,"a"
.p2align 6
.amdhsa_kernel {name}
  .amdhsa_next_free_vgpr {vgpr}
  .amdhsa_next_free_sgpr {sgpr}
  .amdhsa_accum_offset {(vgpr + 3) // 4 * 4}
  .amdhsa_group_segment_fixed_size 0
  .amdhsa_kernarg_size 80
  .amdhsa_user_sgpr_count 2
  .amdhsa_user_sgpr_kernarg_segment_ptr 1
  .amdhsa_system_sgpr_workgroup_id_x 1
  .amdhsa_float_denorm_mode_32 3
.end_amdhsa_kernel
"""


def srd(e, q, ptr, nbytes):
    e.salu("s_mov_b32", q[0], ptr[0])
    e.salu("s_mov_b32", q[1], ptr[1])
    e.salu("s_mov_b32", q[2], nbytes)
    e.salu("s_mov_b32", q[3], 0x20000)


def xg_reduce(e, op, x, t0, t1):
    for sw in ("v_permlane32_swap_b32", "v_permlane16_swap_b32"):
        e.valu("v_mov_b32", t0, x)
        e.valu("v_mov_b32", t1, x)
        e.valu(sw, t0, t1)
        e.valu(op, x, t0, t1)


def bf16_round(e, x):
    e.valu("v_cvt_pk_bf16_f32", x, x, x)
    e.valu("v_and_b32", x, 0xFFFF0000, x)


def tile_lane_offsets(e, lane, vDc, vDf, t0, t1):
    for i in range(3):
        e.valu("v_add_u32", t0, 64 * i, lane)
        e.valu("v_mul_u32_u24", t0, 0xAAB, t0)
        e.valu("v_lshrrev_b32", t0, 16, t0)
        e.valu("v_and_b32", t1, 6, t0)
        e.valu("v_xor_b32", t1, t1, lane)
        e.valu("v_lshlrev_b32", vDc[i], 4, t1)
        if vDf is not None:
            e.valu("v_mul_u32_u24", t0, 384, t0)
            e.valu("v_add_u32", vDf[i], t0, vDc[i])


def afrag_addrs(e, j, g, base, out, t0, t1):
    e.valu("v_and_b32", t0, 6, j)
    e.valu("v_xor_b32", t0, t0, g)
    e.valu("v_mul_u32_u24", t1, 384, j)
    if base is not None:
        e.valu("v_add_u32", t1, base, t1)
    e.valu("v_lshl_add_u32", out[0], t0, 4, t1)
    e.valu("v_xor_b32", t0, 4, t0)
    e.valu("v_lshl_add_u32", out[1], t0, 4, t1)


class Stamps:
    def __init__(self, e, on):
        self.e, self.on = e, on

    def mark(self, k):
        if self.on:
            self.e.smem(f"s_memrealtime s[{64 + 2 * k}:{65 + 2 * k}]", S(64 + 2 * k, 2))

    def cyc(self, k):
        if self.on:
            self.e.smem(f"s_memtime s[{64 + 2 * k}:{65 + 2 * k}]", S(64 + 2 * k, 2))

    def dump(self, sWS, nst, vt):
        if not self.on:
            return
        e = self.e
        e.waitcnt(lgkm=0)
        e.salu("s_lshl_b32", S(62), S(2), 3)
        e.salu("s_add_u32", S(62), S(62), S(3))
        e.salu("s_lshl_b32", S(62), S(62), 6)
        e.salu("s_add_u32", S(62), S(62), WS_STAMP)
        for k in range(nst):
            e.raw(f"    v_writelane_b32 {vt[0]}, s{64 + 2 * k}, {k}")
        e.valu("v_lshlrev_b32", vt[1], 2, V(0))
        e.salu("s_mov_b64", EXEC, 0xFFFF)
        e.buf_store("buffer_store_dword", vt[0], vt[1], sWS, S(62))
        e.salu("s_mov_b64", EXEC, -1)


class Leak:
    def __init__(self, e, which):
        self.e, self.which = e, which

    def start(self):
        if self.which:
            self.e.smem("s_memrealtime s[92:93]", S(92, 2))

    def at(self, k, vt0, vt1):
        if self.which == k:
            e = self.e
            e.smem("s_memrealtime s[90:91]", S(90, 2))
            e.waitcnt(lgkm=0)
            e.valu("v_mov_b32", vt0, S(90))
            e.valu("v_mov_b32", vt1, 0)
            e.ds_write("ds_write_b32", vt1, vt0, STEPST)
            e.waitcnt(lgkm=0)

    def spend(self, vt0, vt1):
        if not self.which:
            return
        e = self.e
        e.salu("s_cmp_lg_u32", S(2), 201)
        e.salu("s_cbranch_scc1", "L_leak_end")
        e.valu("v_mov_b32", vt1, 0)
        e.ds_read("ds_read_b32", vt0, vt1, STEPST)
        e.smem("s_memrealtime s[88:89]", S(88, 2))
        e.waitcnt(lgkm=0)
        e.valu("v_readfirstlane_b32", S(90), vt0)
        e.nop(3)
        e.salu("s_sub_u32", S(90), S(90), S(92))
        e.salu("s_lshl_b32", S(90), S(90), 3)
        e.salu("s_min_u32", S(90), S(90), 40000)
        e.label("L_leak")
        e.smem("s_memrealtime s[86:87]", S(86, 2))
        e.waitcnt(lgkm=0)
        e.salu("s_sub_u32", S(91), S(86), S(88))
        e.salu("s_cmp_lt_u32", S(91), S(90))
        e.salu("s_cbranch_scc1", "L_leak")
        e.raw("L_leak_end:")


class LQ:
    def __init__(self, e):
        self.e, self.q = e, []

    def add(self, tag=None):
        self.q.append(tag)

    def wait(self, tag):
        idx = max(i for i, t in enumerate(self.q) if t == tag)
        n = len(self.q) - 1 - idx
        self.e.waitcnt(lgkm=min(n, 15))
        self.q = self.q[idx + 1:]

    def drain(self):
        self.e.waitcnt(lgkm=0)
        self.q = []


LBL = [0]


def newlabel(p):
    LBL[0] += 1
    return f"L_{p}{LBL[0]}"


def lds_spin(e, vaddr, off, vt, sdst, need, sleep=1):
    top, done = newlabel("spin"), newlabel("spun")
    e.label(top)
    e.ds_read("ds_read_b32", vt, vaddr, off)
    e.waitcnt(lgkm=0)
    e.valu("v_readfirstlane_b32", sdst, vt)
    e.nop(1)
    e.salu("s_cmp_ge_u32", sdst, need)
    if sleep:
        e.salu("s_cbranch_scc1", done)
        e.salu("s_sleep", sleep)
        e.salu("s_branch", top)
        e.raw(f"{done}:")
    else:
        e.salu("s_cbranch_scc0", top)


def lds_inc(e, vz, vt, off):
    e.valu("v_mov_b32", vt, 1)
    e.salu("s_mov_b64", EXEC, 1)
    e.mem(f"ds_add_u32 {vz}, {vt} offset:{off}", reads=[vz, vt])
    e.salu("s_mov_b64", EXEC, -1)


def gen_main(stamps=False, opt=None):
    opt = opt or {}
    e = Em()
    st = Stamps(e, stamps)
    lk = Leak(e, opt.get("leak", 0))
    e.raw(f".globl {MAIN}")
    e.raw(".p2align 8")
    e.raw(f".type {MAIN},@function")
    e.raw(f"{MAIN}:")
    sWave = S(3)
    lane = V(0)
    e.salu("s_cmp_ge_u32", S(2), NWG)
    e.salu("s_cbranch_scc1", "L_exit")
    st.mark(0)
    lk.start()
    e.smem("s_load_dwordx16 s[4:19], s[0:1], 0", S(4, 16))
    e.smem("s_load_dwordx4 s[20:23], s[0:1], 64", S(20, 4))
    pQ, pF0, pF1, pWq, pWk, pWv, pWo = [S(4 + 2 * k, 2) for k in range(7)]
    pDbg, pWS = S(20, 2), S(22, 2)
    e.valu("v_lshrrev_b32", V(1), 6, V(0))
    e.valu("v_and_b32", V(0), 63, V(0))
    if opt.get("epf", 0):
        e.salu("s_getpc_b64", S(60, 2))
    e.valu("v_readfirstlane_b32", sWave, V(1))
    e.nop(3)
    if opt.get("rot", 0):
        e.salu("s_xor_b32", sWave, sWave, 4)
    if opt.get("epf", 0):
        e.salu("s_cmp_eq_u32", sWave, 4)
        e.salu("s_cbranch_scc1", "L_loader")
        e.salu("s_cmp_gt_u32", sWave, 4)
        e.salu("s_cbranch_scc1", "L_aux0")
        e.salu("s_lshl_b32", S(62), sWave, 7)
        e.salu("s_add_u32", S(60), S(60), S(62))
        e.salu("s_addc_u32", S(61), S(61), 0)
        for k in range(opt["epf"]):
            e.smem(f"s_load_dword s63, s[60:61], {128 + 512 * k}", S(63))
        e.salu("s_branch", "L_compute")
        e.raw("L_loader:")
    else:
        e.salu("s_cmp_lt_u32", sWave, 4)
        e.salu("s_cbranch_scc1", "L_compute")
        e.salu("s_cmp_gt_u32", sWave, 4)
        e.salu("s_cbranch_scc1", "L_aux0")

    vDc = [V(1), V(2), V(3)]
    vDf = [V(4), V(5), V(6)]
    vD = [V(7), V(8), V(9)]
    vZ, vt, vt2 = V(10), V(11), V(12)
    vLane4 = V(13)
    sSrc = S(24, 4)
    sWS = S(32, 4)
    sStep, sK, sH, sO1, sO0, sBase, sWst, sHalf, sLk = [S(36 + k) for k in range(9)]
    sT, sT2, sVal, sNeed = S(45), S(46), S(47), S(48)
    sCons = [S(50 + k) for k in range(4)]
    sRet = S(54, 2)
    sW = S(56)
    sSlot = S(57)
    FAST = opt.get("fast", 1)
    e.salu("s_setprio", 3)
    for i in range(3):
        e.valu("v_add_u32", vDf[i], 64 * i, lane)
        e.valu("v_mul_u32_u24", vDf[i], 0xAAB, vDf[i])
        e.valu("v_lshrrev_b32", vDf[i], 16, vDf[i])
        e.valu("v_and_b32", vt, 6, vDf[i])
        e.valu("v_xor_b32", vt, vt, lane)
        e.valu("v_lshlrev_b32", vDc[i], 4, vt)
    e.salu("s_and_b32", sH, S(2), 7)
    e.salu("s_lshl_b32", sH, sH, 5)
    e.salu("s_lshr_b32", sT, S(2), 3)
    e.salu("s_or_b32", sH, sH, sT)
    e.salu("s_lshl_b32", sH, sH, 2)
    e.salu("s_mov_b32", sSrc[3], 0x20000)
    e.salu("s_mov_b32", sSrc[2], 25165824)
    e.salu("s_mul_i32", sO1, sH, 6144)
    e.salu("s_mov_b32", sLk, RING0)
    e.salu("s_cmp_lt_u32", S(2), NPR)
    e.salu("s_cbranch_scc1", "L_ld_prod")
    e.waitcnt(lgkm=0)
    st.mark(1)
    e.salu("s_mov_b32", sSrc[0], pF1[0])
    e.salu("s_mov_b32", sSrc[1], pF1[1])
    e.raw("L_ld_first:")
    for h in range(2):
        e.salu("s_mov_b32" if h == 0 else "s_add_u32", M0, *([sLk] if h == 0 else [sLk, 3072]))
        e.salu("s_add_u32", sLk if h else sT2, sLk if h else sO1, WAVE_RING if h else 3072)
        for i in range(3):
            e.buf_load_lds(vDc[i], sSrc, sT2 if h else sO1, offset=1024 * i, flags="nt")
    e.salu("s_add_u32", sO1, sO1, 6144)
    e.salu("s_cmp_lt_u32", sLk, RING0 + 4 * WAVE_RING)
    e.salu("s_cbranch_scc1", "L_ld_first")
    st.mark(5)
    e.salu("s_branch", "L_ld_norm")

    e.raw("L_aux0:")
    aC, aW1, aW2 = S(24, 4), S(28, 4), S(40, 4)
    e.salu("s_getpc_b64", aC[0:2])
    e.raw("L_aux_pc:")
    e.raw(f"    s_sub_u32 {aC[0]}, {aC[0]}, L_aux_pc-{MAIN}")
    e.raw(f"    s_subb_u32 {aC[1]}, {aC[1]}, 0")
    e.raw(f"    s_mov_b32 {aC[2]}, L_code_end-{MAIN}")
    e.salu("s_mov_b32", aC[3], 0x20000)
    e.salu("s_lshr_b32", S(39), S(2), 3)
    e.salu("s_mul_i32", S(38), S(39), 3)
    e.salu("s_add_u32", S(38), S(38), sWave)
    e.salu("s_mul_i32", S(38), S(38), 320)
    e.salu("s_sub_u32", S(38), S(38), 5 * 320)
    e.valu("v_lshlrev_b32", V(14), 6, lane)
    e.salu("s_mov_b64", EXEC, 0x1F)
    e.buf_load("buffer_load_dword", V(253), V(14), aC, S(38))
    e.salu("s_mov_b64", EXEC, -1)
    e.salu("s_and_b32", S(38), S(2), 7)
    e.salu("s_mul_i32", S(37), sWave, 3)
    e.salu("s_add_u32", S(38), S(38), 18)
    e.salu("s_sub_u32", S(38), S(38), S(37))
    e.salu("s_cmp_ge_u32", S(38), 3)
    e.salu("s_cbranch_scc1", "L_aux")
    e.salu("s_mul_i32", S(37), S(39), 2304)
    e.valu("v_mul_u32_u24", V(13), 36, lane)
    e.salu("s_mov_b32", aW1[2], 73728)
    e.salu("s_mov_b32", aW2[2], 73728)
    e.salu("s_mov_b32", aW1[3], aC[3])
    e.salu("s_mov_b32", aW2[3], aC[3])
    e.salu("s_cmp_eq_u32", sWave, 6)
    e.waitcnt(lgkm=0)
    e.salu("s_cselect_b64", aW1[0:2], pWq, pWo)
    e.salu("s_cselect_b64", aW2[0:2], pWk, pWv)
    e.buf_load("buffer_load_dword", V(254), V(13), aW1, S(37))
    e.buf_load("buffer_load_dword", V(255), V(13), aW2, S(37))
    e.salu("s_branch", "L_aux")

    def publish(off, val):
        e.valu("v_mov_b32", vt, val)
        e.salu("s_mov_b64", EXEC, 1)
        e.mem(f"ds_max_u32 {vZ}, {vt} offset:{off}", reads=[vZ, vt])
        e.salu("s_mov_b64", EXEC, -1)

    ADAPT = opt.get("adapt", 0)
    sPrg, sXo, sTb, vTk, vSlot, vOwn = S(28, 4), S(58), S(59), [V(14), V(15)], V(16), V(17)

    def init(first):
        for i in range(3):
            e.valu("v_mul_u32_u24", vDf[i], 384, vDf[i])
            e.valu("v_add_u32", vDf[i], vDf[i], vDc[i])
        e.valu("v_mov_b32", vZ, 0)
        e.valu("v_lshlrev_b32", vLane4, 2, lane)
        e.salu("s_mov_b64", EXEC, 0xFFFFFFFF)
        e.ds_write("ds_write_b32", vLane4, vZ, SYNC)
        e.valu("v_mov_b32", vt, 0x3F803F80)
        e.salu("s_mov_b64", EXEC, 3)
        e.ds_write("ds_write_b32", vLane4, vt, ONES)
        e.salu("s_mov_b64", EXEC, -1)
        for k in range(4):
            e.salu("s_mov_b32", sCons[k], 0)
        if stamps:
            e.salu("s_mov_b32", S(76), 0)
            e.salu("s_mov_b32", S(78), 0)
        for r_ in (sStep, sK, sSlot):
            e.salu("s_mov_b32", r_, first)
        if first:
            e.salu("s_lshr_b32", sT, sH, 4)
            e.salu("s_mul_i32", sO0, sT, 393216)
            e.salu("s_and_b32", sT, sH, 15)
            e.salu("s_mul_i32", sT, sT, 12288)
            e.salu("s_add_u32", sO0, sO0, sT)
            e.salu("s_add_u32", sH, sH, 1024)
        if ADAPT:
            srd(e, sPrg, pWS, 0x1000000)
            e.salu("s_getreg_b32", sXo, "hwreg(HW_REG_XCC_ID)")
            e.salu("s_and_b32", sXo, sXo, 7)
            e.salu("s_lshl_b32", sXo, sXo, 7)
            e.salu("s_add_u32", sXo, sXo, WS_PRG)
            e.salu("s_lshr_b32", sT, S(2), 3)
            e.salu("s_lshl_b32", sT, sT, 2)
            e.valu("v_mov_b32", vSlot, sT)
            e.salu("s_mov_b32", sTb, 0)
        e.waitcnt(lgkm=0)
        e.barrier()

    sCnt = sNeed
    e.raw("L_ld_prod:")
    e.salu("s_mov_b32", sO1, 0)
    e.salu("s_cmp_lt_u32", S(2), NQP)
    e.salu("s_cbranch_scc0", "L_ld_wo0")
    e.salu("s_mov_b32", sSrc[2], 6144)
    e.salu("s_mov_b32", sLk, STAGE)
    e.salu("s_mov_b32", sCnt, 1)
    e.waitcnt(lgkm=0)
    st.mark(4)
    e.salu("s_mov_b64", sSrc[0:2], pQ)
    e.salu("s_call_b64", sRet, "L_ld_tiles")
    e.salu("s_branch", "L_ld_wq")
    e.raw("L_ld_tiles:")
    for h in range(2):
        e.salu("s_mov_b32" if h == 0 else "s_add_u32", M0, *([sLk] if h == 0 else [sLk, 3072]))
        e.salu("s_add_u32", sLk if h else sT2, sLk if h else sO1, TILE if h else 3072)
        for i in range(3):
            e.buf_load_lds(vDc[i], sSrc, sT2 if h else sO1, offset=1024 * i)
    e.salu("s_add_u32", sO1, sO1, TILE)
    e.salu("s_sub_u32", sCnt, sCnt, 1)
    e.salu("s_and_b32", sT, sCnt, 3)
    e.salu("s_cselect_b32", sT, 0, 2 * TILE)
    e.salu("s_add_u32", sLk, sLk, sT)
    e.salu("s_cmp_lg_u32", sCnt, 0)
    e.salu("s_cbranch_scc1", "L_ld_tiles")
    e.salu("s_setpc_b64", sRet)
    e.raw("L_ld_wq:")
    if opt.get("pdbg"):
        st.mark(6)
    e.salu("s_mov_b64", sSrc[0:2], pWq)
    e.salu("s_mov_b32", sSrc[2], 73728)
    e.raw("L_ld_w12:")
    e.salu("s_mov_b32", sO1, 0)
    e.salu("s_mov_b32", sLk, RING0 + wslot(0) * TILE)
    e.salu("s_mov_b32", sCnt, 4)
    e.salu("s_call_b64", sRet, "L_ld_tiles")
    if opt.get("pdbg"):
        st.mark(7)
    init(0)
    if opt.get("pdbg"):
        st.mark(9)
    e.waitcnt(vm=24)
    publish(S_WL, 1)
    st.mark(5)
    e.salu("s_mov_b32", sCnt, 8)
    e.salu("s_call_b64", sRet, "L_ld_tiles")
    if opt.get("pdbg"):
        st.mark(11)
    e.salu("s_cmp_ge_u32", S(2), NQP)
    e.salu("s_cbranch_scc1", "L_ld_w3")
    e.salu("s_mov_b64", sSrc[0:2], pWk)
    e.salu("s_mul_i32", sO1, S(2), 4 * TILE)
    e.salu("s_mov_b32", sCnt, 4)
    e.salu("s_call_b64", sRet, "L_ld_tiles")
    e.raw("L_ld_w3:")
    e.waitcnt(vm=24)
    publish(S_WL, 2)
    st.mark(1)
    e.salu("s_branch", "L_ld_stepp")
    e.raw("L_ld_wo0:")
    e.salu("s_mov_b32", sSrc[2], 73728)
    e.valu("v_lshrrev_b32", vt, 3, lane)
    e.valu("v_mul_u32_u24", vt, 384, vt)
    e.valu("v_and_b32", vt2, 7, lane)
    e.valu("v_lshl_add_u32", vt, vt2, 4, vt)
    e.salu("s_sub_u32", sT2, S(2), NQP)
    e.salu("s_lshl_b32", sT2, sT2, 7)
    e.salu("s_mov_b32", sT, WOB)
    e.waitcnt(lgkm=0)
    st.mark(4)
    e.salu("s_mov_b64", sSrc[0:2], pWo)
    e.label("L_ld_wo")
    e.salu("s_mov_b32", M0, sT)
    e.salu("s_add_u32", sT, sT, 1024)
    e.buf_load_lds(vt, sSrc, sT2)
    e.salu("s_add_u32", sT2, sT2, 3072)
    e.salu("s_cmp_lt_u32", sT, WOB + 24576)
    e.salu("s_cbranch_scc1", "L_ld_wo")
    e.salu("s_mov_b64", sSrc[0:2], pWv)
    e.salu("s_branch", "L_ld_w12")
    e.raw("L_ld_norm:")
    init(1)
    lk.at(1, vt, vt2)

    PD = opt.get("pd", 6)
    FLG = {0: "", 1: "sc1", 2: "sc0 sc1", 3: "sc1 nt", 4: "sc0 sc1 nt", 5: "nt"}
    LFL, PFL, SFL = FLG[opt.get("lfl", 1)], FLG[opt.get("pfl", 1)], FLG[opt.get("sfl", 1)]
    WFL = {0: "", 1: "sc1", 2: "sc0", 3: "nt"}[opt.get("wfl", 1)]
    WVO = [[V(112 + 12 * kk + 4 * t3, 4) for t3 in range(3)] for kk in range(6)]

    def stream(D, tag):
        e.label(f"L_ld_step{tag}")
        e.salu("s_cmp_lg_u32", sK, 0)
        e.salu("s_cbranch_scc1", f"L_ld_fine{tag}")
        e.salu("s_mul_i32", sO1, sH, 6144)
        e.salu("s_lshr_b32", sT, sH, 4)
        e.salu("s_mul_i32", sO0, sT, 393216)
        e.salu("s_and_b32", sT, sH, 15)
        e.salu("s_mul_i32", sT, sT, 12288)
        e.salu("s_add_u32", sO0, sO0, sT)
        e.salu("s_add_u32", sH, sH, 1024)
        e.salu("s_mov_b32", sSrc[0], pF1[0])
        e.salu("s_mov_b32", sSrc[1], pF1[1])
        e.salu("s_mov_b32", sSrc[2], 25165824)
        e.salu("s_mov_b32", sBase, sO1)
        e.salu("s_mov_b32", sWst, 6144)
        e.salu("s_mov_b32", sHalf, 3072)
        for i in range(3):
            e.valu("v_mov_b32", vD[i], vDc[i])
        e.salu("s_branch", f"L_ld_issue{tag}")
        e.raw(f"L_ld_fine{tag}:")
        e.salu("s_mov_b32", sSrc[0], pF0[0])
        e.salu("s_mov_b32", sSrc[1], pF0[1])
        e.salu("s_mov_b32", sSrc[2], 100663296)
        e.salu("s_sub_u32", sT, sK, 1)
        e.salu("s_lshr_b32", sT2, sT, 1)
        e.salu("s_mul_i32", sT2, sT2, 196608)
        e.salu("s_and_b32", sT, sT, 1)
        e.salu("s_mul_i32", sT, sT, 384)
        e.salu("s_add_u32", sBase, sO0, sT2)
        e.salu("s_add_u32", sBase, sBase, sT)
        e.salu("s_mov_b32", sWst, 12288)
        e.salu("s_mov_b32", sHalf, 6144)
        for i in range(3):
            e.valu("v_mov_b32", vD[i], vDf[i])
        e.raw(f"L_ld_issue{tag}:")
        e.salu("s_mul_i32", sLk, sSlot, TILE)
        e.salu("s_add_u32", sLk, sLk, RING0)
        e.salu("s_sub_i32", sNeed, sStep, NSLOT - 1)
        for w in range(4):
            ok = newlabel("free")
            e.salu("s_cmp_ge_i32", sCons[w], sNeed)
            e.salu("s_cbranch_scc1", ok)
            e.begin_cond()
            e.salu("s_mov_b32", sW, w)
            e.salu("s_call_b64", sRet, "L_ld_wait")
            e.salu("s_mov_b32", sCons[w], sT)
            e.end_cond()
            e.raw(f"{ok}:")
            for h in range(2):
                e.salu("s_add_u32", M0, sLk, w * WAVE_RING + 3072 * h)
                if h == 0:
                    e.salu("s_mov_b32", sT2, sBase)
                else:
                    e.salu("s_add_u32", sT2, sBase, sHalf)
                for i in range(3):
                    e.buf_load_lds(vD[i], sSrc, sT2, offset=1024 * i, flags="nt")
                if h == 0 and tag == "" and opt.get("mid"):
                    e.waitcnt(vm=opt["mid"])
            e.salu("s_add_u32", sBase, sBase, sWst)
            e.salu("s_add_i32", sVal, sStep, ((w - D) >> 2) + 1)
            e.salu("s_max_i32", sVal, sVal, 0)
            e.waitcnt(vm=opt.get("vmw", 6 * D) if tag == "" else 6 * D)
            publish(S_LANDED + 4 * ((w - D) & 3), sVal)
            if tag == "p" and w == opt.get("w3at", 1):
                lb_ = newlabel("w3")
                e.salu("s_cmp_lg_u32", sStep, 0)
                e.salu("s_cbranch_scc1", lb_)
                e.waitcnt(vm=6 * (w + 1))
                publish(S_WL, 3)
                e.raw(f"{lb_}:")
        e.salu("s_add_u32", sK, sK, 1)
        e.salu("s_cmp_eq_u32", sK, 5)
        e.salu("s_cselect_b32", sK, 0, sK)
        e.salu("s_add_u32", sSlot, sSlot, 1)
        e.salu("s_cmp_eq_u32", sSlot, NSLOT)
        e.salu("s_cselect_b32", sSlot, 0, sSlot)
        if tag == "p":
            e.salu("s_cmp_lg_u32", sStep, 1)
            e.salu("s_cbranch_scc1", "L_ld_noiss")
            e.begin_cond()
            lds_spin(e, vZ, S_ISS, vt, sT, 4)
            e.end_cond()
            e.raw("L_ld_noiss:")
        if stamps and opt.get("stepst", 0):
            e.smem("s_memrealtime s[90:91]", S(90, 2))
            e.salu("s_lshl_b32", sT, sStep, 2)
            e.salu("s_add_u32", sT, sT, STEPST)
            e.valu("v_mov_b32", vt2, sT)
            e.waitcnt(lgkm=0)
            e.valu("v_mov_b32", vt, S(90))
            e.ds_write("ds_write_b32", vt2, vt, 0)
        e.salu("s_add_u32", sStep, sStep, 1)
        if ADAPT:
            A0 = opt.get("afrom", 9)
            e.salu("s_cmp_ge_u32", sStep, 5 * NITER)
            e.salu("s_cbranch_scc1", f"L_ld_done{tag}")
            e.salu("s_cmp_lt_u32", sStep, A0)
            e.salu("s_cbranch_scc1", f"L_ld_step{tag}")
            e.salu("s_cmp_lg_u32", sStep, A0)
            e.salu("s_cbranch_scc1", f"L_ld_tg{tag}")
            lds_spin(e, vZ, S_QKRDY, vt, sT, 1)
            e.ds_read("ds_read_b32", vt, vZ, TAGS)
            e.waitcnt(lgkm=0)
            e.valu("v_readfirstlane_b32", sTb, vt)
            e.nop(3)
            e.salu("s_lshl_b32", sTb, sTb, 16)
            e.valu("v_mov_b32", vTk[0], -1)
            e.valu("v_mov_b32", vTk[1], -1)
            e.raw(f"L_ld_tg{tag}:")
            e.salu("s_add_u32", sT, sTb, sStep)
            e.salu("s_sub_u32", sT2, sT, 2)
            e.valu("v_mov_b32", vOwn, sT)
            e.salu("s_mov_b64", EXEC, 1)
            e.buf_store("buffer_store_dword", vOwn, vSlot, sPrg, sXo)
            e.salu("s_mov_b32", S(61), 0)
            e.salu("s_mov_b32", S(60), -1)
            e.salu("s_mov_b64", EXEC, S(60, 2))
            e.salu("s_bitcmp1_b32", sStep, 0)
            e.salu("s_cbranch_scc1", f"L_ld_odd{tag}")
            for par in range(2):
                if par:
                    e.raw(f"L_ld_odd{tag}:")
                e.valu("v_subrev_u32", vt, sT2, vTk[par])
                e.buf_load("buffer_load_dword", vTk[par], vLane4, sPrg, sXo, flags="sc1")
                if not par:
                    e.salu("s_branch", f"L_ld_tk{tag}")
            e.raw(f"L_ld_tk{tag}:")
            e.valu("v_cmp_gt_u32", VCC, 32, vt)
            e.salu("s_mov_b64", EXEC, -1)
            e.nop(1)
            e.salu("s_bcnt1_i32_b64", sT, VCC)
            e.salu("s_cmp_gt_u32", sT, ADAPT)
            e.salu("s_cbranch_scc1", "L_ld_stepp")
            e.salu("s_cmp_lt_u32", sStep, A0 + 2)
            e.salu("s_cbranch_scc1", f"L_ld_step{tag}")
            e.salu("s_branch", "L_ld_step")
            e.raw(f"L_ld_done{tag}:")
        else:
            e.salu("s_cmp_lt_u32", sStep, 5 * NITER)
            e.fence()
            e.salu("s_cbranch_scc1", f"L_ld_step{tag}")
        st.mark(2)
        srd(e, sWS, pWS, 0x1000000)
        e.valu("v_lshlrev_b32", vt2, 4, lane)
        lds_spin(e, vZ, S_WVL, vt, sT, 1)
        NL = 0 if opt.get("nolf") else 18
        for t3 in range(3):
            for kk in range(6):
                if NL:
                    e.salu("s_mov_b32", sT2, WS_WVO + ((9 + t3) * 6 + kk) * 1024)
                    e.buf_load("buffer_load_dwordx4", WVO[kk][t3], vt2, sWS, sT2, flags=WFL)
        for i in range(80 - D, 80):
            e.waitcnt(vm=6 * (79 - i) + NL)
            publish(S_LANDED + 4 * (i & 3), (i >> 2) + 1)
        st.mark(3)
        lk.at(3, V(14), V(15))
        if stamps:
            e.salu("s_getreg_b32", S(80), "hwreg(HW_REG_XCC_ID)")
            if opt.get("stepst", 0):
                e.valu("v_add_u32", V(14), STEPST, vLane4)
                e.ds_read("ds_read_b32", vt, V(14), 0)
                e.salu("s_lshl_b32", sT, S(2), 8)
                e.salu("s_add_u32", sT, sT, WS_STAMP + 0x40000)
                e.waitcnt(lgkm=0)
                e.buf_store("buffer_store_dword", vt, vLane4, sWS, sT)
        e.salu("s_setprio", 0)
        e.salu("s_mov_b32", S(36), 3)
        e.valu("v_mov_b32", V(11), 0)
        e.valu("v_and_b32", V(1), 15, lane)
        e.fence()
        e.salu("s_branch", "L_tail")

    stream(opt.get("depth", 4), "")

    stream(PD, "p")

    e.raw("L_ld_wait:")
    e.salu("s_lshl_b32", sT, sW, 2)
    e.valu("v_mov_b32", vt2, sT)
    e.ds_read("ds_read_b32", vt, vt2, S_CONS)
    e.waitcnt(lgkm=0)
    e.valu("v_readfirstlane_b32", sT, vt)
    e.nop(1)
    e.salu("s_cmp_ge_i32", sT, sNeed)
    e.salu("s_cbranch_scc1", "L_ld_wait_ret")
    if stamps:
        e.salu("s_add_u32", S(76), S(76), 1)
        e.salu("s_mov_b32", S(78), sStep)
    lds_spin(e, vt2, S_CONS, vt, sT, sNeed)
    e.raw("L_ld_wait_ret:")
    e.fence()
    e.salu("s_setpc_b64", sRet)

    e.w.clear(); e.cread.clear(); e.stread.clear()
    e.raw("L_compute:")
    vSy = V(1)
    vPc = V(2)
    vPoll = V(3)
    Gx = V(4, 4)
    vA = [V(8), V(9)]
    vT = [V(10 + k) for k in range(4)]
    vL2 = V(14, 2)
    vCs2 = V(16, 2)
    vNm2 = V(18, 2)
    vOne = V(20)
    tC = V(21)
    tA, tB = V(22), V(23)
    vOnes = V(24, 4)
    Qk = [V(28 + 4 * k, 4) for k in range(6)]
    acc = [V(52 + 4 * k, 4) for k in range(12)]
    A1 = [V(100 + 4 * k, 4) for k in range(6)]
    A0 = [V(124 + 4 * k, 4) for k in range(6)]
    T0 = [V(148 + 6 * k, 4) for k in range(12)]
    T1 = [V(152 + 6 * k, 2) for k in range(12)]
    TH = [V(150 + 6 * k, 4) for k in range(12)]
    Sc, Uc = V(220, 4), V(224, 4)
    Sx, Ux, SSx = V(228, 4), V(232, 4), V(236, 4)
    pc = V(240, 4)
    Pf = V(244, 4)
    pp = V(248, 4)
    mu2 = V(252, 2)
    vM = V(254)
    ss1 = V(255)
    X = Gx
    sWS = S(32, 4)
    sLds = S(36)
    sT, sT2 = S(40), S(42)
    sIt = S(41)
    sInv2, sEps2 = S(44, 2), S(46, 2)
    sInv, sEps = sInv2[0], sEps2[0]
    sRet = S(48, 2)
    sThr = S(50)
    sPc, sLand = S(51), S(52)
    sSl, sDl, sTile = S(54), S(55), S(56)
    sM1, sM2, sMd = S(58, 2), S(60, 2), S(38, 2)
    tmp = [V(228 + k) for k in range(12)]
    lq = LQ(e)
    EARLY = opt.get("early", 2)
    GRAM = opt.get("gram", 2)
    sEa = S(57)

    e.salu("s_mul_i32", sLds, sWave, WAVE_RING)
    e.salu("s_add_u32", sLds, sLds, RING0)
    if opt.get("cprio", 1):
        e.salu("s_setprio", opt.get("cprio", 1))
    e.barrier()
    j, g = tmp[0], tmp[1]
    e.valu("v_and_b32", j, 15, lane)
    e.valu("v_lshrrev_b32", g, 4, lane)
    afrag_addrs(e, j, g, sLds, vA, tmp[2], tmp[3])
    rp, c4, p_ = tmp[2], tmp[3], tmp[4]
    e.valu("v_lshrrev_b32", rp, 2, j)
    e.valu("v_and_b32", c4, 3, j)
    e.valu("v_lshl_add_u32", p_, g, 2, rp)
    e.valu("v_mul_u32_u24", tmp[5], 384, p_)
    e.valu("v_lshl_add_u32", tmp[5], c4, 3, tmp[5])
    e.valu("v_add_u32", tmp[5], sLds, tmp[5])
    e.valu("v_and_b32", tmp[6], 6, p_)
    for q in range(4):
        e.valu("v_xor_b32", tmp[7], 2 * q, tmp[6])
        e.valu("v_lshl_add_u32", vT[q], tmp[7], 4, tmp[5])
    vQa = [Pf[0], Pf[1]]
    e.valu("v_subrev_u32", vQa[0], sLds, vA[0])
    e.valu("v_subrev_u32", vQa[1], sLds, vA[1])
    for k in range(4):
        e.valu("v_mov_b32", vOnes[k], 0x3F803F80)
        e.valu("v_mov_b32", pc[k], 0)
        e.valu("v_mov_b32", pp[k], 0)
    e.valu("v_mov_b32", vOne, 1.0)
    for k in range(2):
        e.salu("s_mov_b32", sInv2[k], 1.0 / 192.0)
        e.salu("s_mov_b32", sEps2[k], 1.0e-5)
        e.salu("s_mov_b32", sM1[k], 0xAAAAAAAA)
        e.salu("s_mov_b32", sM2[k], 0xCCCCCCCC)
    e.salu("s_mov_b32", sMd[0], 0x00F0000F)
    e.salu("s_mov_b32", sMd[1], 0xF0000F00)
    e.salu("s_mov_b32", sThr, THR)
    e.salu("s_mov_b32", sIt, 0)
    e.salu("s_mov_b32", sPc, 0)
    e.salu("s_mov_b32", sLand, 0)
    e.salu("s_mov_b32", sSl, 0)
    e.salu("s_mov_b32", sTile, TILE)
    e.salu("s_lshl_b32", sT, sWave, 2)
    e.valu("v_mov_b32", vSy, sT)
    e.waitcnt(lgkm=0)
    srd(e, sWS, pWS, 0x1000000)
    e.salu("s_cmp_lt_u32", S(2), NQP)
    e.salu("s_cbranch_scc1", "L_qkprod")
    e.salu("s_cmp_lt_u32", S(2), NPR)
    e.salu("s_cbranch_scc1", "L_wvprod")
    e.label("L_c_start")

    def wait_piece(sleep=1):
        e.salu("s_add_u32", sPc, sPc, 1)
        have = newlabel("have")
        e.salu("s_cmp_ge_u32", sLand, sPc)
        e.salu("s_cbranch_scc1", have)
        e.begin_cond()
        lds_spin(e, vSy, S_LANDED, vPoll, sLand, sPc, sleep=sleep)
        e.end_cond()
        e.raw(f"{have}:")

    def rot_ops():
        def sc():
            e.salu("s_add_u32", sSl, sSl, 1)
            e.salu("s_cmp_eq_u32", sSl, NSLOT)
            e.salu("s_cselect_b32", sDl, -(NSLOT - 1) * TILE, sTile)
            e.salu("s_cselect_b32", sSl, 0, sSl)
        return (sc, [lambda a_=a_: e.valu("v_add_u32", a_, sDl, a_) for a_ in vA] + [lambda: e.valu("v_mov_b32", vPc, sPc)],
                [lambda a_=a_: e.valu("v_add_u32", a_, sDl, a_) for a_ in vT])

    def poll_ahead():
        if EARLY:
            e.ds_read("ds_read_b32", vPoll, vSy, S_LANDED)
            lq.add("p")

    def release(done=False):
        if not done:
            poll_ahead()
            sc, fa, ft = rot_ops()
            sc()
            for f_ in fa + ft:
                f_()
        lq.drain()
        e.ds_write("ds_write_b32", vSy, vPc, S_CONS)
        lq.add()

    def early(AF, again=False):
        if not EARLY:
            return
        lb_ = newlabel("early")
        e.valu("v_readfirstlane_b32", sLand, vPoll)
        e.salu("s_mov_b32", sEa, 0)
        e.nop(1)
        e.salu("s_cmp_gt_u32", sLand, sPc)
        e.salu("s_cbranch_scc0", lb_)
        e.begin_cond()
        e.salu("s_mov_b32", sEa, 1)
        a_reads(AF)
        e.end_cond()
        e.raw(f"{lb_}:")
        lq.q = []
        if again:
            e.ds_read("ds_read_b32", vPoll, vSy, S_LANDED)

    def early2(AF):
        lb_ = newlabel("early")
        e.waitcnt(lgkm=0)
        e.valu("v_readfirstlane_b32", sLand, vPoll)
        e.salu("s_cmp_lg_u32", sEa, 0)
        e.salu("s_cbranch_scc1", lb_)
        e.salu("s_cmp_gt_u32", sLand, sPc)
        e.salu("s_cbranch_scc0", lb_)
        e.begin_cond()
        e.salu("s_mov_b32", sEa, 1)
        a_reads(AF)
        e.end_cond()
        e.raw(f"{lb_}:")
        lq.q = []

    def begin_piece(AF, sleep=1):
        if not EARLY:
            wait_piece(sleep)
            a_reads(AF)
            return
        lb_ = newlabel("begun")
        e.salu("s_add_u32", sPc, sPc, 1)
        e.salu("s_cmp_lg_u32", sEa, 0)
        e.salu("s_cbranch_scc1", lb_)
        e.begin_cond()
        lds_spin(e, vSy, S_LANDED, vPoll, sLand, sPc, sleep=sleep)
        a_reads(AF)
        e.end_cond()
        e.raw(f"{lb_}:")

    def a_reads(AF):
        for kk in range(6):
            e.ds_read("ds_read_b128", AF[kk], vA[kk & 1], (kk >> 1) * 128)
            lq.add(("a", kk))

    def tr_read(dst, cb):
        e.ds_read("ds_read_b64_tr_b16", dst, vT[cb & 3], (cb >> 2) * 128)
        lq.add(("t", cb))

    def ones_read(dst):
        e.ds_read("ds_read_b64", dst, tC, ONES)
        lq.add()

    def diag(G, out):
        e.valu("v_cndmask_b32", tA, G[0], G[1], sM1)
        e.valu("v_cndmask_b32", tB, G[2], G[3], sM1)
        e.valu("v_cndmask_b32", out, tA, tB, sM2)

    def sumsq_ops(SS):
        return [lambda: e.valu("v_cndmask_b32", tA, SS[0], SS[1], sM1),
                lambda: e.valu("v_cndmask_b32", tB, SS[2], SS[3], sM1),
                lambda: e.valu("v_cndmask_b32", Gx[0], Gx[0], Gx[1], sM1),
                lambda: e.valu("v_cndmask_b32", Gx[2], Gx[2], Gx[3], sM1),
                lambda: e.valu("v_cndmask_b32", tA, tA, tB, sM2),
                lambda: e.valu("v_cndmask_b32", Gx[0], Gx[0], Gx[2], sM2),
                ] + ([lambda: e.valu("v_add_f32", tA, tA, ss1),
                      lambda: e.valu("v_fma_f32", tA, Gx[0], 2.0, tA),
                      lambda: e.valu("v_cndmask_b32", tA, 0, tA, sMd)] if GRAM == 1 else
                     [lambda: e.valu("v_fma_f32", tA, Gx[0], 2.0, tA),
                      lambda: e.valu("v_cndmask_b32", tA, 0, tA, sMd),
                      lambda: e.valu("v_add_f32", tA, tA, ss1)])

    def stats_ops(U_, SS_, packed=True):
        fl = []
        if packed:
            for h in range(2):
                sl = slice(2 * h, 2 * h + 2)
                fl.append(lambda sl=sl: e.valu("v_pk_mul_f32", U_[sl], U_[sl], sInv2))
            for h in range(2):
                sl = slice(2 * h, 2 * h + 2)
                fl.append(lambda sl=sl: e.valu("v_pk_fma_f32", Gx[sl], U_[sl], U_[sl], sEps2, mods=NEG1))
            for h in range(2):
                sl = slice(2 * h, 2 * h + 2)
                fl.append(lambda sl=sl: e.valu("v_pk_fma_f32", SS_[sl], SS_[sl], sInv2, Gx[sl]))
        else:
            for r in range(4):
                fl.append(lambda r=r: e.valu("v_mul_f32", U_[r], sInv, U_[r]))
            for r in range(4):
                fl.append(lambda r=r: e.valu("v_fma_f32", Gx[r], Neg(U_[r]), U_[r], sEps))
            for h in range(2):
                sl = slice(2 * h, 2 * h + 2)
                fl.append(lambda sl=sl: e.valu("v_pk_fma_f32", SS_[sl], SS_[sl], sInv2, Gx[sl]))
        for r in range(4):
            fl.append(lambda r=r: e.valu("v_max_f32", SS_[r], sEps, SS_[r]))
        for r in range(4):
            fl.append(lambda r=r: e.valu("v_rsq_f32", SS_[r], SS_[r]))
        return fl

    def coarse_phase(first):
        if first:
            wait_piece()
            a_reads(A1)
        else:
            begin_piece(A1)
        if first:
            for cb in range(6):
                tr_read(T1[cb], cb)
        else:
            for cb in range(12):
                e.mfma(MF32, acc[cb], TH[cb], Pf, acc[cb])
                tr_read(T1[cb], cb)
        for kk in range(6):
            if first or kk == 0:
                lq.wait(("a", kk if first else 5))
            if GRAM == 1:
                e.mfma(MF32, SSx, A1[kk], A1[kk], SSx if kk else 0)
            e.mfma(MF32, Uc, A1[kk], vOnes, Uc if kk else 0)
            if first:
                tr_read(T1[6 + kk], 6 + kk)
        if not first:
            sc, fa, ft = rot_ops()
            sc()
            fl = fa + ft
            for kk in range(6):
                e.mfma(MF32, Sc, A1[kk], Qk[kk], Sc if kk else 0)
                for _ in range(2):
                    if fl:
                        fl.pop(0)()
                if kk == 3:
                    poll_ahead()
        release(done=not first)
        if not first:
            early(A0)
        if GRAM == 1:
            diag(SSx, ss1)
        else:
            for n in range(24):
                r = A1[n >> 2][n & 3]
                d = tA if n & 1 == 0 else tB
                e.valu("v_dot2_f32_bf16", d, r, r, d if n >= 2 else 0)
            e.valu("v_add_f32", ss1, tA, tB)

    def tile_dots(AF, U, SS, first, trs, waits, rel=True, nxt=None):
        trs = list(trs)
        hide = rel and not first
        if hide:
            sc, fa, ft = rot_ops()
        for kk in range(6):
            if waits:
                lq.wait(("a", kk))
            e.mfma(MF32, U, AF[kk], vOnes, U if kk else Uc)
            for _ in range(2 if kk in (1, 2) else 1):
                if trs:
                    tr_read(*trs.pop(0))
            if hide and kk == 0:
                sc()
            if hide and kk == 5:
                ft.pop(0)()
                ft.pop(0)()
            if not first:
                e.mfma(MF32, Sx, AF[kk], Qk[kk], Sx if kk else Sc)
            if trs:
                tr_read(*trs.pop(0))
            if hide and kk < 3:
                fa.pop(0)()
            if hide and kk == 4:
                poll_ahead()
            if hide and kk == 5:
                ft.pop(0)()
                ft.pop(0)()
        assert not trs
        if rel:
            release(done=hide)
        else:
            lq.drain()
        for n in range(24):
            r, r1 = AF[n >> 2][n & 3], A1[n >> 2][n & 3]
            e.valu("v_dot2_f32_bf16", tA, r, r, tA if n else ss1)
            e.valu("v_dot2_f32_bf16", tB, r, r1, tB if n else 0)
        e.valu("v_fma_f32", tA, tB, 2.0, tA)
        e.mfma(MFF, SS, tA, vOne, 0)
        if first:
            return
        if nxt is not None:
            early(nxt, again=not waits and EARLY > 1)
        for f_ in stats_ops(U, SS):
            f_()

    def tile_mfmas(AF, U, SS, first, trs, waits, rel=True, nxt=None):
        if GRAM == 0 or (GRAM == 2 and rel):
            return tile_dots(AF, U, SS, first, trs, waits, rel, nxt)
        trs = list(trs)
        for kk in range(6):
            if waits:
                lq.wait(("a", kk))
            e.mfma(MF32, SS, AF[kk], AF[kk], SS if kk else 0)
            if trs and kk >= 2:
                tr_read(*trs.pop(0))
            e.mfma(MF32, Gx, AF[kk], A1[kk], Gx if kk else 0)
            if trs:
                tr_read(*trs.pop(0))
        fl = sumsq_ops(SS)
        hide = rel and not first
        if hide:
            sc, fa, ft = rot_ops()
        for kk in range(6):
            e.mfma(MF32, U, AF[kk], vOnes, U if kk else Uc)
            if kk < 2:
                if trs:
                    tr_read(*trs.pop(0))
                if hide and kk == 0:
                    sc()
                    fa.pop(0)()
                elif hide:
                    fa.pop(0)()
                    fa.pop(0)()
                elif kk == 1:
                    e.nop(8 - 3 - (2 if waits else 0))
            else:
                for _ in range(2):
                    fl.pop(0)()
        assert not trs
        if first:
            while fl:
                fl.pop(0)()
            e.mfma(MFF, SS, tA, vOne, 0)
            release()
            return
        fl.pop(0)()
        e.mfma(MF32, Sx, AF[0], Qk[0], Sc)
        if hide:
            ft.pop(0)()
            ft.pop(0)()
        else:
            e.nop(1)
        e.mfma(MFF, SS, tA, vOne, 0)
        fl = stats_ops(U, SS, packed=False)
        for kk in range(1, 6):
            e.mfma(MF32, Sx, AF[kk], Qk[kk], Sx)
            if kk >= 2:
                for _ in range(2):
                    fl.pop(0)()
            elif hide:
                ft.pop(0)()
                ft.pop(0)()
            if hide and kk == 3:
                poll_ahead()
        if rel:
            release(done=True)
        else:
            lq.drain()
        if nxt is not None:
            early(nxt, again=not waits and EARLY > 1)
        while fl:
            fl.pop(0)()

    def tile_phase(t, first, AF=None, U=None, SS=None):
        AF = AF or A0
        U = U or Ux
        SS = SS or SSx
        half = t & 1
        if first:
            wait_piece()
            a_reads(AF)
        else:
            begin_piece(AF)
        nxt = None if first else (A1 if t == 3 else A0)
        if t == 2:
            e.valu("v_mov_b32", tC, 0)
            for cb in range(12):
                e.mfma(MF32, acc[cb], T0[cb], Pf, acc[cb])
                tr_read(T0[cb][0:2], cb)
                ones_read(T0[cb][2:4])
            e.label("L_tile2b")
            lq.wait(("a", 5))
            tile_mfmas(AF, U, SS, first, [], False, nxt=nxt)
        else:
            tile_mfmas(AF, U, SS, first, [(T0[cb][2 * half:2 * half + 2], cb) for cb in range(12)], True, nxt=nxt)

    def softmax(t, last=False):
        half = t & 1
        for h in range(2):
            sl = slice(2 * h, 2 * h + 2)
            e.valu("v_pk_fma_f32", Sx[sl], Ux[sl], vCs2, Sx[sl], mods=NEG1)
        for h in range(2):
            e.valu("v_pk_fma_f32", X[2 * h:2 * h + 2], Sx[2 * h:2 * h + 2], SSx[2 * h:2 * h + 2], vNm2)
        e.valu("v_max3_f32", tC, X[0], X[1], X[2])
        e.valu("v_max_f32", tC, tC, X[3])
        e.valu("v_cmp_lt_f32", VCC, sThr, tC)
        for r in range(4):
            e.valu("v_exp_f32", X[r], X[r])
        lbl = newlabel("sm")
        e.salu("s_cbranch_vccz", lbl)
        e.begin_cond()
        e.salu("s_call_b64", sRet, "L_rescale")
        e.end_cond()
        e.raw(f"{lbl}:")
        dst = pp if half == 0 else Sx
        for h in range(2):
            e.valu("v_pk_mul_f32", dst[2 * h:2 * h + 2], X[2 * h:2 * h + 2], SSx[2 * h:2 * h + 2])
            if not last:
                e.valu("v_pk_add_f32", vL2, vL2, X[2 * h:2 * h + 2])
        for h in range(2):
            if t == 0:
                e.valu("v_mov_b32", pc[2 * h], dst[2 * h])
                e.valu("v_mov_b32", pc[2 * h + 1], dst[2 * h + 1])
            else:
                e.valu("v_pk_add_f32", pc[2 * h:2 * h + 2], pc[2 * h:2 * h + 2], dst[2 * h:2 * h + 2])
        if not last:
            for h in range(2):
                sl = slice(2 * h, 2 * h + 2)
                if t == 3 and h == 0:
                    e.valu("v_pk_mul_f32", mu2, dst[sl], Ux[sl])
                else:
                    e.valu("v_pk_fma_f32", mu2, dst[sl], Ux[sl], mu2)
        if t == 1:
            e.valu("v_cvt_pk_bf16_f32", Pf[0], pp[0], pp[1])
            e.valu("v_cvt_pk_bf16_f32", Pf[1], pp[2], pp[3])
            e.valu("v_cvt_pk_bf16_f32", Pf[2], Sx[0], Sx[1])
            e.valu("v_cvt_pk_bf16_f32", Pf[3], Sx[2], Sx[3])
        if t == 2:
            e.valu("v_cvt_pk_bf16_f32", Pf[0], pp[0], pp[1])
            e.valu("v_cvt_pk_bf16_f32", Pf[1], pp[2], pp[3])
            e.valu("v_cvt_pk_bf16_f32", Pf[2], Neg(mu2[0]), Neg(mu2[1]))
            e.valu("v_mov_b32", Pf[3], 0)
            if EARLY > 1:
                early2(A0)
            for cb in range(12):
                e.mfma(MF32, acc[cb], T0[cb], Pf, acc[cb])
        if t == 3:
            e.valu("v_cvt_pk_bf16_f32", Pf[0], Sx[0], Sx[1])
            e.valu("v_cvt_pk_bf16_f32", Pf[1], Sx[2], Sx[3])
            e.valu("v_cvt_pk_bf16_f32", Pf[2], pc[0], pc[1])
            e.valu("v_cvt_pk_bf16_f32", Pf[3], pc[2], pc[3])

    U1, SS1, S1 = acc[6], acc[7], acc[8]
    coarse_phase(True)
    tile_phase(0, True)
    e.salu("s_sub_u32", sT, S(2), NQP)
    e.salu("s_cmp_ge_u32", sT, NPR - NQP)
    e.salu("s_cbranch_scc1", "L_nowf")
    e.begin_cond()
    srd(e, S(24, 4), pDbg, 256)
    e.salu("s_lshl_b32", sT, sT, 4)
    e.valu("v_mov_b32", tA, 1)
    e.waitcnt(vm=0)
    e.salu("s_mov_b64", EXEC, 1)
    e.buf_store("buffer_store_dword", tA, vSy, S(24, 4), sT, offset=DBG_WVO, flags="sc1")
    e.salu("s_mov_b64", EXEC, -1)
    st.mark(11)
    e.end_cond()
    e.raw("L_nowf:")
    tile_phase(1, True, AF=acc[:6], U=U1, SS=SS1)
    for f_ in stats_ops(Ux, SSx) + stats_ops(U1, SS1):
        f_()
    wait_piece()
    st.mark(6)
    lk.at(9, tA, tB)
    e.valu("v_mov_b32", tC, 0)
    lds_spin(e, tC, S_QKRDY, vPoll, sT, 1, sleep=1)
    lq.q = []
    st.mark(2)
    lk.at(2, tA, tB)
    st.cyc(8)
    for kk in range(6):
        e.ds_read("ds_read_b128", Qk[kk], vQa[kk & 1], QK + (kk >> 1) * 128)
    for kk in range(6):
        e.waitcnt(lgkm=5 - kk)
        e.mfma(MF32, Sc, A1[kk], Qk[kk], Sc if kk else 0)
        e.mfma(MF32, acc[9], vOnes, Qk[kk], acc[9] if kk else 0)
    for kk in range(6):
        e.mfma(MF32, Sx, A0[kk], Qk[kk], Sx if kk else Sc)
        e.mfma(MF32, S1, acc[kk], Qk[kk], S1 if kk else Sc)
    a_reads(A0)
    e.valu("v_mov_b32", vCs2[0], acc[9][0])
    e.valu("v_mov_b32", vCs2[1], acc[9][0])
    for (U_, SS_, S_) in ((Ux, SSx, Sx), (U1, SS1, S1)):
        for h in range(2):
            sl = slice(2 * h, 2 * h + 2)
            e.valu("v_pk_fma_f32", S_[sl], U_[sl], vCs2, S_[sl], mods=NEG1)
            e.valu("v_pk_mul_f32", S_[sl], S_[sl], SS_[sl])
    e.valu("v_max3_f32", vM, Sx[0], Sx[1], Sx[2])
    e.valu("v_max3_f32", tC, Sx[3], S1[0], S1[1])
    e.valu("v_max3_f32", vM, vM, S1[2], S1[3])
    e.valu("v_max_f32", vM, vM, tC)
    xg_reduce(e, "v_max_f32", vM, tA, tB)
    e.valu("v_cmp_le_f32_e64", VCC, "|%s|" % vM, sThr)
    e.valu("v_cndmask_b32_e64", vM, vM, 0, VCC)
    e.valu("v_sub_f32", vNm2[0], 0, vM)
    e.valu("v_sub_f32", vNm2[1], 0, vM)
    for S_ in (Sx, S1):
        for h in range(2):
            sl = slice(2 * h, 2 * h + 2)
            e.valu("v_pk_add_f32", S_[sl], S_[sl], vNm2)
        for r in range(4):
            e.valu("v_exp_f32", S_[r], S_[r])
    e.valu("v_pk_add_f32", vL2, Sx[0:2], Sx[2:4])
    e.valu("v_pk_add_f32", vL2, vL2, S1[0:2])
    e.valu("v_pk_add_f32", vL2, vL2, S1[2:4])
    for (SS_, S_) in ((SSx, Sx), (SS1, S1)):
        for h in range(2):
            sl = slice(2 * h, 2 * h + 2)
            e.valu("v_pk_mul_f32", S_[sl], S_[sl], SS_[sl])
    e.valu("v_cvt_pk_bf16_f32", Pf[0], Sx[0], Sx[1])
    e.valu("v_cvt_pk_bf16_f32", Pf[1], Sx[2], Sx[3])
    e.valu("v_cvt_pk_bf16_f32", Pf[2], S1[0], S1[1])
    e.valu("v_cvt_pk_bf16_f32", Pf[3], S1[2], S1[3])
    for h in range(2):
        sl = slice(2 * h, 2 * h + 2)
        e.valu("v_pk_add_f32", pc[sl], Sx[sl], S1[sl])
    e.valu("v_pk_mul_f32", mu2, Sx[0:2], Ux[0:2])
    e.valu("v_pk_fma_f32", mu2, Sx[2:4], Ux[2:4], mu2)
    e.valu("v_pk_fma_f32", mu2, S1[0:2], U1[0:2], mu2)
    e.valu("v_pk_fma_f32", mu2, S1[2:4], U1[2:4], mu2)
    e.valu("v_mov_b32", tC, 0)
    for cb in range(12):
        e.mfma(MF32, acc[cb], T0[cb], Pf, 0)
        tr_read(T0[cb][0:2], cb)
        ones_read(T0[cb][2:4])
    e.fence()
    e.salu("s_branch", "L_tile2b")
    lq.q = []

    e.raw("L_rescale:")
    e.nop(16)
    for r in range(4):
        e.valu("v_mul_f32", X[r], Sx[r], SSx[r])
    e.valu("v_max3_f32", tC, X[0], X[1], X[2])
    e.valu("v_max3_f32", tC, tC, X[3], vM)
    xg_reduce(e, "v_max_f32", tC, tA, tB)
    al = V(22, 2)
    e.valu("v_sub_f32", al[0], vM, tC)
    e.valu("v_exp_f32", al[0], al[0])
    e.valu("v_mov_b32", vM, tC)
    e.valu("v_sub_f32", vNm2[0], 0, tC)
    e.valu("v_sub_f32", vNm2[1], 0, tC)
    e.valu("v_mov_b32", al[1], al[0])
    for r in range(4):
        e.valu("v_sub_f32", X[r], X[r], tC)
    for r in range(4):
        e.valu("v_exp_f32", X[r], X[r])
    for q_ in [vL2, mu2, pc[0:2], pc[2:4], pp[0:2], pp[2:4]] + [a_[2 * h:2 * h + 2] for a_ in acc for h in range(2)]:
        e.valu("v_pk_mul_f32", q_, q_, al)
    e.fence()
    e.salu("s_setpc_b64", sRet)

    e.label("L_loop")
    if opt.get("nocmp"):
        e.drop.update((MF32, MFF, "ds_read_b128", "ds_read_b64_tr_b16", "ds_read_b64"))
    st.cyc(7)
    coarse_phase(False)
    tile_phase(0, False)
    softmax(0)
    tile_phase(1, False)
    softmax(1)
    tile_phase(2, False)
    softmax(2)
    e.salu("s_cmp_eq_u32", sIt, NITER - 1)
    e.salu("s_cbranch_scc1", "L_last")
    tile_phase(3, False)
    softmax(3)
    e.salu("s_add_u32", sIt, sIt, 1)
    e.fence()
    e.salu("s_branch", "L_loop")

    e.drop.clear()
    e.raw("L_last:")
    lq.q = [None]
    for a_ in acc:
        for r_ in a_.regs():
            e.w[r_] = (e.pos - 1, "xdl4", (a_.f, a_.i, a_.n))
    st.cyc(9)
    fr = [T0[cb][0:2] for cb in range(12)]
    vFr, vSt = fr[0][0], fr[0][1]
    vOn1, vZ0 = fr[1][0], fr[1][1]
    if opt.get("lprio", 2):
        e.salu("s_setprio", opt.get("lprio", 2))
    e.valu("v_and_b32", tA, 15, lane)
    e.valu("v_lshrrev_b32", tB, 4, lane)
    e.valu("v_lshlrev_b32", vFr, 4, lane)
    e.valu("v_lshlrev_b32", tB, 2, tB)
    e.valu("v_add_u32", vFr, sLds, vFr)
    e.valu("v_lshl_add_u32", vSt, tA, 4, tB)
    e.valu("v_add_u32", vSt, sLds, vSt)
    FINE = opt.get("fine", 0)
    if FINE:
        st.cyc(5)
    lq.q = []
    begin_piece(A0, sleep=0)
    if FINE:
        st.cyc(7)
    tile_mfmas(A0, Ux, SSx, False, [(T0[cb][2:4], cb) for cb in range(12)], True, rel=False)
    if FINE:
        st.cyc(8)
    softmax(3, True)
    st.mark(3)
    if FINE:
        st.cyc(11)

    def put(kk):
        pk = A1[kk]
        for q_ in range(2):
            e.valu("v_cvt_pk_bf16_f32", pk[2 * q_], acc[2 * kk + q_][0], acc[2 * kk + q_][1])
            e.valu("v_cvt_pk_bf16_f32", pk[2 * q_ + 1], acc[2 * kk + q_][2], acc[2 * kk + q_][3])
        e.ds_write("ds_write_b128", vFr, pk, FRAG + 1024 * kk)

    def flagval():
        e.salu("s_cmp_eq_u64", VCC, 0)
        e.salu("s_cselect_b32", sT, 1, 2)
        e.valu("v_mov_b32", vOn1, sT)
    fill = [lambda: e.valu("v_cmp_neq_f32", VCC, 0, vM),
            lambda: e.valu("v_add_f32", X[0], X[0], X[1]),
            lambda: e.valu("v_add_f32", X[2], X[2], X[3]),
            lambda: e.valu("v_add_f32", vL2[0], vL2[0], vL2[1]),
            lambda: e.valu("v_add_f32", X[0], X[0], X[2]),
            lambda: e.ds_write("ds_write_b32", vSt, vM, WST + 512),
            lambda: e.valu("v_add_f32", vL2[0], vL2[0], X[0]),
            flagval,
            lambda: e.ds_write("ds_write_b32", vSt, vL2[0], WST)]
    post = []
    for kk in range(6):
        pk = A1[kk]
        for q_ in range(2):
            for h in range(2):
                post.append(lambda kk=kk, q_=q_, h=h, pk=pk: e.valu("v_cvt_pk_bf16_f32", pk[2 * q_ + h], acc[2 * kk + q_][2 * h], acc[2 * kk + q_][2 * h + 1]))
        post.append(lambda kk=kk, pk=pk: e.ds_write("ds_write_b128", vFr, pk, FRAG + 1024 * kk))
    for cb in range(12):
        e.mfma(MF32, acc[cb], TH[cb], Pf, acc[cb])
        if cb < 3:
            for _ in range(3):
                fill.pop(0)()
        else:
            for _ in range(2 + (cb & 1 ^ 1)):
                post.pop(0)()
    while post:
        post.pop(0)()
    e.ds_write("ds_write_b32", vSy, vOn1, S_FR)
    st.mark(4)
    if FINE:
        st.cyc(1)
    e.salu("s_setprio", 0)

    sId = S(53)
    e.salu("s_cmp_lt_u32", S(2), NWG - NCB)
    e.salu("s_cbranch_scc1", "L_r_end")
    e.salu("s_sub_u32", sId, S(2), NWG - NCB)
    e.salu("s_and_b32", sT, sId, 7)
    e.salu("s_lshr_b32", sT2, sId, 4)
    e.salu("s_lshl_b32", sT2, sT2, 3)
    e.salu("s_or_b32", sT, sT, sT2)
    e.salu("s_lshl_b32", sT, sT, 1)
    e.salu("s_bfe_u32", sT2, sId, 0x10003)
    e.salu("s_or_b32", sId, sT, sT2)
    sQ, sO = S(24, 4), S(28, 4)
    srd(e, sQ, pQ, 6144)
    srd(e, sO, S(18, 2), 6144)
    nq, wgp, vP, vO, c0, c1, vW, vR, c2, vAlt, tg = [V(28 + k) for k in range(11)]
    e.valu("v_and_b32", nq, 3, lane)
    e.valu("v_lshrrev_b32", wgp, 2, lane)
    e.valu("v_lshlrev_b32", vP, 15, wgp)
    e.valu("v_lshl_add_u32", vP, nq, 4, vP)
    e.valu("v_lshlrev_b32", c0, 2, nq)
    e.ds_read("ds_read_b32", tg, c0, TAGS)
    e.salu("s_lshl_b32", sT, sWave, 19)
    e.salu("s_lshl_b32", sT2, sId, 6)
    e.salu("s_add_u32", sT, sT, sT2)
    sC = [S(4), S(5), S(6)]
    e.salu("s_and_b32", sT2, sId, 3)
    e.salu("s_mul_i32", sT2, sT2, 4 * 384)
    e.valu("v_mul_u32_u24", vO, 384, nq)
    e.valu("v_add_u32", vO, sT2, vO)
    e.salu("s_lshr_b32", sT2, sId, 5)
    e.salu("s_mul_i32", sC[2], sT2, 96)
    e.salu("s_bfe_u32", sT2, sId, 0x20002)
    e.salu("s_lshl_b32", sT2, sT2, 3)
    e.salu("s_add_u32", sC[2], sC[2], sT2)
    e.salu("s_bitcmp1_b32", sId, 4)
    e.salu("s_cselect_b32", sC[0], 36, 0)
    e.salu("s_cselect_b32", sC[1], 64, 4)
    e.salu("s_cselect_b32", sT2, 68, 32)
    e.salu("s_add_u32", sC[0], sC[0], sC[2])
    e.salu("s_add_u32", sC[1], sC[1], sC[2])
    e.salu("s_add_u32", sC[2], sC[2], sT2)
    qv = V(56, 3)
    for k in range(3):
        e.buf_load("buffer_load_dword", qv[k], vO, sQ, sC[k])
    e.valu("v_lshrrev_b32", c0, 4, lane)
    e.valu("v_lshlrev_b32", vW, 7, c0)
    e.valu("v_lshl_add_u32", vW, nq, 5, vW)
    e.salu("s_lshl_b32", sT2, sWave, 9)
    e.salu("s_add_u32", sT2, sT2, CEX)
    e.valu("v_add_u32", vW, sT2, vW)
    e.valu("v_and_b32", vR, 15, lane)
    e.valu("v_lshlrev_b32", vR, 5, vR)
    P = [V(40 + 4 * i, 4) for i in range(4)]
    R8 = V(60, 8)
    a6, L, M = R8[0:6], R8[6], R8[7]
    qf = V(120, 6)
    sBad = [S(44, 2), S(46, 2), S(58, 2), S(60, 2)]
    sLo1, sHi1 = S(38), S(39)
    e.valu("v_mov_b32", c0, 0)
    for k in range(8):
        e.valu("v_mov_b32", R8[k], 0)
    e.valu("v_mov_b32", vAlt, 0)
    for i in range(4):
        e.salu("s_mov_b64", sBad[i], -1)
    e.salu("s_mov_b32", sLo1, 0x00003F80)
    e.salu("s_mov_b32", sHi1, 0x3F800000)
    e.waitcnt(vm=0, lgkm=0)
    for k in range(3):
        e.valu("v_lshlrev_b32", qf[2 * k], 16, qv[k])
        e.valu("v_and_b32", qf[2 * k + 1], 0xFFFF0000, qv[k])
    if opt.get("gate", 1):
        lds_spin(e, c0, S_EMP, c1, sT2, 4)
    if opt.get("pre", 4):
        e.salu("s_mov_b64", EXEC, {1: 0x1, 2: 0x10001, 4: 0x1111, 8: 0x11111111}[opt.get("pre", 4)])
        e.label("L_tpre")
        e.buf_load("buffer_load_dword", c0, vP, sWS, sT, offset=12, flags=PFL)
        e.waitcnt(vm=0)
        e.valu("v_xor_b32", c0, c0, tg)
        e.valu("v_and_b32", c0, 0xFFFE, c0)
        e.valu("v_cmp_ne_u32", VCC, 0, c0)
        e.salu("s_cbranch_vccnz", "L_tpre")
        e.salu("s_mov_b64", EXEC, -1)
    e.label("L_tpoll")
    for i in range(4):
        lb_ = newlabel("tskip")
        e.salu("s_add_u32", sT2, sT, PSZ * i)
        e.salu("s_cmp_eq_u64", sBad[i], 0)
        e.salu("s_cbranch_scc1", lb_)
        e.begin_cond()
        e.salu("s_mov_b64", EXEC, sBad[i])
        e.buf_load("buffer_load_dwordx4", P[i], vP, sWS, sT2, flags=LFL)
        e.end_cond()
        e.raw(f"{lb_}:")
    e.waitcnt(vm=0)
    for i in range(4):
        lb_ = newlabel("tchk")
        e.salu("s_cmp_eq_u64", sBad[i], 0)
        e.salu("s_cbranch_scc1", lb_)
        e.begin_cond()
        e.salu("s_mov_b64", EXEC, sBad[i])
        e.valu("v_xor_b32", c2, P[i][3], tg)
        e.valu("v_and_b32", c0, 0xFFFE, c2)
        e.valu("v_and_b32", c1, 0xFFFF0000, P[i][3])
        e.valu("v_or_b32_dpp", c0, c0, c0, mods="quad_perm:[1,0,3,2] row_mask:0xf bank_mask:0xf")
        e.valu("v_or_b32_dpp", c0, c0, c0, mods="quad_perm:[2,3,0,1] row_mask:0xf bank_mask:0xf")
        e.valu("v_cmp_eq_u32", VCC, 0, c0)
        e.nop(1)
        e.salu("s_andn2_b64", sBad[i], sBad[i], VCC)
        e.salu("s_and_b64", EXEC, VCC, VCC)
        e.salu("s_cbranch_scc0", lb_)
        for k in range(6):
            e.valu("v_dot2_f32_bf16", a6[k], P[i][k >> 1], sHi1 if k & 1 else sLo1, a6[k])
        e.valu("v_add_f32", L, L, c1)
        e.valu("v_or_b32", vAlt, vAlt, c2)
        e.end_cond()
        e.raw(f"{lb_}:")
    e.salu("s_mov_b64", EXEC, -1)
    sCn, sPi, sMk = S(54), S(55), S(56, 2)
    e.salu("s_or_b64", sMk, sBad[0], sBad[1])
    e.salu("s_or_b64", VCC, sBad[2], sBad[3])
    e.salu("s_or_b64", sMk, sMk, VCC)
    e.salu("s_cbranch_scc0", "L_tfull")
    e.salu("s_mov_b32", sCn, 0)
    for i in (3, 2, 1, 0):
        e.salu("s_bcnt1_i32_b64", sT2, sBad[i])
        e.salu("s_cselect_b32", sPi, PSZ * i if i else 0, sPi)
        e.salu("s_cselect_b64", sMk, sBad[i], sMk)
        e.salu("s_add_u32", sCn, sCn, sT2)
    e.salu("s_cmp_le_u32", sCn, 4 * opt.get("tfew", 8))
    e.salu("s_cbranch_scc1", "L_tpoll")
    e.salu("s_ff1_i32_b64", sT2, sMk)
    e.salu("s_lshl_b64", EXEC, 1, sT2)
    e.salu("s_add_u32", sPi, sPi, sT)
    e.label("L_tprobe")
    e.buf_load("buffer_load_dword", c0, vP, sWS, sPi, offset=12, flags=PFL)
    e.waitcnt(vm=0)
    e.valu("v_xor_b32", c0, c0, tg)
    e.valu("v_and_b32", c0, 0xFFFE, c0)
    e.valu("v_cmp_ne_u32", VCC, 0, c0)
    e.salu("s_cbranch_vccnz", "L_tprobe")
    e.salu("s_mov_b64", EXEC, -1)
    e.salu("s_branch", "L_tpoll")
    e.label("L_tfull")
    st.mark(10)
    lk.at(6, c0, c1)
    e.valu("v_and_b32", c0, 1, vAlt)
    e.valu("v_cmp_ne_u32", VCC, 0, c0)
    e.salu("s_cbranch_vccnz", "L_tgen")
    e.label("L_trows")
    for k in (4, 8):
        for x in range(7):
            e.valu("v_add_f32_dpp", R8[x], R8[x], R8[x], mods=f"row_ror:{k} row_mask:0xf bank_mask:0xf")
    e.salu("s_mov_b32", S(46), 0x000F000F)
    e.salu("s_mov_b32", S(47), 0x000F000F)
    e.salu("s_mov_b64", EXEC, S(46, 2))
    e.ds_write("ds_write_b128", vW, R8[0:4], 0)
    e.ds_write("ds_write_b128", vW, R8[4:8], 16)
    e.salu("s_mov_b64", EXEC, -1)
    e.waitcnt(lgkm=0)
    e.barrier()
    e.salu("s_cmp_lg_u32", sWave, 0)
    e.salu("s_cbranch_scc1", "L_r_end")
    Xv = [V(80 + 8 * v, 8) for v in range(4)]
    for v in range(4):
        e.ds_read("ds_read_b128", Xv[v][4:8], vR, CEX + 512 * v + 16)
    for v in range(4):
        e.ds_read("ds_read_b128", Xv[v][0:4], vR, CEX + 512 * v)
    e.waitcnt(lgkm=4)
    e.valu("v_or3_b32", c0, Xv[0][7], Xv[1][7], Xv[2][7])
    e.valu("v_or_b32", c0, c0, Xv[3][7])
    e.valu("v_cmp_ne_u32", VCC, 0, c0)
    e.salu("s_cbranch_vccnz", "L_fgen")
    e.label("L_fsum")
    for h in (3, 2, 0, 1):
        sl = slice(2 * h, 2 * h + 2)
        if h == 0:
            e.waitcnt(lgkm=0)
        e.valu("v_pk_add_f32", R8[sl], Xv[0][sl], Xv[1][sl])
        e.valu("v_pk_add_f32", Xv[2][sl], Xv[2][sl], Xv[3][sl])
    for h in (3, 2, 0, 1):
        sl = slice(2 * h, 2 * h + 2)
        e.valu("v_pk_add_f32", R8[sl], R8[sl], Xv[2][sl])
    for k in (4, 8):
        for x in (6, 0, 1, 2, 3, 4, 5):
            e.valu("v_add_f32_dpp", R8[x], R8[x], R8[x], mods=f"row_ror:{k} row_mask:0xf bank_mask:0xf")
            if k == 8 and x == 1:
                e.valu("v_rcp_f32", L, L)
    for h in range(3):
        sl = slice(2 * h, 2 * h + 2)
        e.valu("v_pk_mul_f32", a6[sl], a6[sl], R8[6:8], mods="op_sel_hi:[1,0]")
    for h in range(3):
        e.valu("v_cvt_pk_bf16_f32", qv[h], a6[2 * h], a6[2 * h + 1])
    for h in range(3):
        e.valu("v_lshlrev_b32", a6[2 * h], 16, qv[h])
        e.valu("v_and_b32", a6[2 * h + 1], 0xFFFF0000, qv[h])
    for h in range(3):
        sl = slice(2 * h, 2 * h + 2)
        e.valu("v_pk_add_f32", a6[sl], a6[sl], qf[sl])
    e.salu("s_mov_b64", EXEC, 0xF)
    for h in range(3):
        e.valu("v_cvt_pk_bf16_f32", qv[h], a6[2 * h], a6[2 * h + 1])
        e.buf_store("buffer_store_dword", qv[h], vO, sO, sC[h])
    e.salu("s_mov_b64", EXEC, -1)
    st.mark(12)
    lk.at(7, c0, c1)
    lk.spend(c0, c1)
    e.label("L_r_end")
    st.dump(sWS, 14, [V(126), V(127)])
    e.salu("s_endpgm")

    e.raw("L_tgen:")
    e.nop(4)
    Fv = [V(112 + 2 * i, 2) for i in range(4)]
    tw, vE = V(70), V(71)
    e.valu("v_mov_b32", c0, 0)
    e.ds_read("ds_read_b64", V(72, 2), c0, TAGS)
    e.valu("v_lshlrev_b32", vE, 9, wgp)
    e.valu("v_lshl_add_u32", vE, nq, 3, vE)
    e.salu("s_and_b32", sT2, sId, 3)
    e.salu("s_lshl_b32", sT2, sT2, 5)
    e.salu("s_lshl_b32", sPi, sWave, 13)
    e.salu("s_add_u32", sPi, sPi, sT2)
    e.salu("s_add_u32", sPi, sPi, WS_E)
    e.waitcnt(lgkm=0)
    e.valu("v_lshl_or_b32", tw, V(73), 16, V(72))
    for i in range(4):
        e.valu("v_mov_b32", Fv[i][0], 0)
        e.valu("v_and_b32", c0, 1, P[i][3])
        e.valu("v_cmp_ne_u32", VCC, 0, c0)
        e.nop(1)
        e.salu("s_and_b64", EXEC, VCC, VCC)
        e.salu("s_cbranch_scc0", f"L_tg{i}e")
        e.label(f"L_tg{i}")
        e.buf_load("buffer_load_dwordx2", Fv[i], vE, sWS, sPi, offset=128 * i, flags="sc1")
        e.waitcnt(vm=0)
        e.valu("v_cmp_ne_u32", VCC, Fv[i][1], tw)
        e.salu("s_cbranch_vccnz", f"L_tg{i}")
        e.raw(f"L_tg{i}e:")
        e.salu("s_mov_b64", EXEC, -1)
    e.valu("v_max3_f32", M, Fv[0][0], Fv[1][0], Fv[2][0])
    e.valu("v_max_f32", M, M, Fv[3][0])
    for k in (4, 8):
        e.valu("v_max_f32_dpp", M, M, M, mods=f"row_ror:{k} row_mask:0xf bank_mask:0xf")
    xg_reduce(e, "v_max_f32", M, c0, c1)
    for k in range(7):
        e.valu("v_mov_b32", R8[k], 0)
    for i in range(4):
        e.valu("v_sub_f32", c2, Fv[i][0], M)
        e.valu("v_exp_f32", c2, c2)
        for k in range(7):
            if k & 1 or k == 6:
                e.valu("v_and_b32", c0, 0xFFFF0000, P[i][k >> 1])
            else:
                e.valu("v_lshlrev_b32", c0, 16, P[i][k >> 1])
            e.valu("v_fmac_f32", R8[k], c2, c0, rmw=True)
    e.fence()
    e.salu("s_branch", "L_trows")

    e.raw("L_fgen:")
    e.waitcnt(lgkm=0)
    e.valu("v_max3_f32", M, Xv[0][7], Xv[1][7], Xv[2][7])
    e.valu("v_max_f32", M, M, Xv[3][7])
    for v in range(4):
        e.valu("v_sub_f32", c0, Xv[v][7], M)
        e.valu("v_exp_f32", c0, c0)
        for k in range(7):
            e.valu("v_mul_f32", Xv[v][k], Xv[v][k], c0)
    e.fence()
    e.salu("s_branch", "L_fsum")

    e.w.clear(); e.cread.clear(); e.stread.clear()
    e.raw("L_qkprod:")
    pj, pg, pz, p0, p1 = V(28), V(29), V(30), V(31), V(32)
    vB = [V(34 + k) for k in range(4)]
    vTp = [V(38 + k) for k in range(3)]
    vTq = [V(41 + k) for k in range(3)]
    vXw = [V(44 + k) for k in range(3)]
    vL16 = V(47)
    qp = [V(52 + k) for k in range(24)]
    sCb = S(53)
    sCode = S(28, 4)
    e.salu("s_getpc_b64", sCode[0:2])
    e.salu("s_mov_b32", sCode[2], 4096)
    e.salu("s_mov_b32", sCode[3], 0x20000)
    e.valu("v_lshlrev_b32", p0, 6, lane)
    e.buf_load("buffer_load_dword", V(50), p0, sCode, 0)
    e.valu("v_and_b32", pj, 15, lane)
    e.valu("v_lshrrev_b32", pg, 4, lane)
    e.valu("v_mov_b32", pz, 0)
    e.valu("v_lshlrev_b32", vL16, 4, lane)
    e.valu("v_add_u32", vL16, QL, vL16)
    e.valu("v_mul_u32_u24", p0, 384, pj)
    e.valu("v_and_b32", p1, 1, pg)
    e.valu("v_lshl_add_u32", p0, p1, 3, p0)
    e.valu("v_add_u32", p0, STAGE, p0)
    e.valu("v_lshrrev_b32", p1, 1, pg)
    e.valu("v_and_b32", vB[3], 6, pj)
    e.valu("v_xor_b32", p1, p1, vB[3])
    for q in range(4):
        e.valu("v_xor_b32", vB[q], 2 * q, p1)
        e.valu("v_lshl_add_u32", vB[q], vB[q], 4, p0)
    e.valu("v_lshrrev_b32", p0, 2, pj)
    e.valu("v_lshl_add_u32", p0, pg, 2, p0)
    e.valu("v_and_b32", p1, 6, p0)
    e.valu("v_mul_u32_u24", p0, 384, p0)
    e.valu("v_and_b32", vTq[0], 3, pj)
    e.valu("v_lshl_add_u32", p0, vTq[0], 3, p0)
    for c in range(3):
        e.salu("s_mul_i32", sCb, sWave, 3)
        e.salu("s_add_u32", sCb, sCb, c)
        e.salu("s_and_b32", sT, sCb, 3)
        e.salu("s_lshl_b32", sT, sT, 1)
        e.valu("v_xor_b32", vTp[c], sT, p1)
        e.valu("v_lshl_add_u32", vTp[c], vTp[c], 4, p0)
        e.salu("s_lshr_b32", sT, sCb, 2)
        e.salu("s_lshl_b32", sT, sT, 7)
        e.salu("s_add_u32", sT, sT, RING0 + wslot(0) * TILE)
        e.valu("v_add_u32", vTp[c], sT, vTp[c])
        e.valu("v_add_u32", vTq[c], (wslot(8) - wslot(0)) * TILE, vTp[c])
        e.salu("s_lshr_b32", sT, sCb, 1)
        e.salu("s_lshl_b32", sT, sT, 10)
        e.salu("s_and_b32", sT2, sCb, 1)
        e.salu("s_lshl_b32", sT2, sT2, 3)
        e.salu("s_add_u32", sT, sT, sT2)
        e.valu("v_add_u32", vXw[c], sT, vL16)
    lds_spin(e, pz, S_WL, p0, sT, 1)
    st.mark(5)
    for kk in range(6):
        for hf in range(2):
            e.ds_read("ds_read_b64", V(52 + 4 * kk + 2 * hf, 2), vB[2 * (kk & 1) + hf], (kk >> 1) * 128)
    sm, one2 = V(76), V(77)
    mean, var = V(78, 2), V(80, 2)
    xs = [V(82, 2), V(84, 2)]
    e.valu("v_mov_b32", one2, 0x3F803F80)
    e.waitcnt(lgkm=0)
    if opt.get("lnfast", 1):
        for k in range(24):
            e.valu("v_dot2_f32_bf16", sm, qp[k], one2, sm if k else 0)
            e.valu("v_dot2_f32_bf16", var[0], qp[k], qp[k], var[0] if k else 0)
        for sw in ("v_permlane32_swap_b32", "v_permlane16_swap_b32"):
            e.valu("v_mov_b32", p0, sm)
            e.valu("v_mov_b32", p1, sm)
            e.valu("v_mov_b32", xs[0][0], var[0])
            e.valu("v_mov_b32", xs[0][1], var[0])
            e.valu(sw, p0, p1)
            e.valu(sw, xs[0][0], xs[0][1])
            e.valu("v_add_f32", sm, p0, p1)
            e.valu("v_add_f32", var[0], xs[0][0], xs[0][1])
        e.valu("v_mul_f32", mean[0], sInv, sm)
        e.valu("v_mul_f32", var[0], sInv, var[0])
        e.valu("v_fma_f32", var[0], Neg(mean[0]), mean[0], var[0])
        e.valu("v_max_f32", var[0], 0, var[0])
    else:
        for k in range(24):
            e.valu("v_dot2_f32_bf16", sm, qp[k], one2, sm if k else 0)
        xg_reduce(e, "v_add_f32", sm, p0, p1)
        e.valu("v_mul_f32", mean[0], sInv, sm)
        e.valu("v_mul_f32", mean[1], sInv, sm)
        for k in range(24):
            x = xs[k & 1]
            e.valu("v_lshlrev_b32", x[0], 16, qp[k])
            e.valu("v_and_b32", x[1], 0xFFFF0000, qp[k])
            e.valu("v_pk_add_f32", x, x, mean, mods="neg_lo:[0,1] neg_hi:[0,1]")
            if k == 0:
                e.valu("v_pk_mul_f32", var, x, x)
            else:
                e.valu("v_pk_fma_f32", var, x, x, var)
        e.valu("v_add_f32", var[0], var[0], var[1])
        xg_reduce(e, "v_add_f32", var[0], p0, p1)
        e.valu("v_mul_f32", var[0], sInv, var[0])
    bf16_round(e, mean[0])
    e.valu("v_mov_b32", mean[1], mean[0])
    bf16_round(e, var[0])
    e.valu("v_add_f32", var[0], 1.0e-5, var[0])
    bf16_round(e, var[0])
    e.valu("v_sqrt_f32", var[0], var[0])
    bf16_round(e, var[0])
    e.valu("v_rcp_f32", var[0], var[0])
    e.valu("v_mov_b32", var[1], var[0])
    for k in range(24):
        x = xs[k & 1]
        e.valu("v_lshlrev_b32", x[0], 16, qp[k])
        e.valu("v_and_b32", x[1], 0xFFFF0000, qp[k])
        e.valu("v_pk_add_f32", x, x, mean, mods="neg_lo:[0,1] neg_hi:[0,1]")
        e.valu("v_cvt_pk_bf16_f32", qp[k], x[0], x[1])
        e.valu("v_lshlrev_b32", x[0], 16, qp[k])
        e.valu("v_and_b32", x[1], 0xFFFF0000, qp[k])
        e.valu("v_pk_mul_f32", x, x, var)
        e.valu("v_cvt_pk_bf16_f32", qp[k], x[0], x[1])
    st.mark(10)
    lds_spin(e, pz, S_WL, p0, sT, 2)
    e.waitcnt(vm=0)
    if opt.get("pdbg"):
        st.mark(1)
    Fr = [[V(100 + 12 * kk + 4 * c, 4) for c in range(3)] for kk in range(6)]
    Dq = [V(88 + 4 * c, 4) for c in range(3)]
    for kk in range(6):
        for c in range(3):
            for hf in range(2):
                t = 2 * kk + hf
                base = vTp[c] if t < 8 else vTq[c]
                e.ds_read("ds_read_b64_tr_b16", Fr[kk][c][2 * hf:2 * hf + 2], base, (wslot(t) - wslot(0 if t < 8 else 8)) * TILE)
        if kk >= 2:
            e.waitcnt(lgkm=12)
            for c in range(3):
                e.mfma(MF32, Dq[c], Fr[kk - 2][c], V(52 + 4 * (kk - 2), 4), Dq[c] if kk - 2 else 0)
    for kk in (4, 5):
        e.waitcnt(lgkm=6 * (5 - kk))
        for c in range(3):
            e.mfma(MF32, Dq[c], Fr[kk][c], V(52 + 4 * kk, 4), Dq[c])
    for c in range(3):
        pk = V(76 + 2 * c, 2)
        e.valu("v_cvt_pk_bf16_f32", pk[0], Dq[c][0], Dq[c][1])
        e.valu("v_cvt_pk_bf16_f32", pk[1], Dq[c][2], Dq[c][3])
        e.ds_write("ds_write_b64", vXw[c], pk, 0)
    lds_inc(e, pz, p0, S_AUX)
    e.salu("s_cmp_ge_u32", sWave, 2)
    e.salu("s_cbranch_scc1", "L_qkp_done")
    if opt.get("pdbg"):
        st.mark(12)
    lds_spin(e, pz, S_WL, p0, sT, 3)
    if opt.get("pdbg"):
        st.mark(13)
    e.salu("s_mul_i32", sT, sWave, 2 * TILE)
    e.salu("s_add_u32", sT, sT, RING0 + wslot(12) * TILE - STAGE)
    for q in range(4):
        e.valu("v_add_u32", vB[q], sT, vB[q])
    for c in range(2):
        for kk in range(6):
            for hf in range(2):
                e.ds_read("ds_read_b64", V(100 + 24 * c + 4 * kk + 2 * hf, 2), vB[2 * (kk & 1) + hf], c * TILE + (kk >> 1) * 128)
    lds_spin(e, pz, S_AUX, p0, sT, 4)
    for kk in range(6):
        e.ds_read("ds_read_b128", V(52 + 4 * kk, 4), vL16, 1024 * kk)
    e.salu("s_lshl_b32", sT2, S(2), 1)
    e.salu("s_add_u32", sT2, sT2, sWave)
    e.salu("s_lshl_b32", sT2, sT2, 10)
    e.salu("s_add_u32", sT2, sT2, WS_QK)
    e.valu("v_lshlrev_b32", V(33), 4, lane)
    for kk in range(6):
        e.waitcnt(lgkm=5 - kk)
        for c in range(2):
            e.mfma(MF32, Dq[c], V(100 + 24 * c + 4 * kk, 4), V(52 + 4 * kk, 4), Dq[c] if kk else 0)
    lds_spin(e, pz, S_EMPT, p0, sT, 1)
    e.salu("s_mov_b32", sT, QSCALE)
    pk = V(76, 4)
    for c in range(2):
        for r in range(4):
            e.valu("v_mul_f32", Dq[c][r], sT, Dq[c][r])
        e.valu("v_cvt_pk_bf16_f32", pk[2 * c], Dq[c][0], Dq[c][1])
        e.valu("v_cvt_pk_bf16_f32", pk[2 * c + 1], Dq[c][2], Dq[c][3])
    for k in range(4):
        e.valu("v_min_u32", pk[k], -2, pk[k])
    e.buf_store("buffer_store_dwordx4", pk, V(33), sWS, sT2, flags="sc1")
    st.mark(11)
    e.label("L_qkp_done")
    lds_inc(e, pz, p0, S_ISS)
    e.waitcnt(lgkm=0)
    e.fence()
    e.salu("s_branch", "L_c_start")

    e.w.clear(); e.cread.clear(); e.stread.clear()
    e.raw("L_wvprod:")
    Bw = [V(28 + 4 * kd, 4) for kd in range(6)]
    Dv = [V(52 + 4 * t, 4) for t in range(12)]
    Av = [[V(100 + 24 * b_ + 4 * kd, 4) for kd in range(6)] for b_ in range(2)]
    w0, w1, wz, vTw = V(148), V(149), V(150), V(151)
    vAb = [[V(152), V(153)], [V(154), V(155)]]
    e.salu("s_getpc_b64", sCode[0:2])
    e.salu("s_mov_b32", sCode[2], 4096)
    e.salu("s_mov_b32", sCode[3], 0x20000)
    e.valu("v_lshlrev_b32", w0, 6, lane)
    e.buf_load("buffer_load_dword", V(156), w0, sCode, 0)
    e.valu("v_mov_b32", wz, 0)
    for b_ in range(2):
        for k in range(2):
            e.valu("v_add_u32", vAb[b_][k], RING0 + wslot(8 * b_) * TILE, vQa[k])
    e.valu("v_lshrrev_b32", w0, 4, lane)
    e.valu("v_bfe_u32", w1, lane, 2, 2)
    e.valu("v_lshl_add_u32", w0, w0, 3, w1)
    e.valu("v_and_b32", w1, 3, lane)
    e.valu("v_lshlrev_b32", w1, 3, w1)
    e.valu("v_lshl_add_u32", vTw, w0, 7, w1)
    e.salu("s_lshl_b32", sT, sWave, 5)
    e.salu("s_add_u32", sT, sT, WOB)
    e.valu("v_add_u32", vTw, sT, vTw)
    lds_spin(e, wz, S_WL, w0, sT, 1)
    for kd in range(6):
        for hf in range(2):
            e.ds_read("ds_read_b64_tr_b16", Bw[kd][2 * hf:2 * hf + 2], vTw, (32 * kd + 4 * hf) * 128)

    def wv_reads(t):
        return [lambda kd=kd: e.ds_read("ds_read_b128", Av[t & 1][kd], vAb[t >> 3][kd & 1], (wslot(t) - wslot(t & 8)) * TILE + (kd >> 1) * 128)
                for kd in range(6)]
    lds_spin(e, wz, S_WL, w0, sT, 2)
    e.waitcnt(vm=0)
    st.mark(5)
    for f_ in wv_reads(0):
        f_()
    for t in range(12):
        if t == 7:
            lds_spin(e, wz, S_WL, w0, sT, 3)
        nx = wv_reads(t + 1) if t < 11 else []
        for kd in range(6):
            e.waitcnt(lgkm=5)
            e.mfma(MF32, Dv[t], Av[t & 1][kd], Bw[kd], Dv[t] if kd else 0)
            if nx:
                nx.pop(0)()
            elif kd < 5:
                e.waitcnt(lgkm=4 - kd)
    lds_inc(e, wz, w0, S_ISS)
    m2 = V(158, 2)
    n2 = V(160, 2)
    for t in range(1, 12):
        e.valu("v_pk_add_f32", m2, Dv[0][0:2] if t == 1 else m2, Dv[t][0:2])
        e.valu("v_pk_add_f32", n2, Dv[0][2:4] if t == 1 else n2, Dv[t][2:4])
    e.valu("v_pk_add_f32", m2, m2, n2)
    e.valu("v_add_f32", m2[0], m2[0], m2[1])
    xg_reduce(e, "v_add_f32", m2[0], w0, w1)
    e.valu("v_mul_f32", m2[0], sInv, m2[0])
    e.salu("s_sub_u32", sT, S(2), NQP)
    e.salu("s_lshl_b32", sT, sT, 2)
    e.salu("s_add_u32", sT, sT, sWave)
    e.salu("s_mul_i32", sT, sT, 6144)
    e.salu("s_add_u32", sT, sT, WS_WVO)
    e.valu("v_lshlrev_b32", w0, 4, lane)
    for kk in range(6):
        pk = V(164 + 4 * kk, 4)
        for c in range(2):
            for h in range(2):
                x = Dv[2 * kk + c][2 * h:2 * h + 2]
                e.valu("v_pk_add_f32", x, x, m2, mods="op_sel_hi:[1,0] neg_lo:[0,1] neg_hi:[0,1]")
                e.valu("v_cvt_pk_bf16_f32", pk[2 * c + h], x[0], x[1])
        e.salu("s_add_u32", sT2, sT, 1024 * kk)
        e.buf_store("buffer_store_dwordx4", pk, w0, sWS, sT2, flags="sc1")
    st.mark(10)
    e.waitcnt(lgkm=0)
    e.nop(2)
    e.fence()
    e.salu("s_branch", "L_c_start")

    e.w.clear(); e.cread.clear(); e.stread.clear()
    e.raw("L_aux:")
    sA = S(36)
    sT, sT2, sT3 = S(37), S(38), S(39)
    sW0, sW1, sW2, sWS, sDbg = S(24, 4), S(28, 4), S(40, 4), S(32, 4), S(44, 4)
    sStg = S(48)
    j, g = V(1), V(2)
    vSl = V(3)
    vSt = V(4)
    vTr = [V(5 + k) for k in range(4)]
    vZ = V(11)
    vLn16 = V(12)
    vX = V(13)
    t0, t1 = V(14), V(15)
    e.salu("s_sub_u32", sA, sWave, 5)
    e.valu("v_mov_b32", vZ, 0)
    e.valu("v_and_b32", j, 15, lane)
    e.valu("v_lshrrev_b32", g, 4, lane)
    e.valu("v_lshlrev_b32", vLn16, 4, lane)
    for k in range(4):
        e.valu("v_mov_b32", V(16 + k), -1)
    e.waitcnt(lgkm=0)
    srd(e, sWS, pWS, 0x1000000)
    e.salu("s_cmp_ge_u32", S(2), NQP)
    e.salu("s_cbranch_scc1", "L_aux_noinv0")
    e.salu("s_cmp_lg_u32", sA, 1)
    e.salu("s_cbranch_scc1", "L_aux_noinv0")
    e.begin_cond()
    e.salu("s_lshl_b32", sT2, S(2), 11)
    e.salu("s_add_u32", sT2, sT2, WS_QK)
    for k in range(2):
        e.buf_store("buffer_store_dwordx4", V(16, 4), vLn16, sWS, sT2, offset=1024 * k, flags="sc1")
    e.smem("s_memrealtime s[52:53]", S(52, 2))
    e.waitcnt(lgkm=0)
    e.salu("s_mul_i32", S(54), S(52), 0x9E3779B1)
    e.salu("s_mov_b32", S(55), S(53))
    for r in range(3):
        e.salu("s_lshr_b64", S(56, 2), S(54, 2), 15 * r)
        e.salu("s_lshl_b32", sT3, S(56), 1)
        e.salu("s_and_b32", sT3, sT3, 0xFFFE)
        e.valu("v_mov_b32", V(20 + r), sT3)
    e.salu("s_mul_i32", sT3, S(54), 0x85EBCA6B)
    e.salu("s_lshr_b32", sT3, sT3, 16)
    e.salu("s_and_b32", sT3, sT3, 0xFFFE)
    e.valu("v_mov_b32", V(23), sT3)
    e.salu("s_lshl_b32", sT2, S(2), 7)
    e.salu("s_add_u32", sT2, sT2, WS_QK + 6144)
    e.salu("s_mov_b64", EXEC, 1)
    e.buf_store("buffer_store_dwordx4", V(20, 4), vZ, sWS, sT2, flags="sc1")
    e.salu("s_mov_b64", EXEC, -1)
    e.end_cond()
    e.raw("L_aux_noinv0:")
    e.barrier()
    srd(e, sDbg, pDbg, 256)
    e.salu("s_cmp_ge_u32", S(2), NQP)
    e.salu("s_cbranch_scc1", "L_aux_noinv")
    e.salu("s_cmp_lg_u32", sA, 1)
    e.salu("s_cbranch_scc1", "L_aux_noinv")
    e.begin_cond()
    e.valu("v_mov_b32", t0, 1)
    e.salu("s_lshl_b32", sT2, S(2), 5)
    e.waitcnt(vm=0)
    e.ds_write("ds_write_b32", vZ, t0, S_EMPT)
    e.salu("s_mov_b64", EXEC, 1)
    e.buf_store("buffer_store_dword", t0, vZ, sDbg, sT2, flags="sc1")
    e.salu("s_mov_b64", EXEC, -1)
    st.mark(8)
    e.end_cond()
    e.label("L_aux_noinv")

    e.salu("s_cmp_lt_u32", S(2), NQP)
    e.salu("s_cselect_b32", sT3, S_ISS - S_LANDED, 0)
    e.valu("v_mov_b32", t1, sT3)

    e.salu("s_cmp_lg_u32", sA, 0)
    e.salu("s_cbranch_scc1", "L_aux_w")
    vQw = [V(232 + k) for k in range(4)]
    QR = 208
    e.valu("v_mul_u32_u24", t0, 384, j)
    e.valu("v_and_b32", V(16), 1, g)
    e.valu("v_lshl_add_u32", t0, V(16), 3, t0)
    e.valu("v_lshrrev_b32", V(16), 1, g)
    e.valu("v_and_b32", vX, 6, j)
    e.valu("v_xor_b32", V(16), V(16), vX)
    for q in range(4):
        e.valu("v_xor_b32", vX, 2 * q, V(16))
        e.valu("v_lshl_add_u32", vQw[q], vX, 4, t0)
    e.valu("v_lshlrev_b32", vX, 5, lane)
    e.salu("s_cmp_lt_u32", S(2), NPR)
    e.salu("s_cselect_b32", sT2, 1, opt.get("fstart", 3))
    lds_spin(e, t1, S_LANDED, t0, sT, sT2, sleep=4)
    e.salu("s_mov_b64", EXEC, (1 << NQP) - 1)
    e.label("L_qpoll")
    e.buf_load("buffer_load_dword", t0, vX, sDbg, 0, flags="sc1")
    e.waitcnt(vm=0)
    e.valu("v_cmp_eq_u32", VCC, 0, t0)
    e.salu("s_cbranch_vccz", "L_qpolled")
    e.salu("s_sleep", 8)
    e.salu("s_branch", "L_qpoll")
    e.raw("L_qpolled:")
    e.salu("s_mov_b64", EXEC, -1)
    st.mark(7)
    e.salu("s_cmp_lt_u32", S(2), NPR)
    e.salu("s_cselect_b32", sT2, opt.get("wqstart", 3), opt.get("qstart", 6))
    e.salu("s_cmp_lt_u32", S(2), NQP)
    e.salu("s_cselect_b32", sT2, 4, sT2)
    lds_spin(e, t1, S_LANDED, t0, sT, sT2, sleep=2)
    st.mark(5)
    e.salu("s_mov_b32", sT2, WS_QK + 6144)
    e.buf_load("buffer_load_dwordx4", V(236, 4), vZ, sWS, sT2, flags="sc1")
    e.label("L_qdata")
    for k in range(6):
        e.salu("s_mov_b32", sT2, WS_QK + 1024 * k)
        e.buf_load("buffer_load_dwordx4", V(QR + 4 * k, 4), vLn16, sWS, sT2, flags="sc1")
    e.waitcnt(vm=0)
    e.valu("v_max3_u32", t0, V(QR), V(QR + 1), V(QR + 2))
    for k in range(3, 23, 2):
        e.valu("v_max3_u32", t0, t0, V(QR + k), V(QR + k + 1))
    e.valu("v_max_u32", t0, t0, V(QR + 23))
    e.valu("v_cmp_eq_u32", VCC, -1, t0)
    e.salu("s_cbranch_vccnz", "L_qdata")
    st.mark(6)
    e.ds_write("ds_write_b128", vZ, V(236, 4), TAGS)
    for ct in range(12):
        e.ds_write("ds_write_b64", vQw[ct & 3], V(QR + 2 * ct, 2), QK + (ct >> 2) * 128)
    e.valu("v_mov_b32", t0, 1)
    e.ds_write("ds_write_b32", vZ, t0, S_QKRDY)
    st.mark(1)

    e.label("L_aux_w")
    e.salu("s_cmp_lg_u32", sA, 2)
    e.salu("s_cbranch_scc1", "L_aux_wf2")
    e.valu("v_lshlrev_b32", vX, 2, lane)
    lds_spin(e, vZ, S_LANDED, t0, sT, opt.get("wstart", 10), sleep=8)
    lds_spin(e, vZ, S_QKRDY, t0, sT, 1, sleep=8)
    e.salu("s_mov_b64", EXEC, 0xFFF)
    e.label("L_wpoll")
    e.buf_load("buffer_load_dword", t0, vX, sDbg, 0, offset=DBG_WVO, flags="sc1")
    e.waitcnt(vm=0)
    e.valu("v_cmp_eq_u32", VCC, 0, t0)
    e.salu("s_cbranch_vccz", "L_wpolled")
    e.salu("s_sleep", opt.get("wsleep", 16))
    e.salu("s_branch", "L_wpoll")
    e.raw("L_wpolled:")
    e.salu("s_mov_b64", EXEC, -1)
    e.valu("v_mov_b32", t0, 1)
    e.ds_write("ds_write_b32", vZ, t0, S_WVL)
    e.label("L_aux_wf2")
    lds_spin(e, vZ, S_WVL, t0, sT, 1, sleep=8)
    st.mark(9)
    lk.at(8, t0, t1)
    e.salu("s_mul_i32", sT, sA, 3 * 6144)
    e.salu("s_add_u32", sT, sT, WS_WVO)
    WB = opt.get("wfb", 3)
    n = 0
    for t3 in range(3):
        for kk in range(6):
            if opt.get("noaf"):
                continue
            e.salu("s_add_u32", sT2, sT, (t3 * 6 + kk) * 1024)
            e.buf_load("buffer_load_dwordx4", WVO[kk][t3], vLn16, sWS, sT2, flags=WFL)
            n += 1
            if n % WB == 0:
                e.waitcnt(vm=0)
    st.mark(2)
    lk.at(4, t0, t1)

    e.label("L_tail")
    D = [V(16 + 4 * t3, 4) for t3 in range(3)]
    Dw2 = [V(32 + 4 * t3, 4) for t3 in range(3)]
    Bf = [[V(48 + 32 * b_ + 4 * kk, 4) for kk in range(6)] for b_ in range(2)]
    l4 = [V(72, 4), V(104, 4)]
    fl_ = [V(76), V(108)]
    G2 = [V(192, 4), V(196, 4)]
    vTg = V(200)
    vF0, vF2, vS0, vS2, vS = V(2), V(3), V(4), V(5), V(6)
    lt, lr = V(7), V(8)
    e.valu("v_lshlrev_b32", vS, 4, j)
    e.valu("v_add_u32", vF0, RING0, vLn16)
    e.valu("v_add_u32", vF2, RING0 + 2 * WAVE_RING, vLn16)
    e.valu("v_add_u32", vS0, RING0 + WST, vS)
    e.valu("v_add_u32", vS2, RING0 + WST + 2 * WAVE_RING, vS)
    sP = S(49)
    e.salu("s_lshl_b32", sP, S(2), 13)
    e.salu("s_lshl_b32", sT2, sA, 11)
    e.salu("s_add_u32", sP, sP, sT2)
    sHi = S(51)
    e.salu("s_mov_b32", sHi, 40.0)
    e.valu("v_and_b32", lr, 3, j)
    e.valu("v_lshlrev_b32", lr, 2, lr)
    e.ds_read("ds_read_b32", vTg, lr, TAGS)
    lds_spin(e, vZ, S_FR, t1, sT, 1, sleep=opt.get("fsleep", 1))
    if opt.get("fine"):
        st.cyc(5)

    def batch(w):
        fb, sb = (vF0, vS0) if w < 2 else (vF2, vS2)
        o = (w & 1) * WAVE_RING
        ops = [lambda: e.ds_read("ds_read_b32", fl_[w & 1], vZ, S_FR + 4 * w)]
        for kk in range(6):
            ops.append(lambda kk=kk: e.ds_read("ds_read_b128", Bf[w & 1][kk], fb, FRAG + o + 1024 * kk))
        ops.append(lambda: e.ds_read("ds_read_b128", l4[w & 1], sb, o))
        return ops

    def peek(w):
        e.waitcnt(lgkm=0)
        e.valu("v_readfirstlane_b32", sT, fl_[w & 1])

    def arrived(w, peeked=False):
        top, ok = newlabel("bt"), newlabel("bo")
        if peeked:
            e.salu("s_cbranch_scc1", ok)
            e.salu("s_branch", top + "x")
        e.label(top, fence=False)
        peek(w)
        e.nop(1)
        e.salu("s_cmp_eq_u32", sT, 1)
        e.salu("s_cbranch_scc1", ok)
        e.raw(f"{top}x:")
        e.salu("s_cmp_eq_u32", sT, 2)
        e.salu("s_cbranch_scc1", "L_agen")
        e.begin_cond()
        for f_ in batch(w):
            f_()
        e.end_cond()
        e.salu("s_branch", top)
        e.raw(f"{ok}:")

    def meta():
        return [lambda: e.valu("v_cvt_pk_bf16_f32", lr, 0, lt),
                lambda: e.valu("v_or_b32", G2[0][3], lr, vTg),
                lambda: e.valu("v_or_b32", G2[1][3], lr, vTg)]

    def cv(g_, k, t3, r):
        return lambda: e.valu("v_cvt_pk_bf16_f32", G2[g_][k], D[t3][r], D[t3][r + 1])

    def stg(g_):
        return lambda: e.buf_store("buffer_store_dwordx4", G2[g_], vLn16, sWS, sP, offset=1024 * g_, flags=SFL)
    fin0 = [cv(0, 0, 0, 0), cv(0, 1, 0, 2), cv(0, 2, 1, 0), stg(0), cv(1, 0, 1, 2)]
    fin1 = [cv(1, 1, 2, 0), cv(1, 2, 2, 2), stg(1)]

    for f_ in batch(0)[1:]:
        f_()
    e.salu("s_cmp_eq_u32", sT, 2)
    e.salu("s_cbranch_scc1", "L_agen")
    e.waitcnt(vm=0)
    for w in range(4):
        B, lw = Bf[w & 1], l4[w & 1]
        fill = [lambda lw=lw: e.valu("v_add_f32", lw[0], lw[0], lw[1]),
                lambda lw=lw: e.valu("v_add_f32", lw[2], lw[2], lw[3])]
        if w == 0:
            fill.append(lambda lw=lw: e.valu("v_add_f32", lt, lw[0], lw[2]))
        else:
            fill.append(lambda lw=lw: e.valu("v_add_f32", lw[0], lw[0], lw[2]))
            fill.append(lambda lw=lw: e.valu("v_add_f32", lt, lt, lw[0]))
        if w < 3:
            fill = batch(w + 1) + fill
            while len(fill) < 14:
                fill.append(lambda: None)
            fill += [lambda w=w: peek(w + 1), lambda: None, lambda: e.salu("s_cmp_eq_u32", sT, 1)]
            n = 0
            for kk in range(6):
                if w == 0 and kk < 3:
                    e.waitcnt(lgkm=6 - kk + n if kk < 2 else n)
                for t3 in range(3):
                    e.mfma(MF32, D[t3], WVO[kk][t3], B[kk], D[t3] if kk or w else 0)
                    n += 1
                    if fill:
                        fill.pop(0)()
            assert not fill
            arrived(w + 1, peeked=True)
            if opt.get("fine"):
                st.cyc((6, 7, 10)[w])
            elif w == 2:
                st.mark(10)
        else:
            fill += meta()
            for kk in range(6):
                for t3 in range(2):
                    e.mfma(MF32, D[t3], WVO[kk][t3], B[kk], D[t3])
                    if fill:
                        fill.pop(0)()
            while fill:
                fill.pop(0)()
            fill = list(fin0)
            for kk in range(6):
                e.mfma(MF32, D[2], WVO[kk][2], B[kk], D[2])
                if kk == 2:
                    e.nop(3)
                if kk >= 2:
                    for _ in range(2):
                        if fill:
                            fill.pop(0)()
            if opt.get("fine"):
                st.cyc(1)
            for f_ in fill + fin1:
                f_()
    e.label("L_aend", fence=False)
    lds_inc(e, vZ, t1, S_EMP)
    if not opt.get("pdbg"):
        st.mark(4)
    lk.at(5, V(14), V(15))
    if opt.get("fine"):
        st.cyc(11)
    st.dump(sWS, 12, [V(14), V(15)])
    e.salu("s_endpgm")

    e.raw("L_agen:")
    e.waitcnt(vm=0)
    sAlt, sW_, sOff = S(56, 2), S(58), S(59)
    Mx, ref, be, c0, c1, mw = V(9), V(10), V(13), V(14), V(204), V(205)
    vFa, vSa = V(2), V(3)
    B = Bf[0]
    lw = l4[0]
    for w in range(4):
        lds_spin(e, vZ, S_FR + 4 * w, t1, sT, 1)
        e.valu("v_add_u32", vSa, RING0 + WST + w * WAVE_RING, vS)
        e.ds_read("ds_read_b32", mw, vSa, 512)
        e.waitcnt(lgkm=0)
        if w == 0:
            e.valu("v_mov_b32", Mx, mw)
        else:
            e.valu("v_max_f32", Mx, Mx, mw)
    e.valu("v_cmp_nlt_f32_e64", sAlt, "|%s|" % Mx, sHi)
    e.valu("v_cndmask_b32", ref, 0, Mx, sAlt)
    e.valu("v_mov_b32", lt, 0)
    for t3 in range(3):
        for r in range(4):
            e.valu("v_mov_b32", D[t3][r], 0)
    e.salu("s_mov_b32", sW_, 0)
    e.label("L_agen_w")
    e.salu("s_mul_i32", sOff, sW_, WAVE_RING)
    e.salu("s_add_u32", sOff, sOff, RING0)
    e.valu("v_add_u32", vFa, sOff, vLn16)
    e.valu("v_add_u32", vSa, sOff, vS)
    for kk in range(6):
        e.ds_read("ds_read_b128", B[kk], vFa, FRAG + 1024 * kk)
    e.ds_read("ds_read_b32", mw, vSa, WST + 512)
    e.ds_read("ds_read_b128", lw, vSa, WST)
    e.waitcnt(lgkm=0)
    for kk in range(6):
        for t3 in range(3):
            e.mfma(MF32, Dw2[t3], WVO[kk][t3], B[kk], Dw2[t3] if kk else 0)
    e.valu("v_sub_f32", c0, mw, ref)
    e.valu("v_exp_f32", be, c0)
    e.valu("v_add_f32", lw[0], lw[0], lw[1])
    e.valu("v_add_f32", lw[2], lw[2], lw[3])
    e.valu("v_add_f32", lw[0], lw[0], lw[2])
    e.valu("v_fmac_f32", lt, be, lw[0], rmw=True)
    for t3 in range(3):
        for r in range(4):
            e.valu("v_fmac_f32", D[t3][r], be, Dw2[t3][r], rmw=True)
    e.salu("s_add_u32", sW_, sW_, 1)
    e.salu("s_cmp_lt_u32", sW_, 4)
    e.fence()
    e.salu("s_cbranch_scc1", "L_agen_w")
    e.valu("v_cndmask_b32", c0, 0, 1, sAlt)
    e.valu("v_or_b32", vTg, vTg, c0)
    e.ds_read("ds_read_b64", lw[2:4], vZ, TAGS)
    e.valu("v_mov_b32", lw[0], ref)
    e.valu("v_lshrrev_b32", c0, 1, vS)
    e.salu("s_lshl_b32", sT2, S(2), 7)
    e.salu("s_add_u32", sT2, sT2, WS_E)
    e.waitcnt(lgkm=0)
    e.valu("v_lshl_or_b32", lw[1], lw[3], 16, lw[2])
    e.salu("s_mov_b64", EXEC, 0xFFFF)
    e.buf_store("buffer_store_dwordx2", lw[0:2], c0, sWS, sT2, flags="sc1")
    e.salu("s_mov_b64", EXEC, -1)
    for f_ in meta() + fin0 + fin1:
        f_()
    e.fence()
    e.salu("s_branch", "L_aend")
    e.raw("L_exit:")
    e.salu("s_endpgm")
    return e


def build(stamps=False, opt=None):
    m = gen_main(stamps, opt)
    return header(0) + m.text() + "L_code_end:\n" + kd(MAIN, 256, 96)


if __name__ == "__main__":
    import argparse
    ap = argparse.ArgumentParser()
    ap.add_argument("-o", default=os.path.join(os.path.dirname(os.path.abspath(__file__)), "..", NAME + ".s"))
    ap.add_argument("--stamps", action="store_true")
    ap.add_argument("--opt", default="")
    a = ap.parse_args()
    opt = {}
    for kv in a.opt.split(","):
        if kv:
            k, _, v = kv.partition("=")
            opt[k] = int(v) if v else 1
    open(a.o, "w").write(build(a.stamps, opt))
```

```python
import sys
import os
sys.path.insert(0, os.path.dirname(os.path.abspath(__file__)))
from emit import Em, R, V, S, Neg, VCC, EXEC, M0

NAME = "standalone__detection_seg_dino__vision"
MAIN = NAME + "_kernel"

TILE = 6144
NSLOT = 6
WAVE_RING = NSLOT * TILE
QK = 0
SYNC = 6912
TAGS = SYNC + 128
STAGE = 7168
RING0 = 13312
LDS_BYTES = RING0 + 4 * WAVE_RING
STEPST = 6144
QL = QK
FRAG = 0
WST = 2 * TILE
CEX = RING0 + 4 * TILE


def wslot(t):
    return 6 * (t // 4) + 2 + t % 4


(S_LANDED, S_CONS, S_QKRDY, S_AUX, S_ISS, S_WL, S_EMPT, S_EMP, S_ZERO, S_FRC, S_WVL, S_FR) = [
    SYNC + 4 * k for k in (0, 4, 8, 9, 10, 11, 12, 13, 14, 15, 16, 20)]
ONES = SYNC + 144
THR = 32.0

WS_P = 0
PSZ = 8192
NCB = 128
WS_E = 0x400000
WS_QK = 0x500000
WS_WVO = 0x540000
WS_STAMP = 0x800000
DBG_WVO = 80
WS_PRG = 0x580000

NWG = 256
NITER = 4
NQP = 3
NPR = 6
WOB = RING0 + 20 * TILE

QSCALE = (192 ** -0.5) * 1.4426950408889634
MF32, MF16, MFF = "v_mfma_f32_16x16x32_bf16", "v_mfma_f32_16x16x16_bf16", "v_mfma_f32_16x16x4_f32"
NEG1 = "neg_lo:[1,0,0] neg_hi:[1,0,0]"


def header(extra_lds=0):
    launch = f"; @launch grid=({NWG},1,1) block=(512,1,1) lds={LDS_BYTES + extra_lds}"
    return f"""; Kernarg layout for this problem (80 bytes, ptrs only, base s[0:1]):
{launch}
.amdgcn_target "amdgcn-amd-amdhsa--gfx950"
.text
"""


def kd(name, vgpr, sgpr):
    return f""".section .rodata,"a"
.p2align 6
.amdhsa_kernel {name}
  .amdhsa_next_free_vgpr {vgpr}
  .amdhsa_next_free_sgpr {sgpr}
  .amdhsa_accum_offset {(vgpr + 3) // 4 * 4}
  .amdhsa_group_segment_fixed_size 0
  .amdhsa_kernarg_size 80
  .amdhsa_user_sgpr_count 2
  .amdhsa_user_sgpr_kernarg_segment_ptr 1
  .amdhsa_system_sgpr_workgroup_id_x 1
  .amdhsa_float_denorm_mode_32 3
.end_amdhsa_kernel
"""


WSOFF = [0]


def srd(e, q, ptr, nbytes):
    if nbytes == 0x1000000 and WSOFF[0]:
        e.salu("s_add_u32", q[0], ptr[0], WSOFF[0])
        e.salu("s_addc_u32", q[1], ptr[1], 0)
    else:
        e.salu("s_mov_b32", q[0], ptr[0])
        e.salu("s_mov_b32", q[1], ptr[1])
    e.salu("s_mov_b32", q[2], nbytes)
    e.salu("s_mov_b32", q[3], 0x20000)


def xg_reduce(e, op, x, t0, t1):
    for sw in ("v_permlane32_swap_b32", "v_permlane16_swap_b32"):
        e.valu("v_mov_b32", t0, x)
        e.valu("v_mov_b32", t1, x)
        e.valu(sw, t0, t1)
        e.valu(op, x, t0, t1)


def bf16_round(e, x):
    e.valu("v_cvt_pk_bf16_f32", x, x, x)
    e.valu("v_and_b32", x, 0xFFFF0000, x)


def tile_lane_offsets(e, lane, vDc, vDf, t0, t1):
    for i in range(3):
        e.valu("v_add_u32", t0, 64 * i, lane)
        e.valu("v_mul_u32_u24", t0, 0xAAB, t0)
        e.valu("v_lshrrev_b32", t0, 16, t0)
        e.valu("v_and_b32", t1, 6, t0)
        e.valu("v_xor_b32", t1, t1, lane)
        e.valu("v_lshlrev_b32", vDc[i], 4, t1)
        if vDf is not None:
            e.valu("v_mul_u32_u24", t0, 384, t0)
            e.valu("v_add_u32", vDf[i], t0, vDc[i])


def afrag_addrs(e, j, g, base, out, t0, t1):
    e.valu("v_and_b32", t0, 6, j)
    e.valu("v_xor_b32", t0, t0, g)
    e.valu("v_mul_u32_u24", t1, 384, j)
    if base is not None:
        e.valu("v_add_u32", t1, base, t1)
    e.valu("v_lshl_add_u32", out[0], t0, 4, t1)
    e.valu("v_xor_b32", t0, 4, t0)
    e.valu("v_lshl_add_u32", out[1], t0, 4, t1)


class Stamps:
    def __init__(self, e, on):
        self.e, self.on = e, on

    def mark(self, k):
        if self.on:
            self.e.smem(f"s_memrealtime s[{64 + 2 * k}:{65 + 2 * k}]", S(64 + 2 * k, 2))

    def cyc(self, k):
        if self.on:
            self.e.smem(f"s_memtime s[{64 + 2 * k}:{65 + 2 * k}]", S(64 + 2 * k, 2))

    def dump(self, sWS, nst, vt):
        if not self.on:
            return
        e = self.e
        e.waitcnt(lgkm=0)
        e.salu("s_lshl_b32", S(62), S(2), 3)
        e.salu("s_add_u32", S(62), S(62), S(3))
        e.salu("s_lshl_b32", S(62), S(62), 6)
        e.salu("s_add_u32", S(62), S(62), WS_STAMP)
        for k in range(nst):
            e.raw(f"    v_writelane_b32 {vt[0]}, s{64 + 2 * k}, {k}")
        e.valu("v_lshlrev_b32", vt[1], 2, V(0))
        e.salu("s_mov_b64", EXEC, 0xFFFF)
        e.buf_store("buffer_store_dword", vt[0], vt[1], sWS, S(62))
        e.salu("s_mov_b64", EXEC, -1)


class Leak:
    def __init__(self, e, which):
        self.e, self.which = e, which

    def start(self):
        if self.which:
            self.e.smem("s_memrealtime s[92:93]", S(92, 2))

    def at(self, k, vt0, vt1):
        if self.which == k:
            e = self.e
            e.smem("s_memrealtime s[90:91]", S(90, 2))
            e.waitcnt(lgkm=0)
            e.valu("v_mov_b32", vt0, S(90))
            e.valu("v_mov_b32", vt1, 0)
            e.ds_write("ds_write_b32", vt1, vt0, STEPST)
            e.waitcnt(lgkm=0)

    def spend(self, vt0, vt1):
        if not self.which:
            return
        e = self.e
        e.salu("s_cmp_lg_u32", S(2), 201)
        e.salu("s_cbranch_scc1", "L_leak_end")
        e.valu("v_mov_b32", vt1, 0)
        e.ds_read("ds_read_b32", vt0, vt1, STEPST)
        e.smem("s_memrealtime s[88:89]", S(88, 2))
        e.waitcnt(lgkm=0)
        e.valu("v_readfirstlane_b32", S(90), vt0)
        e.nop(3)
        e.salu("s_sub_u32", S(90), S(90), S(92))
        e.salu("s_lshl_b32", S(90), S(90), 3)
        e.salu("s_min_u32", S(90), S(90), 40000)
        e.label("L_leak")
        e.smem("s_memrealtime s[86:87]", S(86, 2))
        e.waitcnt(lgkm=0)
        e.salu("s_sub_u32", S(91), S(86), S(88))
        e.salu("s_cmp_lt_u32", S(91), S(90))
        e.salu("s_cbranch_scc1", "L_leak")
        e.raw("L_leak_end:")


class LQ:
    def __init__(self, e):
        self.e, self.q = e, []

    def add(self, tag=None):
        self.q.append(tag)

    def wait(self, tag):
        idx = max(i for i, t in enumerate(self.q) if t == tag)
        n = len(self.q) - 1 - idx
        self.e.waitcnt(lgkm=min(n, 15))
        self.q = self.q[idx + 1:]

    def drain(self):
        self.e.waitcnt(lgkm=0)
        self.q = []


LBL = [0]


def newlabel(p):
    LBL[0] += 1
    return f"L_{p}{LBL[0]}"


def lds_spin(e, vaddr, off, vt, sdst, need, sleep=1):
    top, done = newlabel("spin"), newlabel("spun")
    e.label(top)
    e.ds_read("ds_read_b32", vt, vaddr, off)
    e.waitcnt(lgkm=0)
    e.valu("v_readfirstlane_b32", sdst, vt)
    e.nop(1)
    e.salu("s_cmp_ge_u32", sdst, need)
    if sleep:
        e.salu("s_cbranch_scc1", done)
        e.salu("s_sleep", sleep)
        e.salu("s_branch", top)
        e.raw(f"{done}:")
    else:
        e.salu("s_cbranch_scc0", top)


def lds_inc(e, vz, vt, off):
    e.valu("v_mov_b32", vt, 1)
    e.salu("s_mov_b64", EXEC, 1)
    e.mem(f"ds_add_u32 {vz}, {vt} offset:{off}", reads=[vz, vt])
    e.salu("s_mov_b64", EXEC, -1)


def gen_main(stamps=False, opt=None):
    opt = opt or {}
    e = Em()
    WSOFF[0] = opt.get("wsoff", 0) << 20
    st = Stamps(e, stamps)
    lk = Leak(e, opt.get("leak", 0))
    e.raw(f".globl {MAIN}")
    e.raw(".p2align 8")
    e.raw(f".type {MAIN},@function")
    e.raw(f"{MAIN}:")
    sWave = S(3)
    lane = V(0)
    e.salu("s_cmp_ge_u32", S(2), NWG)
    e.salu("s_cbranch_scc1", "L_exit")
    st.mark(0)
    lk.start()
    e.smem("s_load_dwordx16 s[4:19], s[0:1], 0", S(4, 16))
    e.smem("s_load_dwordx4 s[20:23], s[0:1], 64", S(20, 4))
    pQ, pF0, pF1, pWq, pWk, pWv, pWo = [S(4 + 2 * k, 2) for k in range(7)]
    pDbg, pWS = S(20, 2), S(22, 2)
    e.valu("v_lshrrev_b32", V(1), 6, V(0))
    e.valu("v_and_b32", V(0), 63, V(0))
    if opt.get("epf", 0):
        e.salu("s_getpc_b64", S(60, 2))
    e.valu("v_readfirstlane_b32", sWave, V(1))
    e.nop(3)
    if opt.get("rot", 0):
        e.salu("s_xor_b32", sWave, sWave, 4)
    if opt.get("epf", 0):
        e.salu("s_cmp_eq_u32", sWave, 4)
        e.salu("s_cbranch_scc1", "L_loader")
        e.salu("s_cmp_gt_u32", sWave, 4)
        e.salu("s_cbranch_scc1", "L_aux0")
        e.salu("s_lshl_b32", S(62), sWave, 7)
        e.salu("s_add_u32", S(60), S(60), S(62))
        e.salu("s_addc_u32", S(61), S(61), 0)
        for k in range(opt["epf"]):
            e.smem(f"s_load_dword s63, s[60:61], {128 + 512 * k}", S(63))
        e.salu("s_branch", "L_compute")
        e.raw("L_loader:")
    else:
        e.salu("s_cmp_lt_u32", sWave, 4)
        e.salu("s_cbranch_scc1", "L_compute")
        e.salu("s_cmp_gt_u32", sWave, 4)
        e.salu("s_cbranch_scc1", "L_aux0")

    vDc = [V(1), V(2), V(3)]
    vDf = [V(4), V(5), V(6)]
    vD = [V(7), V(8), V(9)]
    vZ, vt, vt2 = V(10), V(11), V(12)
    vLane4 = V(13)
    sSrc = S(24, 4)
    sWS = S(32, 4)
    sStep, sK, sH, sO1, sO0, sBase, sWst, sHalf, sLk = [S(36 + k) for k in range(9)]
    sT, sT2, sVal, sNeed = S(45), S(46), S(47), S(48)
    sCons = [S(50 + k) for k in range(4)]
    sRet = S(54, 2)
    sW = S(56)
    sSlot = S(57)
    FAST = opt.get("fast", 1)
    e.salu("s_setprio", 3)
    for i in range(3):
        e.valu("v_add_u32", vDf[i], 64 * i, lane)
        e.valu("v_mul_u32_u24", vDf[i], 0xAAB, vDf[i])
        e.valu("v_lshrrev_b32", vDf[i], 16, vDf[i])
        e.valu("v_and_b32", vt, 6, vDf[i])
        e.valu("v_xor_b32", vt, vt, lane)
        e.valu("v_lshlrev_b32", vDc[i], 4, vt)
    e.salu("s_and_b32", sH, S(2), 7)
    e.salu("s_lshl_b32", sH, sH, 5)
    e.salu("s_lshr_b32", sT, S(2), 3)
    e.salu("s_or_b32", sH, sH, sT)
    e.salu("s_lshl_b32", sH, sH, 2)
    e.salu("s_mov_b32", sSrc[3], 0x20000)
    e.salu("s_mov_b32", sSrc[2], 25165824)
    e.salu("s_mul_i32", sO1, sH, 6144)
    e.salu("s_mov_b32", sLk, RING0)
    e.salu("s_cmp_lt_u32", S(2), NPR)
    e.salu("s_cbranch_scc1", "L_ld_prod")
    e.waitcnt(lgkm=0)
    st.mark(1)
    e.salu("s_mov_b32", sSrc[0], pF1[0])
    e.salu("s_mov_b32", sSrc[1], pF1[1])
    e.raw("L_ld_first:")
    for h in range(2):
        e.salu("s_mov_b32" if h == 0 else "s_add_u32", M0, *([sLk] if h == 0 else [sLk, 3072]))
        e.salu("s_add_u32", sLk if h else sT2, sLk if h else sO1, WAVE_RING if h else 3072)
        for i in range(3):
            e.buf_load_lds(vDc[i], sSrc, sT2 if h else sO1, offset=1024 * i, flags="nt")
    e.salu("s_add_u32", sO1, sO1, 6144)
    e.salu("s_cmp_lt_u32", sLk, RING0 + 4 * WAVE_RING)
    e.salu("s_cbranch_scc1", "L_ld_first")
    st.mark(5)
    e.salu("s_branch", "L_ld_norm")

    e.raw("L_aux0:")
    aC, aW1, aW2 = S(24, 4), S(28, 4), S(40, 4)
    e.salu("s_getpc_b64", aC[0:2])
    e.raw("L_aux_pc:")
    e.raw(f"    s_sub_u32 {aC[0]}, {aC[0]}, L_aux_pc-{MAIN}")
    e.raw(f"    s_subb_u32 {aC[1]}, {aC[1]}, 0")
    e.raw(f"    s_mov_b32 {aC[2]}, L_code_end-{MAIN}")
    e.salu("s_mov_b32", aC[3], 0x20000)
    e.salu("s_lshr_b32", S(39), S(2), 3)
    e.salu("s_mul_i32", S(38), S(39), 3)
    e.salu("s_add_u32", S(38), S(38), sWave)
    e.salu("s_mul_i32", S(38), S(38), 320)
    e.salu("s_sub_u32", S(38), S(38), 5 * 320)
    e.valu("v_lshlrev_b32", V(14), 6, lane)
    e.salu("s_mov_b64", EXEC, 0x1F)
    e.buf_load("buffer_load_dword", V(253), V(14), aC, S(38))
    e.salu("s_mov_b64", EXEC, -1)
    e.salu("s_and_b32", S(38), S(2), 7)
    e.salu("s_mul_i32", S(37), sWave, 3)
    e.salu("s_add_u32", S(38), S(38), 18)
    e.salu("s_sub_u32", S(38), S(38), S(37))
    e.salu("s_cmp_ge_u32", S(38), 3)
    e.salu("s_cbranch_scc1", "L_aux")
    e.salu("s_mul_i32", S(37), S(39), 2304)
    e.valu("v_mul_u32_u24", V(13), 36, lane)
    e.salu("s_mov_b32", aW1[2], 73728)
    e.salu("s_mov_b32", aW2[2], 73728)
    e.salu("s_mov_b32", aW1[3], aC[3])
    e.salu("s_mov_b32", aW2[3], aC[3])
    e.salu("s_cmp_eq_u32", sWave, 6)
    e.waitcnt(lgkm=0)
    e.salu("s_cselect_b64", aW1[0:2], pWq, pWo)
    e.salu("s_cselect_b64", aW2[0:2], pWk, pWv)
    e.buf_load("buffer_load_dword", V(254), V(13), aW1, S(37))
    e.buf_load("buffer_load_dword", V(255), V(13), aW2, S(37))
    e.salu("s_branch", "L_aux")

    def publish(off, val):
        e.valu("v_mov_b32", vt, val)
        e.salu("s_mov_b64", EXEC, 1)
        e.mem(f"ds_max_u32 {vZ}, {vt} offset:{off}", reads=[vZ, vt])
        e.salu("s_mov_b64", EXEC, -1)

    ADAPT = opt.get("adapt", 0)
    sPrg, sXo, sTb, vTk, vSlot, vOwn = S(28, 4), S(58), S(59), [V(14), V(15)], V(16), V(17)

    def init(first):
        for i in range(3):
            e.valu("v_mul_u32_u24", vDf[i], 384, vDf[i])
            e.valu("v_add_u32", vDf[i], vDf[i], vDc[i])
        e.valu("v_mov_b32", vZ, 0)
        e.valu("v_lshlrev_b32", vLane4, 2, lane)
        e.salu("s_mov_b64", EXEC, 0xFFFFFFFF)
        e.ds_write("ds_write_b32", vLane4, vZ, SYNC)
        e.valu("v_mov_b32", vt, 0x3F803F80)
        e.salu("s_mov_b64", EXEC, 3)
        e.ds_write("ds_write_b32", vLane4, vt, ONES)
        e.salu("s_mov_b64", EXEC, -1)
        for k in range(4):
            e.salu("s_mov_b32", sCons[k], 0)
        if stamps:
            e.salu("s_mov_b32", S(76), 0)
            e.salu("s_mov_b32", S(78), 0)
        for r_ in (sStep, sK, sSlot):
            e.salu("s_mov_b32", r_, first)
        if first:
            e.salu("s_lshr_b32", sT, sH, 4)
            e.salu("s_mul_i32", sO0, sT, 393216)
            e.salu("s_and_b32", sT, sH, 15)
            e.salu("s_mul_i32", sT, sT, 12288)
            e.salu("s_add_u32", sO0, sO0, sT)
            e.salu("s_add_u32", sH, sH, 1024)
        if ADAPT:
            srd(e, sPrg, pWS, 0x1000000)
            e.salu("s_getreg_b32", sXo, "hwreg(HW_REG_XCC_ID)")
            e.salu("s_and_b32", sXo, sXo, 7)
            e.salu("s_lshl_b32", sXo, sXo, 7)
            e.salu("s_add_u32", sXo, sXo, WS_PRG)
            e.salu("s_lshr_b32", sT, S(2), 3)
            e.salu("s_lshl_b32", sT, sT, 2)
            e.valu("v_mov_b32", vSlot, sT)
            e.salu("s_mov_b32", sTb, 0)
        e.waitcnt(lgkm=0)
        e.barrier()

    sCnt = sNeed
    e.raw("L_ld_prod:")
    e.salu("s_mov_b32", sO1, 0)
    e.salu("s_cmp_lt_u32", S(2), NQP)
    e.salu("s_cbranch_scc0", "L_ld_wo0")
    e.salu("s_mov_b32", sSrc[2], 6144)
    e.salu("s_mov_b32", sLk, STAGE)
    e.salu("s_mov_b32", sCnt, 1)
    e.waitcnt(lgkm=0)
    st.mark(4)
    e.salu("s_mov_b64", sSrc[0:2], pQ)
    e.salu("s_call_b64", sRet, "L_ld_tiles")
    e.salu("s_branch", "L_ld_wq")
    e.raw("L_ld_tiles:")
    for h in range(2):
        e.salu("s_mov_b32" if h == 0 else "s_add_u32", M0, *([sLk] if h == 0 else [sLk, 3072]))
        e.salu("s_add_u32", sLk if h else sT2, sLk if h else sO1, TILE if h else 3072)
        for i in range(3):
            e.buf_load_lds(vDc[i], sSrc, sT2 if h else sO1, offset=1024 * i)
    e.salu("s_add_u32", sO1, sO1, TILE)
    e.salu("s_sub_u32", sCnt, sCnt, 1)
    e.salu("s_and_b32", sT, sCnt, 3)
    e.salu("s_cselect_b32", sT, 0, 2 * TILE)
    e.salu("s_add_u32", sLk, sLk, sT)
    e.salu("s_cmp_lg_u32", sCnt, 0)
    e.salu("s_cbranch_scc1", "L_ld_tiles")
    e.salu("s_setpc_b64", sRet)
    e.raw("L_ld_wq:")
    if opt.get("pdbg"):
        st.mark(6)
    e.salu("s_mov_b64", sSrc[0:2], pWq)
    e.salu("s_mov_b32", sSrc[2], 73728)
    e.raw("L_ld_w12:")
    e.salu("s_mov_b32", sO1, 0)
    e.salu("s_mov_b32", sLk, RING0 + wslot(0) * TILE)
    e.salu("s_mov_b32", sCnt, 4)
    e.salu("s_call_b64", sRet, "L_ld_tiles")
    if opt.get("pdbg"):
        st.mark(7)
    init(0)
    if opt.get("pdbg"):
        st.mark(9)
    e.waitcnt(vm=24)
    publish(S_WL, 1)
    st.mark(5)
    e.salu("s_mov_b32", sCnt, 8)
    e.salu("s_call_b64", sRet, "L_ld_tiles")
    if opt.get("pdbg"):
        st.mark(11)
    e.salu("s_cmp_ge_u32", S(2), NQP)
    e.salu("s_cbranch_scc1", "L_ld_w3")
    e.salu("s_mov_b64", sSrc[0:2], pWk)
    e.salu("s_mul_i32", sO1, S(2), 4 * TILE)
    e.salu("s_mov_b32", sCnt, 4)
    e.salu("s_call_b64", sRet, "L_ld_tiles")
    e.raw("L_ld_w3:")
    e.waitcnt(vm=24)
    publish(S_WL, 2)
    st.mark(1)
    e.salu("s_branch", "L_ld_stepp")
    e.raw("L_ld_wo0:")
    e.salu("s_mov_b32", sSrc[2], 73728)
    e.valu("v_lshrrev_b32", vt, 3, lane)
    e.valu("v_mul_u32_u24", vt, 384, vt)
    e.valu("v_and_b32", vt2, 7, lane)
    e.valu("v_lshl_add_u32", vt, vt2, 4, vt)
    e.salu("s_sub_u32", sT2, S(2), NQP)
    e.salu("s_lshl_b32", sT2, sT2, 7)
    e.salu("s_mov_b32", sT, WOB)
    e.waitcnt(lgkm=0)
    st.mark(4)
    e.salu("s_mov_b64", sSrc[0:2], pWo)
    e.label("L_ld_wo")
    e.salu("s_mov_b32", M0, sT)
    e.salu("s_add_u32", sT, sT, 1024)
    e.buf_load_lds(vt, sSrc, sT2)
    e.salu("s_add_u32", sT2, sT2, 3072)
    e.salu("s_cmp_lt_u32", sT, WOB + 24576)
    e.salu("s_cbranch_scc1", "L_ld_wo")
    e.salu("s_mov_b64", sSrc[0:2], pWv)
    e.salu("s_branch", "L_ld_w12")
    e.raw("L_ld_norm:")
    init(1)
    lk.at(1, vt, vt2)

    PD = opt.get("pd", 6)
    FLG = {0: "", 1: "sc1", 2: "sc0 sc1", 3: "sc1 nt", 4: "sc0 sc1 nt", 5: "nt"}
    LFL, PFL, SFL = FLG[opt.get("lfl", 1)], FLG[opt.get("pfl", 1)], FLG[opt.get("sfl", 1)]
    WFL = {0: "", 1: "sc1", 2: "sc0", 3: "nt"}[opt.get("wfl", 1)]
    WVO = [[V(112 + 12 * kk + 4 * t3, 4) for t3 in range(3)] for kk in range(6)]

    def stream(D, tag):
        e.label(f"L_ld_step{tag}")
        e.salu("s_cmp_lg_u32", sK, 0)
        e.salu("s_cbranch_scc1", f"L_ld_fine{tag}")
        e.salu("s_mul_i32", sO1, sH, 6144)
        e.salu("s_lshr_b32", sT, sH, 4)
        e.salu("s_mul_i32", sO0, sT, 393216)
        e.salu("s_and_b32", sT, sH, 15)
        e.salu("s_mul_i32", sT, sT, 12288)
        e.salu("s_add_u32", sO0, sO0, sT)
        e.salu("s_add_u32", sH, sH, 1024)
        e.salu("s_mov_b32", sSrc[0], pF1[0])
        e.salu("s_mov_b32", sSrc[1], pF1[1])
        e.salu("s_mov_b32", sSrc[2], 25165824)
        e.salu("s_mov_b32", sBase, sO1)
        e.salu("s_mov_b32", sWst, 6144)
        e.salu("s_mov_b32", sHalf, 3072)
        for i in range(3):
            e.valu("v_mov_b32", vD[i], vDc[i])
        e.salu("s_branch", f"L_ld_issue{tag}")
        e.raw(f"L_ld_fine{tag}:")
        e.salu("s_mov_b32", sSrc[0], pF0[0])
        e.salu("s_mov_b32", sSrc[1], pF0[1])
        e.salu("s_mov_b32", sSrc[2], 100663296)
        e.salu("s_sub_u32", sT, sK, 1)
        e.salu("s_lshr_b32", sT2, sT, 1)
        e.salu("s_mul_i32", sT2, sT2, 196608)
        e.salu("s_and_b32", sT, sT, 1)
        e.salu("s_mul_i32", sT, sT, 384)
        e.salu("s_add_u32", sBase, sO0, sT2)
        e.salu("s_add_u32", sBase, sBase, sT)
        e.salu("s_mov_b32", sWst, 12288)
        e.salu("s_mov_b32", sHalf, 6144)
        for i in range(3):
            e.valu("v_mov_b32", vD[i], vDf[i])
        e.raw(f"L_ld_issue{tag}:")
        e.salu("s_mul_i32", sLk, sSlot, TILE)
        e.salu("s_add_u32", sLk, sLk, RING0)
        e.salu("s_sub_i32", sNeed, sStep, NSLOT - 1)
        for w in range(4):
            ok = newlabel("free")
            e.salu("s_cmp_ge_i32", sCons[w], sNeed)
            e.salu("s_cbranch_scc1", ok)
            e.begin_cond()
            e.salu("s_mov_b32", sW, w)
            e.salu("s_call_b64", sRet, "L_ld_wait")
            e.salu("s_mov_b32", sCons[w], sT)
            e.end_cond()
            e.raw(f"{ok}:")
            for h in range(2):
                e.salu("s_add_u32", M0, sLk, w * WAVE_RING + 3072 * h)
                if h == 0:
                    e.salu("s_mov_b32", sT2, sBase)
                else:
                    e.salu("s_add_u32", sT2, sBase, sHalf)
                for i in range(3):
                    e.buf_load_lds(vD[i], sSrc, sT2, offset=1024 * i, flags="nt")
                if h == 0 and tag == "" and opt.get("mid"):
                    e.waitcnt(vm=opt["mid"])
            e.salu("s_add_u32", sBase, sBase, sWst)
            e.salu("s_add_i32", sVal, sStep, ((w - D) >> 2) + 1)
            e.salu("s_max_i32", sVal, sVal, 0)
            e.waitcnt(vm=opt.get("vmw", 6 * D) if tag == "" else 6 * D)
            publish(S_LANDED + 4 * ((w - D) & 3), sVal)
            if tag == "p" and w == opt.get("w3at", 1):
                lb_ = newlabel("w3")
                e.salu("s_cmp_lg_u32", sStep, 0)
                e.salu("s_cbranch_scc1", lb_)
                e.waitcnt(vm=6 * (w + 1))
                publish(S_WL, 3)
                e.raw(f"{lb_}:")
        e.salu("s_add_u32", sK, sK, 1)
        e.salu("s_cmp_eq_u32", sK, 5)
        e.salu("s_cselect_b32", sK, 0, sK)
        e.salu("s_add_u32", sSlot, sSlot, 1)
        e.salu("s_cmp_eq_u32", sSlot, NSLOT)
        e.salu("s_cselect_b32", sSlot, 0, sSlot)
        if tag == "p":
            e.salu("s_cmp_lg_u32", sStep, 1)
            e.salu("s_cbranch_scc1", "L_ld_noiss")
            e.begin_cond()
            lds_spin(e, vZ, S_ISS, vt, sT, 4)
            e.end_cond()
            e.raw("L_ld_noiss:")
        if stamps and opt.get("stepst", 0):
            e.smem("s_memrealtime s[90:91]", S(90, 2))
            e.salu("s_lshl_b32", sT, sStep, 2)
            e.salu("s_add_u32", sT, sT, STEPST)
            e.valu("v_mov_b32", vt2, sT)
            e.waitcnt(lgkm=0)
            e.valu("v_mov_b32", vt, S(90))
            e.ds_write("ds_write_b32", vt2, vt, 0)
        e.salu("s_add_u32", sStep, sStep, 1)
        if ADAPT:
            A0 = opt.get("afrom", 9)
            e.salu("s_cmp_ge_u32", sStep, 5 * NITER)
            e.salu("s_cbranch_scc1", f"L_ld_done{tag}")
            e.salu("s_cmp_lt_u32", sStep, A0)
            e.salu("s_cbranch_scc1", f"L_ld_step{tag}")
            e.salu("s_cmp_lg_u32", sStep, A0)
            e.salu("s_cbranch_scc1", f"L_ld_tg{tag}")
            lds_spin(e, vZ, S_QKRDY, vt, sT, 1)
            e.ds_read("ds_read_b32", vt, vZ, TAGS)
            e.waitcnt(lgkm=0)
            e.valu("v_readfirstlane_b32", sTb, vt)
            e.nop(3)
            e.salu("s_lshl_b32", sTb, sTb, 16)
            e.valu("v_mov_b32", vTk[0], -1)
            e.valu("v_mov_b32", vTk[1], -1)
            e.raw(f"L_ld_tg{tag}:")
            e.salu("s_add_u32", sT, sTb, sStep)
            e.salu("s_sub_u32", sT2, sT, 2)
            e.valu("v_mov_b32", vOwn, sT)
            e.salu("s_mov_b64", EXEC, 1)
            e.buf_store("buffer_store_dword", vOwn, vSlot, sPrg, sXo)
            e.salu("s_mov_b32", S(61), 0)
            e.salu("s_mov_b32", S(60), -1)
            e.salu("s_mov_b64", EXEC, S(60, 2))
            e.salu("s_bitcmp1_b32", sStep, 0)
            e.salu("s_cbranch_scc1", f"L_ld_odd{tag}")
            for par in range(2):
                if par:
                    e.raw(f"L_ld_odd{tag}:")
                e.valu("v_subrev_u32", vt, sT2, vTk[par])
                e.buf_load("buffer_load_dword", vTk[par], vLane4, sPrg, sXo, flags="sc1")
                if not par:
                    e.salu("s_branch", f"L_ld_tk{tag}")
            e.raw(f"L_ld_tk{tag}:")
            e.valu("v_cmp_gt_u32", VCC, 32, vt)
            e.salu("s_mov_b64", EXEC, -1)
            e.nop(1)
            e.salu("s_bcnt1_i32_b64", sT, VCC)
            e.salu("s_cmp_gt_u32", sT, ADAPT)
            e.salu("s_cbranch_scc1", "L_ld_stepp")
            e.salu("s_cmp_lt_u32", sStep, A0 + 2)
            e.salu("s_cbranch_scc1", f"L_ld_step{tag}")
            e.salu("s_branch", "L_ld_step")
            e.raw(f"L_ld_done{tag}:")
        else:
            e.salu("s_cmp_lt_u32", sStep, 5 * NITER)
            e.fence()
            e.salu("s_cbranch_scc1", f"L_ld_step{tag}")
        st.mark(2)
        srd(e, sWS, pWS, 0x1000000)
        e.valu("v_lshlrev_b32", vt2, 4, lane)
        lds_spin(e, vZ, S_WVL, vt, sT, 1)
        NL = 0 if opt.get("nolf") else 18
        for t3 in range(3):
            for kk in range(6):
                if NL:
                    e.salu("s_mov_b32", sT2, WS_WVO + ((9 + t3) * 6 + kk) * 1024)
                    e.buf_load("buffer_load_dwordx4", WVO[kk][t3], vt2, sWS, sT2, flags=WFL)
        for i in range(80 - D, 80):
            e.waitcnt(vm=6 * (79 - i) + NL)
            publish(S_LANDED + 4 * (i & 3), (i >> 2) + 1)
        st.mark(3)
        lk.at(3, V(14), V(15))
        if stamps:
            e.salu("s_getreg_b32", S(80), "hwreg(HW_REG_XCC_ID)")
            if opt.get("stepst", 0):
                e.valu("v_add_u32", V(14), STEPST, vLane4)
                e.ds_read("ds_read_b32", vt, V(14), 0)
                e.salu("s_lshl_b32", sT, S(2), 8)
                e.salu("s_add_u32", sT, sT, WS_STAMP + 0x40000)
                e.waitcnt(lgkm=0)
                e.buf_store("buffer_store_dword", vt, vLane4, sWS, sT)
        e.salu("s_setprio", 0)
        e.salu("s_mov_b32", S(36), 3)
        e.valu("v_mov_b32", V(11), 0)
        e.valu("v_and_b32", V(1), 15, lane)
        e.fence()
        e.salu("s_branch", "L_tail")

    stream(opt.get("depth", 4), "")

    stream(PD, "p")

    e.raw("L_ld_wait:")
    e.salu("s_lshl_b32", sT, sW, 2)
    e.valu("v_mov_b32", vt2, sT)
    e.ds_read("ds_read_b32", vt, vt2, S_CONS)
    e.waitcnt(lgkm=0)
    e.valu("v_readfirstlane_b32", sT, vt)
    e.nop(1)
    e.salu("s_cmp_ge_i32", sT, sNeed)
    e.salu("s_cbranch_scc1", "L_ld_wait_ret")
    if stamps:
        e.salu("s_add_u32", S(76), S(76), 1)
        e.salu("s_mov_b32", S(78), sStep)
    lds_spin(e, vt2, S_CONS, vt, sT, sNeed)
    e.raw("L_ld_wait_ret:")
    e.fence()
    e.salu("s_setpc_b64", sRet)

    e.w.clear(); e.cread.clear(); e.stread.clear()
    e.raw("L_compute:")
    vSy = V(1)
    vPc = V(2)
    vPoll = V(3)
    Gx = V(4, 4)
    vA = [V(8), V(9)]
    vT = [V(10 + k) for k in range(4)]
    vL2 = V(14, 2)
    vCs2 = V(16, 2)
    vNm2 = V(18, 2)
    vOne = V(20)
    tC = V(21)
    tA, tB = V(22), V(23)
    vOnes = V(24, 4)
    Qk = [V(28 + 4 * k, 4) for k in range(6)]
    acc = [V(52 + 4 * k, 4) for k in range(12)]
    A1 = [V(100 + 4 * k, 4) for k in range(6)]
    A0 = [V(124 + 4 * k, 4) for k in range(6)]
    T0 = [V(148 + 6 * k, 4) for k in range(12)]
    T1 = [V(152 + 6 * k, 2) for k in range(12)]
    TH = [V(150 + 6 * k, 4) for k in range(12)]
    Sc, Uc = V(220, 4), V(224, 4)
    Sx, Ux, SSx = V(228, 4), V(232, 4), V(236, 4)
    pc = V(240, 4)
    Pf = V(244, 4)
    pp = V(248, 4)
    mu2 = V(252, 2)
    vM = V(254)
    ss1 = V(255)
    X = Gx
    sWS = S(32, 4)
    sLds = S(36)
    sT, sT2 = S(40), S(42)
    sIt = S(41)
    sInv2, sEps2 = S(44, 2), S(46, 2)
    sInv, sEps = sInv2[0], sEps2[0]
    sRet = S(48, 2)
    sThr = S(50)
    sPc, sLand = S(51), S(52)
    sSl, sDl, sTile = S(54), S(55), S(56)
    sM1, sM2, sMd = S(58, 2), S(60, 2), S(38, 2)
    tmp = [V(228 + k) for k in range(12)]
    lq = LQ(e)
    EARLY = opt.get("early", 2)
    GRAM = opt.get("gram", 2)
    sEa = S(57)

    e.salu("s_mul_i32", sLds, sWave, WAVE_RING)
    e.salu("s_add_u32", sLds, sLds, RING0)
    if opt.get("cprio", 1):
        e.salu("s_setprio", opt.get("cprio", 1))
    e.barrier()
    j, g = tmp[0], tmp[1]
    e.valu("v_and_b32", j, 15, lane)
    e.valu("v_lshrrev_b32", g, 4, lane)
    afrag_addrs(e, j, g, sLds, vA, tmp[2], tmp[3])
    rp, c4, p_ = tmp[2], tmp[3], tmp[4]
    e.valu("v_lshrrev_b32", rp, 2, j)
    e.valu("v_and_b32", c4, 3, j)
    e.valu("v_lshl_add_u32", p_, g, 2, rp)
    e.valu("v_mul_u32_u24", tmp[5], 384, p_)
    e.valu("v_lshl_add_u32", tmp[5], c4, 3, tmp[5])
    e.valu("v_add_u32", tmp[5], sLds, tmp[5])
    e.valu("v_and_b32", tmp[6], 6, p_)
    for q in range(4):
        e.valu("v_xor_b32", tmp[7], 2 * q, tmp[6])
        e.valu("v_lshl_add_u32", vT[q], tmp[7], 4, tmp[5])
    vQa = [Pf[0], Pf[1]]
    e.valu("v_subrev_u32", vQa[0], sLds, vA[0])
    e.valu("v_subrev_u32", vQa[1], sLds, vA[1])
    for k in range(4):
        e.valu("v_mov_b32", vOnes[k], 0x3F803F80)
        e.valu("v_mov_b32", pc[k], 0)
        e.valu("v_mov_b32", pp[k], 0)
    e.valu("v_mov_b32", vOne, 1.0)
    for k in range(2):
        e.salu("s_mov_b32", sInv2[k], 1.0 / 192.0)
        e.salu("s_mov_b32", sEps2[k], 1.0e-5)
        e.salu("s_mov_b32", sM1[k], 0xAAAAAAAA)
        e.salu("s_mov_b32", sM2[k], 0xCCCCCCCC)
    e.salu("s_mov_b32", sMd[0], 0x00F0000F)
    e.salu("s_mov_b32", sMd[1], 0xF0000F00)
    e.salu("s_mov_b32", sThr, THR)
    e.salu("s_mov_b32", sIt, 0)
    e.salu("s_mov_b32", sPc, 0)
    e.salu("s_mov_b32", sLand, 0)
    e.salu("s_mov_b32", sSl, 0)
    e.salu("s_mov_b32", sTile, TILE)
    e.salu("s_lshl_b32", sT, sWave, 2)
    e.valu("v_mov_b32", vSy, sT)
    e.waitcnt(lgkm=0)
    srd(e, sWS, pWS, 0x1000000)
    e.salu("s_cmp_lt_u32", S(2), NQP)
    e.salu("s_cbranch_scc1", "L_qkprod")
    e.salu("s_cmp_lt_u32", S(2), NPR)
    e.salu("s_cbranch_scc1", "L_wvprod")
    e.label("L_c_start")

    def wait_piece(sleep=1):
        e.salu("s_add_u32", sPc, sPc, 1)
        have = newlabel("have")
        e.salu("s_cmp_ge_u32", sLand, sPc)
        e.salu("s_cbranch_scc1", have)
        e.begin_cond()
        lds_spin(e, vSy, S_LANDED, vPoll, sLand, sPc, sleep=sleep)
        e.end_cond()
        e.raw(f"{have}:")

    def rot_ops():
        def sc():
            e.salu("s_add_u32", sSl, sSl, 1)
            e.salu("s_cmp_eq_u32", sSl, NSLOT)
            e.salu("s_cselect_b32", sDl, -(NSLOT - 1) * TILE, sTile)
            e.salu("s_cselect_b32", sSl, 0, sSl)
        return (sc, [lambda a_=a_: e.valu("v_add_u32", a_, sDl, a_) for a_ in vA] + [lambda: e.valu("v_mov_b32", vPc, sPc)],
                [lambda a_=a_: e.valu("v_add_u32", a_, sDl, a_) for a_ in vT])

    def poll_ahead():
        if EARLY:
            e.ds_read("ds_read_b32", vPoll, vSy, S_LANDED)
            lq.add("p")

    def release(done=False):
        if not done:
            poll_ahead()
            sc, fa, ft = rot_ops()
            sc()
            for f_ in fa + ft:
                f_()
        lq.drain()
        e.ds_write("ds_write_b32", vSy, vPc, S_CONS)
        lq.add()

    def early(AF, again=False):
        if not EARLY:
            return
        lb_ = newlabel("early")
        e.valu("v_readfirstlane_b32", sLand, vPoll)
        e.salu("s_mov_b32", sEa, 0)
        e.nop(1)
        e.salu("s_cmp_gt_u32", sLand, sPc)
        e.salu("s_cbranch_scc0", lb_)
        e.begin_cond()
        e.salu("s_mov_b32", sEa, 1)
        a_reads(AF)
        e.end_cond()
        e.raw(f"{lb_}:")
        lq.q = []
        if again:
            e.ds_read("ds_read_b32", vPoll, vSy, S_LANDED)

    def early2(AF):
        lb_ = newlabel("early")
        e.waitcnt(lgkm=0)
        e.valu("v_readfirstlane_b32", sLand, vPoll)
        e.salu("s_cmp_lg_u32", sEa, 0)
        e.salu("s_cbranch_scc1", lb_)
        e.salu("s_cmp_gt_u32", sLand, sPc)
        e.salu("s_cbranch_scc0", lb_)
        e.begin_cond()
        e.salu("s_mov_b32", sEa, 1)
        a_reads(AF)
        e.end_cond()
        e.raw(f"{lb_}:")
        lq.q = []

    def begin_piece(AF, sleep=1):
        if not EARLY:
            wait_piece(sleep)
            a_reads(AF)
            return
        lb_ = newlabel("begun")
        e.salu("s_add_u32", sPc, sPc, 1)
        e.salu("s_cmp_lg_u32", sEa, 0)
        e.salu("s_cbranch_scc1", lb_)
        e.begin_cond()
        lds_spin(e, vSy, S_LANDED, vPoll, sLand, sPc, sleep=sleep)
        a_reads(AF)
        e.end_cond()
        e.raw(f"{lb_}:")

    def a_reads(AF):
        for kk in range(6):
            e.ds_read("ds_read_b128", AF[kk], vA[kk & 1], (kk >> 1) * 128)
            lq.add(("a", kk))

    def tr_read(dst, cb):
        e.ds_read("ds_read_b64_tr_b16", dst, vT[cb & 3], (cb >> 2) * 128)
        lq.add(("t", cb))

    def ones_read(dst):
        e.ds_read("ds_read_b64", dst, tC, ONES)
        lq.add()

    def diag(G, out):
        e.valu("v_cndmask_b32", tA, G[0], G[1], sM1)
        e.valu("v_cndmask_b32", tB, G[2], G[3], sM1)
        e.valu("v_cndmask_b32", out, tA, tB, sM2)

    def sumsq_ops(SS):
        return [lambda: e.valu("v_cndmask_b32", tA, SS[0], SS[1], sM1),
                lambda: e.valu("v_cndmask_b32", tB, SS[2], SS[3], sM1),
                lambda: e.valu("v_cndmask_b32", Gx[0], Gx[0], Gx[1], sM1),
                lambda: e.valu("v_cndmask_b32", Gx[2], Gx[2], Gx[3], sM1),
                lambda: e.valu("v_cndmask_b32", tA, tA, tB, sM2),
                lambda: e.valu("v_cndmask_b32", Gx[0], Gx[0], Gx[2], sM2),
                ] + ([lambda: e.valu("v_add_f32", tA, tA, ss1),
                      lambda: e.valu("v_fma_f32", tA, Gx[0], 2.0, tA),
                      lambda: e.valu("v_cndmask_b32", tA, 0, tA, sMd)] if GRAM == 1 else
                     [lambda: e.valu("v_fma_f32", tA, Gx[0], 2.0, tA),
                      lambda: e.valu("v_cndmask_b32", tA, 0, tA, sMd),
                      lambda: e.valu("v_add_f32", tA, tA, ss1)])

    def stats_ops(U_, SS_, packed=True):
        fl = []
        if packed:
            for h in range(2):
                sl = slice(2 * h, 2 * h + 2)
                fl.append(lambda sl=sl: e.valu("v_pk_mul_f32", U_[sl], U_[sl], sInv2))
            for h in range(2):
                sl = slice(2 * h, 2 * h + 2)
                fl.append(lambda sl=sl: e.valu("v_pk_fma_f32", Gx[sl], U_[sl], U_[sl], sEps2, mods=NEG1))
            for h in range(2):
                sl = slice(2 * h, 2 * h + 2)
                fl.append(lambda sl=sl: e.valu("v_pk_fma_f32", SS_[sl], SS_[sl], sInv2, Gx[sl]))
        else:
            for r in range(4):
                fl.append(lambda r=r: e.valu("v_mul_f32", U_[r], sInv, U_[r]))
            for r in range(4):
                fl.append(lambda r=r: e.valu("v_fma_f32", Gx[r], Neg(U_[r]), U_[r], sEps))
            for h in range(2):
                sl = slice(2 * h, 2 * h + 2)
                fl.append(lambda sl=sl: e.valu("v_pk_fma_f32", SS_[sl], SS_[sl], sInv2, Gx[sl]))
        for r in range(4):
            fl.append(lambda r=r: e.valu("v_max_f32", SS_[r], sEps, SS_[r]))
        for r in range(4):
            fl.append(lambda r=r: e.valu("v_rsq_f32", SS_[r], SS_[r]))
        return fl

    def coarse_phase(first):
        if first:
            wait_piece()
            a_reads(A1)
        else:
            begin_piece(A1)
        if first:
            for cb in range(6):
                tr_read(T1[cb], cb)
        else:
            for cb in range(12):
                e.mfma(MF32, acc[cb], TH[cb], Pf, acc[cb])
                tr_read(T1[cb], cb)
        for kk in range(6):
            if first or kk == 0:
                lq.wait(("a", kk if first else 5))
            if GRAM == 1:
                e.mfma(MF32, SSx, A1[kk], A1[kk], SSx if kk else 0)
            e.mfma(MF32, Uc, A1[kk], vOnes, Uc if kk else 0)
            if first:
                tr_read(T1[6 + kk], 6 + kk)
        if not first:
            sc, fa, ft = rot_ops()
            sc()
            fl = fa + ft
            for kk in range(6):
                e.mfma(MF32, Sc, A1[kk], Qk[kk], Sc if kk else 0)
                for _ in range(2):
                    if fl:
                        fl.pop(0)()
                if kk == 3:
                    poll_ahead()
        release(done=not first)
        if not first:
            early(A0)
        if GRAM == 1:
            diag(SSx, ss1)
        else:
            for n in range(24):
                r = A1[n >> 2][n & 3]
                d = tA if n & 1 == 0 else tB
                e.valu("v_dot2_f32_bf16", d, r, r, d if n >= 2 else 0)
            e.valu("v_add_f32", ss1, tA, tB)

    def tile_dots(AF, U, SS, first, trs, waits, rel=True, nxt=None):
        trs = list(trs)
        hide = rel and not first
        if hide:
            sc, fa, ft = rot_ops()
        for kk in range(6):
            if waits:
                lq.wait(("a", kk))
            e.mfma(MF32, U, AF[kk], vOnes, U if kk else Uc)
            for _ in range(2 if kk in (1, 2) else 1):
                if trs:
                    tr_read(*trs.pop(0))
            if hide and kk == 0:
                sc()
            if hide and kk == 5:
                ft.pop(0)()
                ft.pop(0)()
            if not first:
                e.mfma(MF32, Sx, AF[kk], Qk[kk], Sx if kk else Sc)
            if trs:
                tr_read(*trs.pop(0))
            if hide and kk < 3:
                fa.pop(0)()
            if hide and kk == 4:
                poll_ahead()
            if hide and kk == 5:
                ft.pop(0)()
                ft.pop(0)()
        assert not trs
        if rel:
            release(done=hide)
        else:
            lq.drain()
        for n in range(24):
            r, r1 = AF[n >> 2][n & 3], A1[n >> 2][n & 3]
            e.valu("v_dot2_f32_bf16", tA, r, r, tA if n else ss1)
            e.valu("v_dot2_f32_bf16", tB, r, r1, tB if n else 0)
        e.valu("v_fma_f32", tA, tB, 2.0, tA)
        e.mfma(MFF, SS, tA, vOne, 0)
        if first:
            return
        if nxt is not None:
            early(nxt, again=not waits and EARLY > 1)
        for f_ in stats_ops(U, SS):
            f_()

    def tile_mfmas(AF, U, SS, first, trs, waits, rel=True, nxt=None):
        if GRAM == 0 or (GRAM == 2 and rel):
            return tile_dots(AF, U, SS, first, trs, waits, rel, nxt)
        trs = list(trs)
        for kk in range(6):
            if waits:
                lq.wait(("a", kk))
            e.mfma(MF32, SS, AF[kk], AF[kk], SS if kk else 0)
            if trs and kk >= 2:
                tr_read(*trs.pop(0))
            e.mfma(MF32, Gx, AF[kk], A1[kk], Gx if kk else 0)
            if trs:
                tr_read(*trs.pop(0))
        fl = sumsq_ops(SS)
        hide = rel and not first
        if hide:
            sc, fa, ft = rot_ops()
        for kk in range(6):
            e.mfma(MF32, U, AF[kk], vOnes, U if kk else Uc)
            if kk < 2:
                if trs:
                    tr_read(*trs.pop(0))
                if hide and kk == 0:
                    sc()
                    fa.pop(0)()
                elif hide:
                    fa.pop(0)()
                    fa.pop(0)()
                elif kk == 1:
                    e.nop(8 - 3 - (2 if waits else 0))
            else:
                for _ in range(2):
                    fl.pop(0)()
        assert not trs
        if first:
            while fl:
                fl.pop(0)()
            e.mfma(MFF, SS, tA, vOne, 0)
            release()
            return
        fl.pop(0)()
        e.mfma(MF32, Sx, AF[0], Qk[0], Sc)
        if hide:
            ft.pop(0)()
            ft.pop(0)()
        else:
            e.nop(1)
        e.mfma(MFF, SS, tA, vOne, 0)
        fl = stats_ops(U, SS, packed=False)
        for kk in range(1, 6):
            e.mfma(MF32, Sx, AF[kk], Qk[kk], Sx)
            if kk >= 2:
                for _ in range(2):
                    fl.pop(0)()
            elif hide:
                ft.pop(0)()
                ft.pop(0)()
            if hide and kk == 3:
                poll_ahead()
        if rel:
            release(done=True)
        else:
            lq.drain()
        if nxt is not None:
            early(nxt, again=not waits and EARLY > 1)
        while fl:
            fl.pop(0)()

    def tile_phase(t, first, AF=None, U=None, SS=None):
        AF = AF or A0
        U = U or Ux
        SS = SS or SSx
        half = t & 1
        if first:
            wait_piece()
            a_reads(AF)
        else:
            begin_piece(AF)
        nxt = None if first else (A1 if t == 3 else A0)
        if t == 2:
            e.valu("v_mov_b32", tC, 0)
            for cb in range(12):
                e.mfma(MF32, acc[cb], T0[cb], Pf, acc[cb])
                tr_read(T0[cb][0:2], cb)
                ones_read(T0[cb][2:4])
            e.label("L_tile2b")
            lq.wait(("a", 5))
            tile_mfmas(AF, U, SS, first, [], False, nxt=nxt)
        else:
            tile_mfmas(AF, U, SS, first, [(T0[cb][2 * half:2 * half + 2], cb) for cb in range(12)], True, nxt=nxt)

    def softmax(t, last=False):
        half = t & 1
        for h in range(2):
            sl = slice(2 * h, 2 * h + 2)
            e.valu("v_pk_fma_f32", Sx[sl], Ux[sl], vCs2, Sx[sl], mods=NEG1)
        for h in range(2):
            e.valu("v_pk_fma_f32", X[2 * h:2 * h + 2], Sx[2 * h:2 * h + 2], SSx[2 * h:2 * h + 2], vNm2)
        e.valu("v_max3_f32", tC, X[0], X[1], X[2])
        e.valu("v_max_f32", tC, tC, X[3])
        e.valu("v_cmp_lt_f32", VCC, sThr, tC)
        for r in range(4):
            e.valu("v_exp_f32", X[r], X[r])
        lbl = newlabel("sm")
        e.salu("s_cbranch_vccz", lbl)
        e.begin_cond()
        e.salu("s_call_b64", sRet, "L_rescale")
        e.end_cond()
        e.raw(f"{lbl}:")
        dst = pp if half == 0 else Sx
        for h in range(2):
            e.valu("v_pk_mul_f32", dst[2 * h:2 * h + 2], X[2 * h:2 * h + 2], SSx[2 * h:2 * h + 2])
            if not last:
                e.valu("v_pk_add_f32", vL2, vL2, X[2 * h:2 * h + 2])
        for h in range(2):
            if t == 0:
                e.valu("v_mov_b32", pc[2 * h], dst[2 * h])
                e.valu("v_mov_b32", pc[2 * h + 1], dst[2 * h + 1])
            else:
                e.valu("v_pk_add_f32", pc[2 * h:2 * h + 2], pc[2 * h:2 * h + 2], dst[2 * h:2 * h + 2])
        if not last:
            for h in range(2):
                sl = slice(2 * h, 2 * h + 2)
                if t == 3 and h == 0:
                    e.valu("v_pk_mul_f32", mu2, dst[sl], Ux[sl])
                else:
                    e.valu("v_pk_fma_f32", mu2, dst[sl], Ux[sl], mu2)
        if t == 1:
            e.valu("v_cvt_pk_bf16_f32", Pf[0], pp[0], pp[1])
            e.valu("v_cvt_pk_bf16_f32", Pf[1], pp[2], pp[3])
            e.valu("v_cvt_pk_bf16_f32", Pf[2], Sx[0], Sx[1])
            e.valu("v_cvt_pk_bf16_f32", Pf[3], Sx[2], Sx[3])
        if t == 2:
            e.valu("v_cvt_pk_bf16_f32", Pf[0], pp[0], pp[1])
            e.valu("v_cvt_pk_bf16_f32", Pf[1], pp[2], pp[3])
            e.valu("v_cvt_pk_bf16_f32", Pf[2], Neg(mu2[0]), Neg(mu2[1]))
            e.valu("v_mov_b32", Pf[3], 0)
            if EARLY > 1:
                early2(A0)
            for cb in range(12):
                e.mfma(MF32, acc[cb], T0[cb], Pf, acc[cb])
        if t == 3:
            e.valu("v_cvt_pk_bf16_f32", Pf[0], Sx[0], Sx[1])
            e.valu("v_cvt_pk_bf16_f32", Pf[1], Sx[2], Sx[3])
            e.valu("v_cvt_pk_bf16_f32", Pf[2], pc[0], pc[1])
            e.valu("v_cvt_pk_bf16_f32", Pf[3], pc[2], pc[3])

    U1, SS1, S1 = acc[6], acc[7], acc[8]
    coarse_phase(True)
    tile_phase(0, True)
    e.salu("s_sub_u32", sT, S(2), NQP)
    e.salu("s_cmp_ge_u32", sT, NPR - NQP)
    e.salu("s_cbranch_scc1", "L_nowf")
    e.begin_cond()
    srd(e, S(24, 4), pDbg, 256)
    e.salu("s_lshl_b32", sT, sT, 4)
    e.valu("v_mov_b32", tA, 1)
    e.waitcnt(vm=0)
    e.salu("s_mov_b64", EXEC, 1)
    e.buf_store("buffer_store_dword", tA, vSy, S(24, 4), sT, offset=DBG_WVO, flags="sc1")
    e.salu("s_mov_b64", EXEC, -1)
    st.mark(11)
    e.end_cond()
    e.raw("L_nowf:")
    tile_phase(1, True, AF=acc[:6], U=U1, SS=SS1)
    for f_ in stats_ops(Ux, SSx) + stats_ops(U1, SS1):
        f_()
    wait_piece()
    st.mark(6)
    lk.at(9, tA, tB)
    e.valu("v_mov_b32", tC, 0)
    lds_spin(e, tC, S_QKRDY, vPoll, sT, 1, sleep=1)
    lq.q = []
    st.mark(2)
    lk.at(2, tA, tB)
    st.cyc(8)
    for kk in range(6):
        e.ds_read("ds_read_b128", Qk[kk], vQa[kk & 1], QK + (kk >> 1) * 128)
    for kk in range(6):
        e.waitcnt(lgkm=5 - kk)
        e.mfma(MF32, Sc, A1[kk], Qk[kk], Sc if kk else 0)
        e.mfma(MF32, acc[9], vOnes, Qk[kk], acc[9] if kk else 0)
    for kk in range(6):
        e.mfma(MF32, Sx, A0[kk], Qk[kk], Sx if kk else Sc)
        e.mfma(MF32, S1, acc[kk], Qk[kk], S1 if kk else Sc)
    a_reads(A0)
    e.valu("v_mov_b32", vCs2[0], acc[9][0])
    e.valu("v_mov_b32", vCs2[1], acc[9][0])
    for (U_, SS_, S_) in ((Ux, SSx, Sx), (U1, SS1, S1)):
        for h in range(2):
            sl = slice(2 * h, 2 * h + 2)
            e.valu("v_pk_fma_f32", S_[sl], U_[sl], vCs2, S_[sl], mods=NEG1)
            e.valu("v_pk_mul_f32", S_[sl], S_[sl], SS_[sl])
    e.valu("v_max3_f32", vM, Sx[0], Sx[1], Sx[2])
    e.valu("v_max3_f32", tC, Sx[3], S1[0], S1[1])
    e.valu("v_max3_f32", vM, vM, S1[2], S1[3])
    e.valu("v_max_f32", vM, vM, tC)
    xg_reduce(e, "v_max_f32", vM, tA, tB)
    e.valu("v_cmp_le_f32_e64", VCC, "|%s|" % vM, sThr)
    e.valu("v_cndmask_b32_e64", vM, vM, 0, VCC)
    e.valu("v_sub_f32", vNm2[0], 0, vM)
    e.valu("v_sub_f32", vNm2[1], 0, vM)
    for S_ in (Sx, S1):
        for h in range(2):
            sl = slice(2 * h, 2 * h + 2)
            e.valu("v_pk_add_f32", S_[sl], S_[sl], vNm2)
        for r in range(4):
            e.valu("v_exp_f32", S_[r], S_[r])
    e.valu("v_pk_add_f32", vL2, Sx[0:2], Sx[2:4])
    e.valu("v_pk_add_f32", vL2, vL2, S1[0:2])
    e.valu("v_pk_add_f32", vL2, vL2, S1[2:4])
    for (SS_, S_) in ((SSx, Sx), (SS1, S1)):
        for h in range(2):
            sl = slice(2 * h, 2 * h + 2)
            e.valu("v_pk_mul_f32", S_[sl], S_[sl], SS_[sl])
    e.valu("v_cvt_pk_bf16_f32", Pf[0], Sx[0], Sx[1])
    e.valu("v_cvt_pk_bf16_f32", Pf[1], Sx[2], Sx[3])
    e.valu("v_cvt_pk_bf16_f32", Pf[2], S1[0], S1[1])
    e.valu("v_cvt_pk_bf16_f32", Pf[3], S1[2], S1[3])
    for h in range(2):
        sl = slice(2 * h, 2 * h + 2)
        e.valu("v_pk_add_f32", pc[sl], Sx[sl], S1[sl])
    e.valu("v_pk_mul_f32", mu2, Sx[0:2], Ux[0:2])
    e.valu("v_pk_fma_f32", mu2, Sx[2:4], Ux[2:4], mu2)
    e.valu("v_pk_fma_f32", mu2, S1[0:2], U1[0:2], mu2)
    e.valu("v_pk_fma_f32", mu2, S1[2:4], U1[2:4], mu2)
    e.valu("v_mov_b32", tC, 0)
    for cb in range(12):
        e.mfma(MF32, acc[cb], T0[cb], Pf, 0)
        tr_read(T0[cb][0:2], cb)
        ones_read(T0[cb][2:4])
    e.fence()
    e.salu("s_branch", "L_tile2b")
    lq.q = []

    e.raw("L_rescale:")
    e.nop(16)
    for r in range(4):
        e.valu("v_mul_f32", X[r], Sx[r], SSx[r])
    e.valu("v_max3_f32", tC, X[0], X[1], X[2])
    e.valu("v_max3_f32", tC, tC, X[3], vM)
    xg_reduce(e, "v_max_f32", tC, tA, tB)
    al = V(22, 2)
    e.valu("v_sub_f32", al[0], vM, tC)
    e.valu("v_exp_f32", al[0], al[0])
    e.valu("v_mov_b32", vM, tC)
    e.valu("v_sub_f32", vNm2[0], 0, tC)
    e.valu("v_sub_f32", vNm2[1], 0, tC)
    e.valu("v_mov_b32", al[1], al[0])
    for r in range(4):
        e.valu("v_sub_f32", X[r], X[r], tC)
    for r in range(4):
        e.valu("v_exp_f32", X[r], X[r])
    for q_ in [vL2, mu2, pc[0:2], pc[2:4], pp[0:2], pp[2:4]] + [a_[2 * h:2 * h + 2] for a_ in acc for h in range(2)]:
        e.valu("v_pk_mul_f32", q_, q_, al)
    e.fence()
    e.salu("s_setpc_b64", sRet)

    e.label("L_loop")
    if opt.get("nocmp"):
        e.drop.update((MF32, MFF, "ds_read_b128", "ds_read_b64_tr_b16", "ds_read_b64"))
    st.cyc(7)
    coarse_phase(False)
    tile_phase(0, False)
    softmax(0)
    tile_phase(1, False)
    softmax(1)
    tile_phase(2, False)
    softmax(2)
    e.salu("s_cmp_eq_u32", sIt, NITER - 1)
    e.salu("s_cbranch_scc1", "L_last")
    tile_phase(3, False)
    softmax(3)
    e.salu("s_add_u32", sIt, sIt, 1)
    e.fence()
    e.salu("s_branch", "L_loop")

    e.drop.clear()
    e.raw("L_last:")
    lq.q = [None]
    for a_ in acc:
        for r_ in a_.regs():
            e.w[r_] = (e.pos - 1, "xdl4", (a_.f, a_.i, a_.n))
    st.cyc(9)
    fr = [T0[cb][0:2] for cb in range(12)]
    vFr, vSt = fr[0][0], fr[0][1]
    vOn1, vZ0 = fr[1][0], fr[1][1]
    if opt.get("lprio", 2):
        e.salu("s_setprio", opt.get("lprio", 2))
    e.valu("v_and_b32", tA, 15, lane)
    e.valu("v_lshrrev_b32", tB, 4, lane)
    e.valu("v_lshlrev_b32", vFr, 4, lane)
    e.valu("v_lshlrev_b32", tB, 2, tB)
    e.valu("v_add_u32", vFr, sLds, vFr)
    e.valu("v_lshl_add_u32", vSt, tA, 4, tB)
    e.valu("v_add_u32", vSt, sLds, vSt)
    FINE = opt.get("fine", 0)
    if FINE:
        st.cyc(5)
    lq.q = []
    begin_piece(A0, sleep=0)
    if FINE:
        st.cyc(7)
    tile_mfmas(A0, Ux, SSx, False, [(T0[cb][2:4], cb) for cb in range(12)], True, rel=False)
    if FINE:
        st.cyc(8)
    softmax(3, True)
    st.mark(3)
    if FINE:
        st.cyc(11)

    def put(kk):
        pk = A1[kk]
        for q_ in range(2):
            e.valu("v_cvt_pk_bf16_f32", pk[2 * q_], acc[2 * kk + q_][0], acc[2 * kk + q_][1])
            e.valu("v_cvt_pk_bf16_f32", pk[2 * q_ + 1], acc[2 * kk + q_][2], acc[2 * kk + q_][3])
        e.ds_write("ds_write_b128", vFr, pk, FRAG + 1024 * kk)

    def flagval():
        e.salu("s_cmp_eq_u64", VCC, 0)
        e.salu("s_cselect_b32", sT, 1, 2)
        e.valu("v_mov_b32", vOn1, sT)
    fill = [lambda: e.valu("v_cmp_neq_f32", VCC, 0, vM),
            lambda: e.valu("v_add_f32", X[0], X[0], X[1]),
            lambda: e.valu("v_add_f32", X[2], X[2], X[3]),
            lambda: e.valu("v_add_f32", vL2[0], vL2[0], vL2[1]),
            lambda: e.valu("v_add_f32", X[0], X[0], X[2]),
            lambda: e.ds_write("ds_write_b32", vSt, vM, WST + 512),
            lambda: e.valu("v_add_f32", vL2[0], vL2[0], X[0]),
            flagval,
            lambda: e.ds_write("ds_write_b32", vSt, vL2[0], WST)]
    post = []
    for kk in range(6):
        pk = A1[kk]
        for q_ in range(2):
            for h in range(2):
                post.append(lambda kk=kk, q_=q_, h=h, pk=pk: e.valu("v_cvt_pk_bf16_f32", pk[2 * q_ + h], acc[2 * kk + q_][2 * h], acc[2 * kk + q_][2 * h + 1]))
        post.append(lambda kk=kk, pk=pk: e.ds_write("ds_write_b128", vFr, pk, FRAG + 1024 * kk))
    for cb in range(12):
        e.mfma(MF32, acc[cb], TH[cb], Pf, acc[cb])
        if cb < 3:
            for _ in range(3):
                fill.pop(0)()
        else:
            for _ in range(2 + (cb & 1 ^ 1)):
                post.pop(0)()
    while post:
        post.pop(0)()
    e.ds_write("ds_write_b32", vSy, vOn1, S_FR)
    st.mark(4)
    if FINE:
        st.cyc(1)
    e.salu("s_setprio", 0)

    sId = S(53)
    e.salu("s_cmp_lt_u32", S(2), NWG - NCB)
    e.salu("s_cbranch_scc1", "L_r_end")
    e.salu("s_sub_u32", sId, S(2), NWG - NCB)
    e.salu("s_and_b32", sT, sId, 7)
    e.salu("s_lshr_b32", sT2, sId, 4)
    e.salu("s_lshl_b32", sT2, sT2, 3)
    e.salu("s_or_b32", sT, sT, sT2)
    e.salu("s_lshl_b32", sT, sT, 1)
    e.salu("s_bfe_u32", sT2, sId, 0x10003)
    e.salu("s_or_b32", sId, sT, sT2)
    sQ, sO = S(24, 4), S(28, 4)
    srd(e, sQ, pQ, 6144)
    srd(e, sO, S(18, 2), 6144)
    nq, wgp, vP, vO, c0, c1, vW, vR, c2, vAlt, tg = [V(28 + k) for k in range(11)]
    e.valu("v_and_b32", nq, 3, lane)
    e.valu("v_lshrrev_b32", wgp, 2, lane)
    e.valu("v_lshlrev_b32", vP, 15, wgp)
    e.valu("v_lshl_add_u32", vP, nq, 4, vP)
    e.valu("v_lshlrev_b32", c0, 2, nq)
    e.ds_read("ds_read_b32", tg, c0, TAGS)
    e.salu("s_lshl_b32", sT, sWave, 19)
    e.salu("s_lshl_b32", sT2, sId, 6)
    e.salu("s_add_u32", sT, sT, sT2)
    sC = [S(4), S(5), S(6)]
    e.salu("s_and_b32", sT2, sId, 3)
    e.salu("s_mul_i32", sT2, sT2, 4 * 384)
    e.valu("v_mul_u32_u24", vO, 384, nq)
    e.valu("v_add_u32", vO, sT2, vO)
    e.salu("s_lshr_b32", sT2, sId, 5)
    e.salu("s_mul_i32", sC[2], sT2, 96)
    e.salu("s_bfe_u32", sT2, sId, 0x20002)
    e.salu("s_lshl_b32", sT2, sT2, 3)
    e.salu("s_add_u32", sC[2], sC[2], sT2)
    e.salu("s_bitcmp1_b32", sId, 4)
    e.salu("s_cselect_b32", sC[0], 36, 0)
    e.salu("s_cselect_b32", sC[1], 64, 4)
    e.salu("s_cselect_b32", sT2, 68, 32)
    e.salu("s_add_u32", sC[0], sC[0], sC[2])
    e.salu("s_add_u32", sC[1], sC[1], sC[2])
    e.salu("s_add_u32", sC[2], sC[2], sT2)
    qv = V(56, 3)
    for k in range(3):
        e.buf_load("buffer_load_dword", qv[k], vO, sQ, sC[k])
    e.valu("v_lshrrev_b32", c0, 4, lane)
    e.valu("v_lshlrev_b32", vW, 7, c0)
    e.valu("v_lshl_add_u32", vW, nq, 5, vW)
    e.salu("s_lshl_b32", sT2, sWave, 9)
    e.salu("s_add_u32", sT2, sT2, CEX)
    e.valu("v_add_u32", vW, sT2, vW)
    e.valu("v_and_b32", vR, 15, lane)
    e.valu("v_lshlrev_b32", vR, 5, vR)
    P = [V(40 + 4 * i, 4) for i in range(4)]
    R8 = V(60, 8)
    a6, L, M = R8[0:6], R8[6], R8[7]
    qf = V(120, 6)
    sBad = [S(44, 2), S(46, 2), S(58, 2), S(60, 2)]
    sLo1, sHi1 = S(38), S(39)
    e.valu("v_mov_b32", c0, 0)
    for k in range(8):
        e.valu("v_mov_b32", R8[k], 0)
    e.valu("v_mov_b32", vAlt, 0)
    for i in range(4):
        e.salu("s_mov_b64", sBad[i], -1)
    e.salu("s_mov_b32", sLo1, 0x00003F80)
    e.salu("s_mov_b32", sHi1, 0x3F800000)
    e.waitcnt(vm=0, lgkm=0)
    for k in range(3):
        e.valu("v_lshlrev_b32", qf[2 * k], 16, qv[k])
        e.valu("v_and_b32", qf[2 * k + 1], 0xFFFF0000, qv[k])
    if opt.get("gate", 1):
        lds_spin(e, c0, S_EMP, c1, sT2, 4)
    if opt.get("pre", 4):
        e.salu("s_mov_b64", EXEC, {1: 0x1, 2: 0x10001, 4: 0x1111, 8: 0x11111111}[opt.get("pre", 4)])
        e.label("L_tpre")
        e.buf_load("buffer_load_dword", c0, vP, sWS, sT, offset=12, flags=PFL)
        e.waitcnt(vm=0)
        e.valu("v_xor_b32", c0, c0, tg)
        e.valu("v_and_b32", c0, 0xFFFE, c0)
        e.valu("v_cmp_ne_u32", VCC, 0, c0)
        e.salu("s_cbranch_vccnz", "L_tpre")
        e.salu("s_mov_b64", EXEC, -1)
    e.label("L_tpoll")
    for i in range(4):
        lb_ = newlabel("tskip")
        e.salu("s_add_u32", sT2, sT, PSZ * i)
        e.salu("s_cmp_eq_u64", sBad[i], 0)
        e.salu("s_cbranch_scc1", lb_)
        e.begin_cond()
        e.salu("s_mov_b64", EXEC, sBad[i])
        e.buf_load("buffer_load_dwordx4", P[i], vP, sWS, sT2, flags=LFL)
        e.end_cond()
        e.raw(f"{lb_}:")
    e.waitcnt(vm=0)
    for i in range(4):
        lb_ = newlabel("tchk")
        e.salu("s_cmp_eq_u64", sBad[i], 0)
        e.salu("s_cbranch_scc1", lb_)
        e.begin_cond()
        e.salu("s_mov_b64", EXEC, sBad[i])
        e.valu("v_xor_b32", c2, P[i][3], tg)
        e.valu("v_and_b32", c0, 0xFFFE, c2)
        e.valu("v_and_b32", c1, 0xFFFF0000, P[i][3])
        e.valu("v_or_b32_dpp", c0, c0, c0, mods="quad_perm:[1,0,3,2] row_mask:0xf bank_mask:0xf")
        e.valu("v_or_b32_dpp", c0, c0, c0, mods="quad_perm:[2,3,0,1] row_mask:0xf bank_mask:0xf")
        e.valu("v_cmp_eq_u32", VCC, 0, c0)
        e.nop(1)
        e.salu("s_andn2_b64", sBad[i], sBad[i], VCC)
        e.salu("s_and_b64", EXEC, VCC, VCC)
        e.salu("s_cbranch_scc0", lb_)
        for k in range(6):
            e.valu("v_dot2_f32_bf16", a6[k], P[i][k >> 1], sHi1 if k & 1 else sLo1, a6[k])
        e.valu("v_add_f32", L, L, c1)
        e.valu("v_or_b32", vAlt, vAlt, c2)
        e.end_cond()
        e.raw(f"{lb_}:")
    e.salu("s_mov_b64", EXEC, -1)
    sCn, sPi, sMk = S(54), S(55), S(56, 2)
    e.salu("s_or_b64", sMk, sBad[0], sBad[1])
    e.salu("s_or_b64", VCC, sBad[2], sBad[3])
    e.salu("s_or_b64", sMk, sMk, VCC)
    e.salu("s_cbranch_scc0", "L_tfull")
    e.salu("s_mov_b32", sCn, 0)
    for i in (3, 2, 1, 0):
        e.salu("s_bcnt1_i32_b64", sT2, sBad[i])
        e.salu("s_cselect_b32", sPi, PSZ * i if i else 0, sPi)
        e.salu("s_cselect_b64", sMk, sBad[i], sMk)
        e.salu("s_add_u32", sCn, sCn, sT2)
    e.salu("s_cmp_le_u32", sCn, 4 * opt.get("tfew", 8))
    e.salu("s_cbranch_scc1", "L_tpoll")
    e.salu("s_ff1_i32_b64", sT2, sMk)
    e.salu("s_lshl_b64", EXEC, 1, sT2)
    e.salu("s_add_u32", sPi, sPi, sT)
    e.label("L_tprobe")
    e.buf_load("buffer_load_dword", c0, vP, sWS, sPi, offset=12, flags=PFL)
    e.waitcnt(vm=0)
    e.valu("v_xor_b32", c0, c0, tg)
    e.valu("v_and_b32", c0, 0xFFFE, c0)
    e.valu("v_cmp_ne_u32", VCC, 0, c0)
    e.salu("s_cbranch_vccnz", "L_tprobe")
    e.salu("s_mov_b64", EXEC, -1)
    e.salu("s_branch", "L_tpoll")
    e.label("L_tfull")
    st.mark(10)
    lk.at(6, c0, c1)
    e.valu("v_and_b32", c0, 1, vAlt)
    e.valu("v_cmp_ne_u32", VCC, 0, c0)
    e.salu("s_cbranch_vccnz", "L_tgen")
    e.label("L_trows")
    for k in (4, 8):
        for x in range(7):
            e.valu("v_add_f32_dpp", R8[x], R8[x], R8[x], mods=f"row_ror:{k} row_mask:0xf bank_mask:0xf")
    e.salu("s_mov_b32", S(46), 0x000F000F)
    e.salu("s_mov_b32", S(47), 0x000F000F)
    e.salu("s_mov_b64", EXEC, S(46, 2))
    e.ds_write("ds_write_b128", vW, R8[0:4], 0)
    e.ds_write("ds_write_b128", vW, R8[4:8], 16)
    e.salu("s_mov_b64", EXEC, -1)
    e.waitcnt(lgkm=0)
    e.barrier()
    e.salu("s_cmp_lg_u32", sWave, 0)
    e.salu("s_cbranch_scc1", "L_r_end")
    Xv = [V(80 + 8 * v, 8) for v in range(4)]
    for v in range(4):
        e.ds_read("ds_read_b128", Xv[v][4:8], vR, CEX + 512 * v + 16)
    for v in range(4):
        e.ds_read("ds_read_b128", Xv[v][0:4], vR, CEX + 512 * v)
    e.waitcnt(lgkm=4)
    e.valu("v_or3_b32", c0, Xv[0][7], Xv[1][7], Xv[2][7])
    e.valu("v_or_b32", c0, c0, Xv[3][7])
    e.valu("v_cmp_ne_u32", VCC, 0, c0)
    e.salu("s_cbranch_vccnz", "L_fgen")
    e.label("L_fsum")
    for h in (3, 2, 0, 1):
        sl = slice(2 * h, 2 * h + 2)
        if h == 0:
            e.waitcnt(lgkm=0)
        e.valu("v_pk_add_f32", R8[sl], Xv[0][sl], Xv[1][sl])
        e.valu("v_pk_add_f32", Xv[2][sl], Xv[2][sl], Xv[3][sl])
    for h in (3, 2, 0, 1):
        sl = slice(2 * h, 2 * h + 2)
        e.valu("v_pk_add_f32", R8[sl], R8[sl], Xv[2][sl])
    for k in (4, 8):
        for x in (6, 0, 1, 2, 3, 4, 5):
            e.valu("v_add_f32_dpp", R8[x], R8[x], R8[x], mods=f"row_ror:{k} row_mask:0xf bank_mask:0xf")
            if k == 8 and x == 1:
                e.valu("v_rcp_f32", L, L)
    for h in range(3):
        sl = slice(2 * h, 2 * h + 2)
        e.valu("v_pk_mul_f32", a6[sl], a6[sl], R8[6:8], mods="op_sel_hi:[1,0]")
    for h in range(3):
        e.valu("v_cvt_pk_bf16_f32", qv[h], a6[2 * h], a6[2 * h + 1])
    for h in range(3):
        e.valu("v_lshlrev_b32", a6[2 * h], 16, qv[h])
        e.valu("v_and_b32", a6[2 * h + 1], 0xFFFF0000, qv[h])
    for h in range(3):
        sl = slice(2 * h, 2 * h + 2)
        e.valu("v_pk_add_f32", a6[sl], a6[sl], qf[sl])
    e.salu("s_mov_b64", EXEC, 0xF)
    for h in range(3):
        e.valu("v_cvt_pk_bf16_f32", qv[h], a6[2 * h], a6[2 * h + 1])
        e.buf_store("buffer_store_dword", qv[h], vO, sO, sC[h])
    e.salu("s_mov_b64", EXEC, -1)
    st.mark(12)
    lk.at(7, c0, c1)
    lk.spend(c0, c1)
    e.label("L_r_end")
    st.dump(sWS, 14, [V(126), V(127)])
    e.salu("s_endpgm")

    e.raw("L_tgen:")
    e.nop(4)
    Fv = [V(112 + 2 * i, 2) for i in range(4)]
    tw, vE = V(70), V(71)
    e.valu("v_mov_b32", c0, 0)
    e.ds_read("ds_read_b64", V(72, 2), c0, TAGS)
    e.valu("v_lshlrev_b32", vE, 9, wgp)
    e.valu("v_lshl_add_u32", vE, nq, 3, vE)
    e.salu("s_and_b32", sT2, sId, 3)
    e.salu("s_lshl_b32", sT2, sT2, 5)
    e.salu("s_lshl_b32", sPi, sWave, 13)
    e.salu("s_add_u32", sPi, sPi, sT2)
    e.salu("s_add_u32", sPi, sPi, WS_E)
    e.waitcnt(lgkm=0)
    e.valu("v_lshl_or_b32", tw, V(73), 16, V(72))
    for i in range(4):
        e.valu("v_mov_b32", Fv[i][0], 0)
        e.valu("v_and_b32", c0, 1, P[i][3])
        e.valu("v_cmp_ne_u32", VCC, 0, c0)
        e.nop(1)
        e.salu("s_and_b64", EXEC, VCC, VCC)
        e.salu("s_cbranch_scc0", f"L_tg{i}e")
        e.label(f"L_tg{i}")
        e.buf_load("buffer_load_dwordx2", Fv[i], vE, sWS, sPi, offset=128 * i, flags="sc1")
        e.waitcnt(vm=0)
        e.valu("v_cmp_ne_u32", VCC, Fv[i][1], tw)
        e.salu("s_cbranch_vccnz", f"L_tg{i}")
        e.raw(f"L_tg{i}e:")
        e.salu("s_mov_b64", EXEC, -1)
    e.valu("v_max3_f32", M, Fv[0][0], Fv[1][0], Fv[2][0])
    e.valu("v_max_f32", M, M, Fv[3][0])
    for k in (4, 8):
        e.valu("v_max_f32_dpp", M, M, M, mods=f"row_ror:{k} row_mask:0xf bank_mask:0xf")
    xg_reduce(e, "v_max_f32", M, c0, c1)
    for k in range(7):
        e.valu("v_mov_b32", R8[k], 0)
    for i in range(4):
        e.valu("v_sub_f32", c2, Fv[i][0], M)
        e.valu("v_exp_f32", c2, c2)
        for k in range(7):
            if k & 1 or k == 6:
                e.valu("v_and_b32", c0, 0xFFFF0000, P[i][k >> 1])
            else:
                e.valu("v_lshlrev_b32", c0, 16, P[i][k >> 1])
            e.valu("v_fmac_f32", R8[k], c2, c0, rmw=True)
    e.fence()
    e.salu("s_branch", "L_trows")

    e.raw("L_fgen:")
    e.waitcnt(lgkm=0)
    e.valu("v_max3_f32", M, Xv[0][7], Xv[1][7], Xv[2][7])
    e.valu("v_max_f32", M, M, Xv[3][7])
    for v in range(4):
        e.valu("v_sub_f32", c0, Xv[v][7], M)
        e.valu("v_exp_f32", c0, c0)
        for k in range(7):
            e.valu("v_mul_f32", Xv[v][k], Xv[v][k], c0)
    e.fence()
    e.salu("s_branch", "L_fsum")

    e.w.clear(); e.cread.clear(); e.stread.clear()
    e.raw("L_qkprod:")
    pj, pg, pz, p0, p1 = V(28), V(29), V(30), V(31), V(32)
    vB = [V(34 + k) for k in range(4)]
    vTp = [V(38 + k) for k in range(3)]
    vTq = [V(41 + k) for k in range(3)]
    vXw = [V(44 + k) for k in range(3)]
    vL16 = V(47)
    qp = [V(52 + k) for k in range(24)]
    sCb = S(53)
    sCode = S(28, 4)
    e.salu("s_getpc_b64", sCode[0:2])
    e.salu("s_mov_b32", sCode[2], 4096)
    e.salu("s_mov_b32", sCode[3], 0x20000)
    e.valu("v_lshlrev_b32", p0, 6, lane)
    e.buf_load("buffer_load_dword", V(50), p0, sCode, 0)
    e.valu("v_and_b32", pj, 15, lane)
    e.valu("v_lshrrev_b32", pg, 4, lane)
    e.valu("v_mov_b32", pz, 0)
    e.valu("v_lshlrev_b32", vL16, 4, lane)
    e.valu("v_add_u32", vL16, QL, vL16)
    e.valu("v_mul_u32_u24", p0, 384, pj)
    e.valu("v_and_b32", p1, 1, pg)
    e.valu("v_lshl_add_u32", p0, p1, 3, p0)
    e.valu("v_add_u32", p0, STAGE, p0)
    e.valu("v_lshrrev_b32", p1, 1, pg)
    e.valu("v_and_b32", vB[3], 6, pj)
    e.valu("v_xor_b32", p1, p1, vB[3])
    for q in range(4):
        e.valu("v_xor_b32", vB[q], 2 * q, p1)
        e.valu("v_lshl_add_u32", vB[q], vB[q], 4, p0)
    e.valu("v_lshrrev_b32", p0, 2, pj)
    e.valu("v_lshl_add_u32", p0, pg, 2, p0)
    e.valu("v_and_b32", p1, 6, p0)
    e.valu("v_mul_u32_u24", p0, 384, p0)
    e.valu("v_and_b32", vTq[0], 3, pj)
    e.valu("v_lshl_add_u32", p0, vTq[0], 3, p0)
    for c in range(3):
        e.salu("s_mul_i32", sCb, sWave, 3)
        e.salu("s_add_u32", sCb, sCb, c)
        e.salu("s_and_b32", sT, sCb, 3)
        e.salu("s_lshl_b32", sT, sT, 1)
        e.valu("v_xor_b32", vTp[c], sT, p1)
        e.valu("v_lshl_add_u32", vTp[c], vTp[c], 4, p0)
        e.salu("s_lshr_b32", sT, sCb, 2)
        e.salu("s_lshl_b32", sT, sT, 7)
        e.salu("s_add_u32", sT, sT, RING0 + wslot(0) * TILE)
        e.valu("v_add_u32", vTp[c], sT, vTp[c])
        e.valu("v_add_u32", vTq[c], (wslot(8) - wslot(0)) * TILE, vTp[c])
        e.salu("s_lshr_b32", sT, sCb, 1)
        e.salu("s_lshl_b32", sT, sT, 10)
        e.salu("s_and_b32", sT2, sCb, 1)
        e.salu("s_lshl_b32", sT2, sT2, 3)
        e.salu("s_add_u32", sT, sT, sT2)
        e.valu("v_add_u32", vXw[c], sT, vL16)
    lds_spin(e, pz, S_WL, p0, sT, 1)
    st.mark(5)
    for kk in range(6):
        for hf in range(2):
            e.ds_read("ds_read_b64", V(52 + 4 * kk + 2 * hf, 2), vB[2 * (kk & 1) + hf], (kk >> 1) * 128)
    sm, one2 = V(76), V(77)
    mean, var = V(78, 2), V(80, 2)
    xs = [V(82, 2), V(84, 2)]
    e.valu("v_mov_b32", one2, 0x3F803F80)
    e.waitcnt(lgkm=0)
    if opt.get("lnfast", 1):
        for k in range(24):
            e.valu("v_dot2_f32_bf16", sm, qp[k], one2, sm if k else 0)
            e.valu("v_dot2_f32_bf16", var[0], qp[k], qp[k], var[0] if k else 0)
        for sw in ("v_permlane32_swap_b32", "v_permlane16_swap_b32"):
            e.valu("v_mov_b32", p0, sm)
            e.valu("v_mov_b32", p1, sm)
            e.valu("v_mov_b32", xs[0][0], var[0])
            e.valu("v_mov_b32", xs[0][1], var[0])
            e.valu(sw, p0, p1)
            e.valu(sw, xs[0][0], xs[0][1])
            e.valu("v_add_f32", sm, p0, p1)
            e.valu("v_add_f32", var[0], xs[0][0], xs[0][1])
        e.valu("v_mul_f32", mean[0], sInv, sm)
        e.valu("v_mul_f32", var[0], sInv, var[0])
        e.valu("v_fma_f32", var[0], Neg(mean[0]), mean[0], var[0])
        e.valu("v_max_f32", var[0], 0, var[0])
    else:
        for k in range(24):
            e.valu("v_dot2_f32_bf16", sm, qp[k], one2, sm if k else 0)
        xg_reduce(e, "v_add_f32", sm, p0, p1)
        e.valu("v_mul_f32", mean[0], sInv, sm)
        e.valu("v_mul_f32", mean[1], sInv, sm)
        for k in range(24):
            x = xs[k & 1]
            e.valu("v_lshlrev_b32", x[0], 16, qp[k])
            e.valu("v_and_b32", x[1], 0xFFFF0000, qp[k])
            e.valu("v_pk_add_f32", x, x, mean, mods="neg_lo:[0,1] neg_hi:[0,1]")
            if k == 0:
                e.valu("v_pk_mul_f32", var, x, x)
            else:
                e.valu("v_pk_fma_f32", var, x, x, var)
        e.valu("v_add_f32", var[0], var[0], var[1])
        xg_reduce(e, "v_add_f32", var[0], p0, p1)
        e.valu("v_mul_f32", var[0], sInv, var[0])
    bf16_round(e, mean[0])
    e.valu("v_mov_b32", mean[1], mean[0])
    bf16_round(e, var[0])
    e.valu("v_add_f32", var[0], 1.0e-5, var[0])
    bf16_round(e, var[0])
    e.valu("v_sqrt_f32", var[0], var[0])
    bf16_round(e, var[0])
    e.valu("v_rcp_f32", var[0], var[0])
    e.valu("v_mov_b32", var[1], var[0])
    for k in range(24):
        x = xs[k & 1]
        e.valu("v_lshlrev_b32", x[0], 16, qp[k])
        e.valu("v_and_b32", x[1], 0xFFFF0000, qp[k])
        e.valu("v_pk_add_f32", x, x, mean, mods="neg_lo:[0,1] neg_hi:[0,1]")
        e.valu("v_cvt_pk_bf16_f32", qp[k], x[0], x[1])
        e.valu("v_lshlrev_b32", x[0], 16, qp[k])
        e.valu("v_and_b32", x[1], 0xFFFF0000, qp[k])
        e.valu("v_pk_mul_f32", x, x, var)
        e.valu("v_cvt_pk_bf16_f32", qp[k], x[0], x[1])
    st.mark(10)
    lds_spin(e, pz, S_WL, p0, sT, 2)
    e.waitcnt(vm=0)
    if opt.get("pdbg"):
        st.mark(1)
    Fr = [[V(100 + 12 * kk + 4 * c, 4) for c in range(3)] for kk in range(6)]
    Dq = [V(88 + 4 * c, 4) for c in range(3)]
    for kk in range(6):
        for c in range(3):
            for hf in range(2):
                t = 2 * kk + hf
                base = vTp[c] if t < 8 else vTq[c]
                e.ds_read("ds_read_b64_tr_b16", Fr[kk][c][2 * hf:2 * hf + 2], base, (wslot(t) - wslot(0 if t < 8 else 8)) * TILE)
        if kk >= 2:
            e.waitcnt(lgkm=12)
            for c in range(3):
                e.mfma(MF32, Dq[c], Fr[kk - 2][c], V(52 + 4 * (kk - 2), 4), Dq[c] if kk - 2 else 0)
    for kk in (4, 5):
        e.waitcnt(lgkm=6 * (5 - kk))
        for c in range(3):
            e.mfma(MF32, Dq[c], Fr[kk][c], V(52 + 4 * kk, 4), Dq[c])
    for c in range(3):
        pk = V(76 + 2 * c, 2)
        e.valu("v_cvt_pk_bf16_f32", pk[0], Dq[c][0], Dq[c][1])
        e.valu("v_cvt_pk_bf16_f32", pk[1], Dq[c][2], Dq[c][3])
        e.ds_write("ds_write_b64", vXw[c], pk, 0)
    lds_inc(e, pz, p0, S_AUX)
    e.salu("s_cmp_ge_u32", sWave, 2)
    e.salu("s_cbranch_scc1", "L_qkp_done")
    if opt.get("pdbg"):
        st.mark(12)
    lds_spin(e, pz, S_WL, p0, sT, 3)
    if opt.get("pdbg"):
        st.mark(13)
    e.salu("s_mul_i32", sT, sWave, 2 * TILE)
    e.salu("s_add_u32", sT, sT, RING0 + wslot(12) * TILE - STAGE)
    for q in range(4):
        e.valu("v_add_u32", vB[q], sT, vB[q])
    for c in range(2):
        for kk in range(6):
            for hf in range(2):
                e.ds_read("ds_read_b64", V(100 + 24 * c + 4 * kk + 2 * hf, 2), vB[2 * (kk & 1) + hf], c * TILE + (kk >> 1) * 128)
    lds_spin(e, pz, S_AUX, p0, sT, 4)
    for kk in range(6):
        e.ds_read("ds_read_b128", V(52 + 4 * kk, 4), vL16, 1024 * kk)
    e.salu("s_lshl_b32", sT2, S(2), 1)
    e.salu("s_add_u32", sT2, sT2, sWave)
    e.salu("s_lshl_b32", sT2, sT2, 10)
    e.salu("s_add_u32", sT2, sT2, WS_QK)
    e.valu("v_lshlrev_b32", V(33), 4, lane)
    for kk in range(6):
        e.waitcnt(lgkm=5 - kk)
        for c in range(2):
            e.mfma(MF32, Dq[c], V(100 + 24 * c + 4 * kk, 4), V(52 + 4 * kk, 4), Dq[c] if kk else 0)
    lds_spin(e, pz, S_EMPT, p0, sT, 1)
    e.salu("s_mov_b32", sT, QSCALE)
    pk = V(76, 4)
    for c in range(2):
        for r in range(4):
            e.valu("v_mul_f32", Dq[c][r], sT, Dq[c][r])
        e.valu("v_cvt_pk_bf16_f32", pk[2 * c], Dq[c][0], Dq[c][1])
        e.valu("v_cvt_pk_bf16_f32", pk[2 * c + 1], Dq[c][2], Dq[c][3])
    for k in range(4):
        e.valu("v_min_u32", pk[k], -2, pk[k])
    e.buf_store("buffer_store_dwordx4", pk, V(33), sWS, sT2, flags="sc1")
    st.mark(11)
    e.label("L_qkp_done")
    lds_inc(e, pz, p0, S_ISS)
    e.waitcnt(lgkm=0)
    e.fence()
    e.salu("s_branch", "L_c_start")

    e.w.clear(); e.cread.clear(); e.stread.clear()
    e.raw("L_wvprod:")
    Bw = [V(28 + 4 * kd, 4) for kd in range(6)]
    Dv = [V(52 + 4 * t, 4) for t in range(12)]
    Av = [[V(100 + 24 * b_ + 4 * kd, 4) for kd in range(6)] for b_ in range(2)]
    w0, w1, wz, vTw = V(148), V(149), V(150), V(151)
    vAb = [[V(152), V(153)], [V(154), V(155)]]
    e.salu("s_getpc_b64", sCode[0:2])
    e.salu("s_mov_b32", sCode[2], 4096)
    e.salu("s_mov_b32", sCode[3], 0x20000)
    e.valu("v_lshlrev_b32", w0, 6, lane)
    e.buf_load("buffer_load_dword", V(156), w0, sCode, 0)
    e.valu("v_mov_b32", wz, 0)
    for b_ in range(2):
        for k in range(2):
            e.valu("v_add_u32", vAb[b_][k], RING0 + wslot(8 * b_) * TILE, vQa[k])
    e.valu("v_lshrrev_b32", w0, 4, lane)
    e.valu("v_bfe_u32", w1, lane, 2, 2)
    e.valu("v_lshl_add_u32", w0, w0, 3, w1)
    e.valu("v_and_b32", w1, 3, lane)
    e.valu("v_lshlrev_b32", w1, 3, w1)
    e.valu("v_lshl_add_u32", vTw, w0, 7, w1)
    e.salu("s_lshl_b32", sT, sWave, 5)
    e.salu("s_add_u32", sT, sT, WOB)
    e.valu("v_add_u32", vTw, sT, vTw)
    lds_spin(e, wz, S_WL, w0, sT, 1)
    for kd in range(6):
        for hf in range(2):
            e.ds_read("ds_read_b64_tr_b16", Bw[kd][2 * hf:2 * hf + 2], vTw, (32 * kd + 4 * hf) * 128)

    def wv_reads(t):
        return [lambda kd=kd: e.ds_read("ds_read_b128", Av[t & 1][kd], vAb[t >> 3][kd & 1], (wslot(t) - wslot(t & 8)) * TILE + (kd >> 1) * 128)
                for kd in range(6)]
    lds_spin(e, wz, S_WL, w0, sT, 2)
    e.waitcnt(vm=0)
    st.mark(5)
    for f_ in wv_reads(0):
        f_()
    for t in range(12):
        if t == 7:
            lds_spin(e, wz, S_WL, w0, sT, 3)
        nx = wv_reads(t + 1) if t < 11 else []
        for kd in range(6):
            e.waitcnt(lgkm=5)
            e.mfma(MF32, Dv[t], Av[t & 1][kd], Bw[kd], Dv[t] if kd else 0)
            if nx:
                nx.pop(0)()
            elif kd < 5:
                e.waitcnt(lgkm=4 - kd)
    lds_inc(e, wz, w0, S_ISS)
    m2 = V(158, 2)
    n2 = V(160, 2)
    for t in range(1, 12):
        e.valu("v_pk_add_f32", m2, Dv[0][0:2] if t == 1 else m2, Dv[t][0:2])
        e.valu("v_pk_add_f32", n2, Dv[0][2:4] if t == 1 else n2, Dv[t][2:4])
    e.valu("v_pk_add_f32", m2, m2, n2)
    e.valu("v_add_f32", m2[0], m2[0], m2[1])
    xg_reduce(e, "v_add_f32", m2[0], w0, w1)
    e.valu("v_mul_f32", m2[0], sInv, m2[0])
    e.salu("s_sub_u32", sT, S(2), NQP)
    e.salu("s_lshl_b32", sT, sT, 2)
    e.salu("s_add_u32", sT, sT, sWave)
    e.salu("s_mul_i32", sT, sT, 6144)
    e.salu("s_add_u32", sT, sT, WS_WVO)
    e.valu("v_lshlrev_b32", w0, 4, lane)
    for kk in range(6):
        pk = V(164 + 4 * kk, 4)
        for c in range(2):
            for h in range(2):
                x = Dv[2 * kk + c][2 * h:2 * h + 2]
                e.valu("v_pk_add_f32", x, x, m2, mods="op_sel_hi:[1,0] neg_lo:[0,1] neg_hi:[0,1]")
                e.valu("v_cvt_pk_bf16_f32", pk[2 * c + h], x[0], x[1])
        e.salu("s_add_u32", sT2, sT, 1024 * kk)
        e.buf_store("buffer_store_dwordx4", pk, w0, sWS, sT2, flags="sc1")
    st.mark(10)
    e.waitcnt(lgkm=0)
    e.nop(2)
    e.fence()
    e.salu("s_branch", "L_c_start")

    e.w.clear(); e.cread.clear(); e.stread.clear()
    e.raw("L_aux:")
    sA = S(36)
    sT, sT2, sT3 = S(37), S(38), S(39)
    sW0, sW1, sW2, sWS, sDbg = S(24, 4), S(28, 4), S(40, 4), S(32, 4), S(44, 4)
    sStg = S(48)
    j, g = V(1), V(2)
    vSl = V(3)
    vSt = V(4)
    vTr = [V(5 + k) for k in range(4)]
    vZ = V(11)
    vLn16 = V(12)
    vX = V(13)
    t0, t1 = V(14), V(15)
    e.salu("s_sub_u32", sA, sWave, 5)
    e.valu("v_mov_b32", vZ, 0)
    e.valu("v_and_b32", j, 15, lane)
    e.valu("v_lshrrev_b32", g, 4, lane)
    e.valu("v_lshlrev_b32", vLn16, 4, lane)
    for k in range(4):
        e.valu("v_mov_b32", V(16 + k), -1)
    e.waitcnt(lgkm=0)
    srd(e, sWS, pWS, 0x1000000)
    e.salu("s_cmp_ge_u32", S(2), NQP)
    e.salu("s_cbranch_scc1", "L_aux_noinv0")
    e.salu("s_cmp_lg_u32", sA, 1)
    e.salu("s_cbranch_scc1", "L_aux_noinv0")
    e.begin_cond()
    e.salu("s_lshl_b32", sT2, S(2), 11)
    e.salu("s_add_u32", sT2, sT2, WS_QK)
    for k in range(2):
        e.buf_store("buffer_store_dwordx4", V(16, 4), vLn16, sWS, sT2, offset=1024 * k, flags="sc1")
    e.smem("s_memrealtime s[52:53]", S(52, 2))
    e.waitcnt(lgkm=0)
    e.salu("s_mul_i32", S(54), S(52), 0x9E3779B1)
    e.salu("s_mov_b32", S(55), S(53))
    for r in range(3):
        e.salu("s_lshr_b64", S(56, 2), S(54, 2), 15 * r)
        e.salu("s_lshl_b32", sT3, S(56), 1)
        e.salu("s_and_b32", sT3, sT3, 0xFFFE)
        e.valu("v_mov_b32", V(20 + r), sT3)
    e.salu("s_mul_i32", sT3, S(54), 0x85EBCA6B)
    e.salu("s_lshr_b32", sT3, sT3, 16)
    e.salu("s_and_b32", sT3, sT3, 0xFFFE)
    e.valu("v_mov_b32", V(23), sT3)
    e.salu("s_lshl_b32", sT2, S(2), 7)
    e.salu("s_add_u32", sT2, sT2, WS_QK + 6144)
    e.salu("s_mov_b64", EXEC, 1)
    e.buf_store("buffer_store_dwordx4", V(20, 4), vZ, sWS, sT2, flags="sc1")
    e.salu("s_mov_b64", EXEC, -1)
    e.end_cond()
    e.raw("L_aux_noinv0:")
    e.barrier()
    srd(e, sDbg, pDbg, 256)
    e.salu("s_cmp_ge_u32", S(2), NQP)
    e.salu("s_cbranch_scc1", "L_aux_noinv")
    e.salu("s_cmp_lg_u32", sA, 1)
    e.salu("s_cbranch_scc1", "L_aux_noinv")
    e.begin_cond()
    e.valu("v_mov_b32", t0, 1)
    e.salu("s_lshl_b32", sT2, S(2), 5)
    e.waitcnt(vm=0)
    e.ds_write("ds_write_b32", vZ, t0, S_EMPT)
    e.salu("s_mov_b64", EXEC, 1)
    e.buf_store("buffer_store_dword", t0, vZ, sDbg, sT2, flags="sc1")
    e.salu("s_mov_b64", EXEC, -1)
    st.mark(8)
    e.end_cond()
    e.label("L_aux_noinv")

    e.salu("s_cmp_lt_u32", S(2), NQP)
    e.salu("s_cselect_b32", sT3, S_ISS - S_LANDED, 0)
    e.valu("v_mov_b32", t1, sT3)

    e.salu("s_cmp_lg_u32", sA, 0)
    e.salu("s_cbranch_scc1", "L_aux_w")
    vQw = [V(232 + k) for k in range(4)]
    QR = 208
    e.valu("v_mul_u32_u24", t0, 384, j)
    e.valu("v_and_b32", V(16), 1, g)
    e.valu("v_lshl_add_u32", t0, V(16), 3, t0)
    e.valu("v_lshrrev_b32", V(16), 1, g)
    e.valu("v_and_b32", vX, 6, j)
    e.valu("v_xor_b32", V(16), V(16), vX)
    for q in range(4):
        e.valu("v_xor_b32", vX, 2 * q, V(16))
        e.valu("v_lshl_add_u32", vQw[q], vX, 4, t0)
    e.valu("v_lshlrev_b32", vX, 5, lane)
    e.salu("s_cmp_lt_u32", S(2), NPR)
    e.salu("s_cselect_b32", sT2, 1, opt.get("fstart", 3))
    lds_spin(e, t1, S_LANDED, t0, sT, sT2, sleep=4)
    e.salu("s_mov_b64", EXEC, (1 << NQP) - 1)
    e.label("L_qpoll")
    e.buf_load("buffer_load_dword", t0, vX, sDbg, 0, flags="sc1")
    e.waitcnt(vm=0)
    e.valu("v_cmp_eq_u32", VCC, 0, t0)
    e.salu("s_cbranch_vccz", "L_qpolled")
    e.salu("s_sleep", 8)
    e.salu("s_branch", "L_qpoll")
    e.raw("L_qpolled:")
    e.salu("s_mov_b64", EXEC, -1)
    st.mark(7)
    e.salu("s_cmp_lt_u32", S(2), NPR)
    e.salu("s_cselect_b32", sT2, opt.get("wqstart", 3), opt.get("qstart", 6))
    e.salu("s_cmp_lt_u32", S(2), NQP)
    e.salu("s_cselect_b32", sT2, 4, sT2)
    lds_spin(e, t1, S_LANDED, t0, sT, sT2, sleep=2)
    st.mark(5)
    e.salu("s_mov_b32", sT2, WS_QK + 6144)
    e.buf_load("buffer_load_dwordx4", V(236, 4), vZ, sWS, sT2, flags="sc1")
    e.label("L_qdata")
    for k in range(6):
        e.salu("s_mov_b32", sT2, WS_QK + 1024 * k)
        e.buf_load("buffer_load_dwordx4", V(QR + 4 * k, 4), vLn16, sWS, sT2, flags="sc1")
    e.waitcnt(vm=0)
    e.valu("v_max3_u32", t0, V(QR), V(QR + 1), V(QR + 2))
    for k in range(3, 23, 2):
        e.valu("v_max3_u32", t0, t0, V(QR + k), V(QR + k + 1))
    e.valu("v_max_u32", t0, t0, V(QR + 23))
    e.valu("v_cmp_eq_u32", VCC, -1, t0)
    e.salu("s_cbranch_vccnz", "L_qdata")
    st.mark(6)
    e.ds_write("ds_write_b128", vZ, V(236, 4), TAGS)
    for ct in range(12):
        e.ds_write("ds_write_b64", vQw[ct & 3], V(QR + 2 * ct, 2), QK + (ct >> 2) * 128)
    e.valu("v_mov_b32", t0, 1)
    e.ds_write("ds_write_b32", vZ, t0, S_QKRDY)
    st.mark(1)

    e.label("L_aux_w")
    e.salu("s_cmp_lg_u32", sA, 2)
    e.salu("s_cbranch_scc1", "L_aux_wf2")
    e.valu("v_lshlrev_b32", vX, 2, lane)
    lds_spin(e, vZ, S_LANDED, t0, sT, opt.get("wstart", 10), sleep=8)
    lds_spin(e, vZ, S_QKRDY, t0, sT, 1, sleep=8)
    e.salu("s_mov_b64", EXEC, 0xFFF)
    e.label("L_wpoll")
    e.buf_load("buffer_load_dword", t0, vX, sDbg, 0, offset=DBG_WVO, flags="sc1")
    e.waitcnt(vm=0)
    e.valu("v_cmp_eq_u32", VCC, 0, t0)
    e.salu("s_cbranch_vccz", "L_wpolled")
    e.salu("s_sleep", opt.get("wsleep", 16))
    e.salu("s_branch", "L_wpoll")
    e.raw("L_wpolled:")
    e.salu("s_mov_b64", EXEC, -1)
    e.valu("v_mov_b32", t0, 1)
    e.ds_write("ds_write_b32", vZ, t0, S_WVL)
    e.label("L_aux_wf2")
    lds_spin(e, vZ, S_WVL, t0, sT, 1, sleep=8)
    st.mark(9)
    lk.at(8, t0, t1)
    e.salu("s_mul_i32", sT, sA, 3 * 6144)
    e.salu("s_add_u32", sT, sT, WS_WVO)
    WB = opt.get("wfb", 3)
    n = 0
    for t3 in range(3):
        for kk in range(6):
            if opt.get("noaf"):
                continue
            e.salu("s_add_u32", sT2, sT, (t3 * 6 + kk) * 1024)
            e.buf_load("buffer_load_dwordx4", WVO[kk][t3], vLn16, sWS, sT2, flags=WFL)
            n += 1
            if n % WB == 0:
                e.waitcnt(vm=0)
    st.mark(2)
    lk.at(4, t0, t1)

    e.label("L_tail")
    D = [V(16 + 4 * t3, 4) for t3 in range(3)]
    Dw2 = [V(32 + 4 * t3, 4) for t3 in range(3)]
    Bf = [[V(48 + 32 * b_ + 4 * kk, 4) for kk in range(6)] for b_ in range(2)]
    l4 = [V(72, 4), V(104, 4)]
    fl_ = [V(76), V(108)]
    G2 = [V(192, 4), V(196, 4)]
    vTg = V(200)
    vF0, vF2, vS0, vS2, vS = V(2), V(3), V(4), V(5), V(6)
    lt, lr = V(7), V(8)
    e.valu("v_lshlrev_b32", vS, 4, j)
    e.valu("v_add_u32", vF0, RING0, vLn16)
    e.valu("v_add_u32", vF2, RING0 + 2 * WAVE_RING, vLn16)
    e.valu("v_add_u32", vS0, RING0 + WST, vS)
    e.valu("v_add_u32", vS2, RING0 + WST + 2 * WAVE_RING, vS)
    sP = S(49)
    e.salu("s_lshl_b32", sP, S(2), 13)
    e.salu("s_lshl_b32", sT2, sA, 11)
    e.salu("s_add_u32", sP, sP, sT2)
    sHi = S(51)
    e.salu("s_mov_b32", sHi, 40.0)
    e.valu("v_and_b32", lr, 3, j)
    e.valu("v_lshlrev_b32", lr, 2, lr)
    e.ds_read("ds_read_b32", vTg, lr, TAGS)
    lds_spin(e, vZ, S_FR, t1, sT, 1, sleep=opt.get("fsleep", 1))
    if opt.get("fine"):
        st.cyc(5)

    def batch(w):
        fb, sb = (vF0, vS0) if w < 2 else (vF2, vS2)
        o = (w & 1) * WAVE_RING
        ops = [lambda: e.ds_read("ds_read_b32", fl_[w & 1], vZ, S_FR + 4 * w)]
        for kk in range(6):
            ops.append(lambda kk=kk: e.ds_read("ds_read_b128", Bf[w & 1][kk], fb, FRAG + o + 1024 * kk))
        ops.append(lambda: e.ds_read("ds_read_b128", l4[w & 1], sb, o))
        return ops

    def peek(w):
        e.waitcnt(lgkm=0)
        e.valu("v_readfirstlane_b32", sT, fl_[w & 1])

    def arrived(w, peeked=False):
        top, ok = newlabel("bt"), newlabel("bo")
        if peeked:
            e.salu("s_cbranch_scc1", ok)
            e.salu("s_branch", top + "x")
        e.label(top, fence=False)
        peek(w)
        e.nop(1)
        e.salu("s_cmp_eq_u32", sT, 1)
        e.salu("s_cbranch_scc1", ok)
        e.raw(f"{top}x:")
        e.salu("s_cmp_eq_u32", sT, 2)
        e.salu("s_cbranch_scc1", "L_agen")
        e.begin_cond()
        for f_ in batch(w):
            f_()
        e.end_cond()
        e.salu("s_branch", top)
        e.raw(f"{ok}:")

    def meta():
        return [lambda: e.valu("v_cvt_pk_bf16_f32", lr, 0, lt),
                lambda: e.valu("v_or_b32", G2[0][3], lr, vTg),
                lambda: e.valu("v_or_b32", G2[1][3], lr, vTg)]

    def cv(g_, k, t3, r):
        return lambda: e.valu("v_cvt_pk_bf16_f32", G2[g_][k], D[t3][r], D[t3][r + 1])

    def stg(g_):
        return lambda: e.buf_store("buffer_store_dwordx4", G2[g_], vLn16, sWS, sP, offset=1024 * g_, flags=SFL)
    fin0 = [cv(0, 0, 0, 0), cv(0, 1, 0, 2), cv(0, 2, 1, 0), stg(0), cv(1, 0, 1, 2)]
    fin1 = [cv(1, 1, 2, 0), cv(1, 2, 2, 2), stg(1)]

    for f_ in batch(0)[1:]:
        f_()
    e.salu("s_cmp_eq_u32", sT, 2)
    e.salu("s_cbranch_scc1", "L_agen")
    e.waitcnt(vm=0)
    for w in range(4):
        B, lw = Bf[w & 1], l4[w & 1]
        fill = [lambda lw=lw: e.valu("v_add_f32", lw[0], lw[0], lw[1]),
                lambda lw=lw: e.valu("v_add_f32", lw[2], lw[2], lw[3])]
        if w == 0:
            fill.append(lambda lw=lw: e.valu("v_add_f32", lt, lw[0], lw[2]))
        else:
            fill.append(lambda lw=lw: e.valu("v_add_f32", lw[0], lw[0], lw[2]))
            fill.append(lambda lw=lw: e.valu("v_add_f32", lt, lt, lw[0]))
        if w < 3:
            fill = batch(w + 1) + fill
            while len(fill) < 14:
                fill.append(lambda: None)
            fill += [lambda w=w: peek(w + 1), lambda: None, lambda: e.salu("s_cmp_eq_u32", sT, 1)]
            n = 0
            for kk in range(6):
                if w == 0 and kk < 3:
                    e.waitcnt(lgkm=6 - kk + n if kk < 2 else n)
                for t3 in range(3):
                    e.mfma(MF32, D[t3], WVO[kk][t3], B[kk], D[t3] if kk or w else 0)
                    n += 1
                    if fill:
                        fill.pop(0)()
            assert not fill
            arrived(w + 1, peeked=True)
            if opt.get("fine"):
                st.cyc((6, 7, 10)[w])
            elif w == 2:
                st.mark(10)
        else:
            fill += meta()
            for kk in range(6):
                for t3 in range(2):
                    e.mfma(MF32, D[t3], WVO[kk][t3], B[kk], D[t3])
                    if fill:
                        fill.pop(0)()
            while fill:
                fill.pop(0)()
            fill = list(fin0)
            for kk in range(6):
                e.mfma(MF32, D[2], WVO[kk][2], B[kk], D[2])
                if kk == 2:
                    e.nop(3)
                if kk >= 2:
                    for _ in range(2):
                        if fill:
                            fill.pop(0)()
            if opt.get("fine"):
                st.cyc(1)
            for f_ in fill + fin1:
                f_()
    e.label("L_aend", fence=False)
    lds_inc(e, vZ, t1, S_EMP)
    if not opt.get("pdbg"):
        st.mark(4)
    lk.at(5, V(14), V(15))
    if opt.get("fine"):
        st.cyc(11)
    st.dump(sWS, 12, [V(14), V(15)])
    e.salu("s_endpgm")

    e.raw("L_agen:")
    e.waitcnt(vm=0)
    sAlt, sW_, sOff = S(56, 2), S(58), S(59)
    Mx, ref, be, c0, c1, mw = V(9), V(10), V(13), V(14), V(204), V(205)
    vFa, vSa = V(2), V(3)
    B = Bf[0]
    lw = l4[0]
    for w in range(4):
        lds_spin(e, vZ, S_FR + 4 * w, t1, sT, 1)
        e.valu("v_add_u32", vSa, RING0 + WST + w * WAVE_RING, vS)
        e.ds_read("ds_read_b32", mw, vSa, 512)
        e.waitcnt(lgkm=0)
        if w == 0:
            e.valu("v_mov_b32", Mx, mw)
        else:
            e.valu("v_max_f32", Mx, Mx, mw)
    e.valu("v_cmp_nlt_f32_e64", sAlt, "|%s|" % Mx, sHi)
    e.valu("v_cndmask_b32", ref, 0, Mx, sAlt)
    e.valu("v_mov_b32", lt, 0)
    for t3 in range(3):
        for r in range(4):
            e.valu("v_mov_b32", D[t3][r], 0)
    e.salu("s_mov_b32", sW_, 0)
    e.label("L_agen_w")
    e.salu("s_mul_i32", sOff, sW_, WAVE_RING)
    e.salu("s_add_u32", sOff, sOff, RING0)
    e.valu("v_add_u32", vFa, sOff, vLn16)
    e.valu("v_add_u32", vSa, sOff, vS)
    for kk in range(6):
        e.ds_read("ds_read_b128", B[kk], vFa, FRAG + 1024 * kk)
    e.ds_read("ds_read_b32", mw, vSa, WST + 512)
    e.ds_read("ds_read_b128", lw, vSa, WST)
    e.waitcnt(lgkm=0)
    for kk in range(6):
        for t3 in range(3):
            e.mfma(MF32, Dw2[t3], WVO[kk][t3], B[kk], Dw2[t3] if kk else 0)
    e.valu("v_sub_f32", c0, mw, ref)
    e.valu("v_exp_f32", be, c0)
    e.valu("v_add_f32", lw[0], lw[0], lw[1])
    e.valu("v_add_f32", lw[2], lw[2], lw[3])
    e.valu("v_add_f32", lw[0], lw[0], lw[2])
    e.valu("v_fmac_f32", lt, be, lw[0], rmw=True)
    for t3 in range(3):
        for r in range(4):
            e.valu("v_fmac_f32", D[t3][r], be, Dw2[t3][r], rmw=True)
    e.salu("s_add_u32", sW_, sW_, 1)
    e.salu("s_cmp_lt_u32", sW_, 4)
    e.fence()
    e.salu("s_cbranch_scc1", "L_agen_w")
    e.valu("v_cndmask_b32", c0, 0, 1, sAlt)
    e.valu("v_or_b32", vTg, vTg, c0)
    e.ds_read("ds_read_b64", lw[2:4], vZ, TAGS)
    e.valu("v_mov_b32", lw[0], ref)
    e.valu("v_lshrrev_b32", c0, 1, vS)
    e.salu("s_lshl_b32", sT2, S(2), 7)
    e.salu("s_add_u32", sT2, sT2, WS_E)
    e.waitcnt(lgkm=0)
    e.valu("v_lshl_or_b32", lw[1], lw[3], 16, lw[2])
    e.salu("s_mov_b64", EXEC, 0xFFFF)
    e.buf_store("buffer_store_dwordx2", lw[0:2], c0, sWS, sT2, flags="sc1")
    e.salu("s_mov_b64", EXEC, -1)
    for f_ in meta() + fin0 + fin1:
        f_()
    e.fence()
    e.salu("s_branch", "L_aend")
    e.raw("L_exit:")
    e.salu("s_endpgm")
    return e


def build(stamps=False, opt=None):
    m = gen_main(stamps, opt)
    return header(0) + m.text() + "L_code_end:\n" + kd(MAIN, 256, 96)


if __name__ == "__main__":
    import argparse
    ap = argparse.ArgumentParser()
    ap.add_argument("-o", default=os.path.join(os.path.dirname(os.path.abspath(__file__)), "..", NAME + ".s"))
    ap.add_argument("--stamps", action="store_true")
    ap.add_argument("--opt", default="")
    a = ap.parse_args()
    opt = {}
    for kv in a.opt.split(","):
        if kv:
            k, _, v = kv.partition("=")
            opt[k] = int(v) if v else 1
    open(a.o, "w").write(build(a.stamps, opt))
```

```python
import sys
import os
sys.path.insert(0, os.path.dirname(os.path.abspath(__file__)))
from emit import Em, R, V, S, Neg, VCC, EXEC, M0

NAME = "standalone__detection_seg_dino__vision"
MAIN = NAME + "_kernel"

TILE = 6144
NSLOT = 6
WAVE_RING = NSLOT * TILE
QK = 0
SYNC = 6912
TAGS = SYNC + 128
STAGE = 7168
RING0 = 13312
LDS_BYTES = RING0 + 4 * WAVE_RING
STEPST = 6144
QL = QK
FRAG = 0
WST = 2 * TILE
CEX = RING0 + 4 * TILE


def wslot(t):
    return 6 * (t // 4) + 2 + t % 4


(S_LANDED, S_CONS, S_QKRDY, S_AUX, S_ISS, S_WL, S_EMPT, S_EMP, S_ZERO, S_FRC, S_WVL, S_FR) = [
    SYNC + 4 * k for k in (0, 4, 8, 9, 10, 11, 12, 13, 14, 15, 16, 20)]
ONES = SYNC + 144
THR = 32.0

WS_P = 0x80000
PSZ = 8192
WS_PG1 = 0x2C0000
NCB = 128
WS_E = 0x30000
WS_QK = 0
WS_WVO = 0x10000
WS_STAMP = 0x800000
DBG_WVO = 80
WS_PRG = 0x40000

NWG = 256
NITER = 4
NQP = 3
NPR = 6
WOB = RING0 + 20 * TILE

QSCALE = (192 ** -0.5) * 1.4426950408889634
MF32, MF16, MFF = "v_mfma_f32_16x16x32_bf16", "v_mfma_f32_16x16x16_bf16", "v_mfma_f32_16x16x4_f32"
NEG1 = "neg_lo:[1,0,0] neg_hi:[1,0,0]"


def header(extra_lds=0):
    launch = f"; @launch grid=({NWG},1,1) block=(512,1,1) lds={LDS_BYTES + extra_lds}"
    return f"""; Kernarg layout for this problem (80 bytes, ptrs only, base s[0:1]):
{launch}
.amdgcn_target "amdgcn-amd-amdhsa--gfx950"
.text
"""


def kd(name, vgpr, sgpr):
    return f""".section .rodata,"a"
.p2align 6
.amdhsa_kernel {name}
  .amdhsa_next_free_vgpr {vgpr}
  .amdhsa_next_free_sgpr {sgpr}
  .amdhsa_accum_offset {(vgpr + 3) // 4 * 4}
  .amdhsa_group_segment_fixed_size 0
  .amdhsa_kernarg_size 80
  .amdhsa_user_sgpr_count 2
  .amdhsa_user_sgpr_kernarg_segment_ptr 1
  .amdhsa_system_sgpr_workgroup_id_x 1
  .amdhsa_float_denorm_mode_32 3
.end_amdhsa_kernel
"""


WSOFF = [0]


def srd(e, q, ptr, nbytes):
    if nbytes == 0x1000000 and WSOFF[0]:
        e.salu("s_add_u32", q[0], ptr[0], WSOFF[0])
        e.salu("s_addc_u32", q[1], ptr[1], 0)
    else:
        e.salu("s_mov_b32", q[0], ptr[0])
        e.salu("s_mov_b32", q[1], ptr[1])
    e.salu("s_mov_b32", q[2], nbytes)
    e.salu("s_mov_b32", q[3], 0x20000)


def xg_reduce(e, op, x, t0, t1):
    for sw in ("v_permlane32_swap_b32", "v_permlane16_swap_b32"):
        e.valu("v_mov_b32", t0, x)
        e.valu("v_mov_b32", t1, x)
        e.valu(sw, t0, t1)
        e.valu(op, x, t0, t1)


def bf16_round(e, x):
    e.valu("v_cvt_pk_bf16_f32", x, x, x)
    e.valu("v_and_b32", x, 0xFFFF0000, x)


def tile_lane_offsets(e, lane, vDc, vDf, t0, t1):
    for i in range(3):
        e.valu("v_add_u32", t0, 64 * i, lane)
        e.valu("v_mul_u32_u24", t0, 0xAAB, t0)
        e.valu("v_lshrrev_b32", t0, 16, t0)
        e.valu("v_and_b32", t1, 6, t0)
        e.valu("v_xor_b32", t1, t1, lane)
        e.valu("v_lshlrev_b32", vDc[i], 4, t1)
        if vDf is not None:
            e.valu("v_mul_u32_u24", t0, 384, t0)
            e.valu("v_add_u32", vDf[i], t0, vDc[i])


def afrag_addrs(e, j, g, base, out, t0, t1):
    e.valu("v_and_b32", t0, 6, j)
    e.valu("v_xor_b32", t0, t0, g)
    e.valu("v_mul_u32_u24", t1, 384, j)
    if base is not None:
        e.valu("v_add_u32", t1, base, t1)
    e.valu("v_lshl_add_u32", out[0], t0, 4, t1)
    e.valu("v_xor_b32", t0, 4, t0)
    e.valu("v_lshl_add_u32", out[1], t0, 4, t1)


class Stamps:
    def __init__(self, e, on):
        self.e, self.on = e, on

    def mark(self, k):
        if self.on:
            self.e.smem(f"s_memrealtime s[{64 + 2 * k}:{65 + 2 * k}]", S(64 + 2 * k, 2))

    def cyc(self, k):
        if self.on:
            self.e.smem(f"s_memtime s[{64 + 2 * k}:{65 + 2 * k}]", S(64 + 2 * k, 2))

    def dump(self, sWS, nst, vt):
        if not self.on:
            return
        e = self.e
        e.waitcnt(lgkm=0)
        e.salu("s_lshl_b32", S(62), S(2), 3)
        e.salu("s_add_u32", S(62), S(62), S(3))
        e.salu("s_lshl_b32", S(62), S(62), 6)
        e.salu("s_add_u32", S(62), S(62), WS_STAMP)
        for k in range(nst):
            e.raw(f"    v_writelane_b32 {vt[0]}, s{64 + 2 * k}, {k}")
        e.valu("v_lshlrev_b32", vt[1], 2, V(0))
        e.salu("s_mov_b64", EXEC, 0xFFFF)
        e.buf_store("buffer_store_dword", vt[0], vt[1], sWS, S(62))
        e.salu("s_mov_b64", EXEC, -1)


class Leak:
    def __init__(self, e, which):
        self.e, self.which = e, which

    def start(self):
        if self.which:
            self.e.smem("s_memrealtime s[92:93]", S(92, 2))

    def at(self, k, vt0, vt1):
        if self.which == k:
            e = self.e
            e.smem("s_memrealtime s[90:91]", S(90, 2))
            e.waitcnt(lgkm=0)
            e.valu("v_mov_b32", vt0, S(90))
            e.valu("v_mov_b32", vt1, 0)
            e.ds_write("ds_write_b32", vt1, vt0, STEPST)
            e.waitcnt(lgkm=0)

    def spend(self, vt0, vt1):
        if not self.which:
            return
        e = self.e
        e.salu("s_cmp_lg_u32", S(2), 201)
        e.salu("s_cbranch_scc1", "L_leak_end")
        e.valu("v_mov_b32", vt1, 0)
        e.ds_read("ds_read_b32", vt0, vt1, STEPST)
        e.smem("s_memrealtime s[88:89]", S(88, 2))
        e.waitcnt(lgkm=0)
        e.valu("v_readfirstlane_b32", S(90), vt0)
        e.nop(3)
        e.salu("s_sub_u32", S(90), S(90), S(92))
        e.salu("s_lshl_b32", S(90), S(90), 3)
        e.salu("s_min_u32", S(90), S(90), 40000)
        e.label("L_leak")
        e.smem("s_memrealtime s[86:87]", S(86, 2))
        e.waitcnt(lgkm=0)
        e.salu("s_sub_u32", S(91), S(86), S(88))
        e.salu("s_cmp_lt_u32", S(91), S(90))
        e.salu("s_cbranch_scc1", "L_leak")
        e.raw("L_leak_end:")


class LQ:
    def __init__(self, e):
        self.e, self.q = e, []

    def add(self, tag=None):
        self.q.append(tag)

    def wait(self, tag):
        idx = max(i for i, t in enumerate(self.q) if t == tag)
        n = len(self.q) - 1 - idx
        self.e.waitcnt(lgkm=min(n, 15))
        self.q = self.q[idx + 1:]

    def drain(self):
        self.e.waitcnt(lgkm=0)
        self.q = []


LBL = [0]


def newlabel(p):
    LBL[0] += 1
    return f"L_{p}{LBL[0]}"


def lds_spin(e, vaddr, off, vt, sdst, need, sleep=1):
    top, done = newlabel("spin"), newlabel("spun")
    e.label(top)
    e.ds_read("ds_read_b32", vt, vaddr, off)
    e.waitcnt(lgkm=0)
    e.valu("v_readfirstlane_b32", sdst, vt)
    e.nop(1)
    e.salu("s_cmp_ge_u32", sdst, need)
    if sleep:
        e.salu("s_cbranch_scc1", done)
        e.salu("s_sleep", sleep)
        e.salu("s_branch", top)
        e.raw(f"{done}:")
    else:
        e.salu("s_cbranch_scc0", top)


def lds_inc(e, vz, vt, off):
    e.valu("v_mov_b32", vt, 1)
    e.salu("s_mov_b64", EXEC, 1)
    e.mem(f"ds_add_u32 {vz}, {vt} offset:{off}", reads=[vz, vt])
    e.salu("s_mov_b64", EXEC, -1)


def gen_main(stamps=False, opt=None):
    opt = opt or {}
    e = Em()
    WSOFF[0] = opt.get("wsoff", 0) << 20
    st = Stamps(e, stamps)
    lk = Leak(e, opt.get("leak", 0))
    e.raw(f".globl {MAIN}")
    e.raw(".p2align 8")
    e.raw(f".type {MAIN},@function")
    e.raw(f"{MAIN}:")
    sWave = S(3)
    lane = V(0)
    e.salu("s_cmp_ge_u32", S(2), NWG)
    e.salu("s_cbranch_scc1", "L_exit")
    st.mark(0)
    lk.start()
    e.smem("s_load_dwordx16 s[4:19], s[0:1], 0", S(4, 16))
    e.smem("s_load_dwordx4 s[20:23], s[0:1], 64", S(20, 4))
    pQ, pF0, pF1, pWq, pWk, pWv, pWo = [S(4 + 2 * k, 2) for k in range(7)]
    pDbg, pWS = S(20, 2), S(22, 2)
    e.valu("v_lshrrev_b32", V(1), 6, V(0))
    e.valu("v_and_b32", V(0), 63, V(0))
    if opt.get("epf", 0):
        e.salu("s_getpc_b64", S(60, 2))
    e.valu("v_readfirstlane_b32", sWave, V(1))
    e.nop(3)
    if opt.get("rot", 0):
        e.salu("s_xor_b32", sWave, sWave, 4)
    if opt.get("epf", 0):
        e.salu("s_cmp_eq_u32", sWave, 4)
        e.salu("s_cbranch_scc1", "L_loader")
        e.salu("s_cmp_gt_u32", sWave, 4)
        e.salu("s_cbranch_scc1", "L_aux0")
        e.salu("s_lshl_b32", S(62), sWave, 7)
        e.salu("s_add_u32", S(60), S(60), S(62))
        e.salu("s_addc_u32", S(61), S(61), 0)
        for k in range(opt["epf"]):
            e.smem(f"s_load_dword s63, s[60:61], {128 + 512 * k}", S(63))
        e.salu("s_branch", "L_compute")
        e.raw("L_loader:")
    else:
        e.salu("s_cmp_lt_u32", sWave, 4)
        e.salu("s_cbranch_scc1", "L_compute")
        e.salu("s_cmp_gt_u32", sWave, 4)
        e.salu("s_cbranch_scc1", "L_aux0")

    vDc = [V(1), V(2), V(3)]
    vDf = [V(4), V(5), V(6)]
    vD = [V(7), V(8), V(9)]
    vZ, vt, vt2 = V(10), V(11), V(12)
    vLane4 = V(13)
    sSrc = S(24, 4)
    sWS = S(32, 4)
    sStep, sK, sH, sO1, sO0, sBase, sWst, sHalf, sLk = [S(36 + k) for k in range(9)]
    sT, sT2, sVal, sNeed = S(45), S(46), S(47), S(48)
    sCons = [S(50 + k) for k in range(4)]
    sRet = S(54, 2)
    sW = S(56)
    sSlot = S(57)
    FAST = opt.get("fast", 1)
    e.salu("s_setprio", 3)
    for i in range(3):
        e.valu("v_add_u32", vDf[i], 64 * i, lane)
        e.valu("v_mul_u32_u24", vDf[i], 0xAAB, vDf[i])
        e.valu("v_lshrrev_b32", vDf[i], 16, vDf[i])
        e.valu("v_and_b32", vt, 6, vDf[i])
        e.valu("v_xor_b32", vt, vt, lane)
        e.valu("v_lshlrev_b32", vDc[i], 4, vt)
    e.salu("s_and_b32", sH, S(2), 7)
    e.salu("s_lshl_b32", sH, sH, 5)
    e.salu("s_lshr_b32", sT, S(2), 3)
    e.salu("s_or_b32", sH, sH, sT)
    e.salu("s_lshl_b32", sH, sH, 2)
    e.salu("s_mov_b32", sSrc[3], 0x20000)
    e.salu("s_mov_b32", sSrc[2], 25165824)
    e.salu("s_mul_i32", sO1, sH, 6144)
    e.salu("s_mov_b32", sLk, RING0)
    e.salu("s_cmp_lt_u32", S(2), NPR)
    e.salu("s_cbranch_scc1", "L_ld_prod")
    e.waitcnt(lgkm=0)
    st.mark(1)
    e.salu("s_mov_b32", sSrc[0], pF1[0])
    e.salu("s_mov_b32", sSrc[1], pF1[1])
    e.raw("L_ld_first:")
    for h in range(2):
        e.salu("s_mov_b32" if h == 0 else "s_add_u32", M0, *([sLk] if h == 0 else [sLk, 3072]))
        e.salu("s_add_u32", sLk if h else sT2, sLk if h else sO1, WAVE_RING if h else 3072)
        for i in range(3):
            e.buf_load_lds(vDc[i], sSrc, sT2 if h else sO1, offset=1024 * i, flags="nt")
    e.salu("s_add_u32", sO1, sO1, 6144)
    e.salu("s_cmp_lt_u32", sLk, RING0 + 4 * WAVE_RING)
    e.salu("s_cbranch_scc1", "L_ld_first")
    st.mark(5)
    e.salu("s_branch", "L_ld_norm")

    e.raw("L_aux0:")
    aC, aW1, aW2 = S(24, 4), S(28, 4), S(40, 4)
    e.salu("s_getpc_b64", aC[0:2])
    e.raw("L_aux_pc:")
    e.raw(f"    s_sub_u32 {aC[0]}, {aC[0]}, L_aux_pc-{MAIN}")
    e.raw(f"    s_subb_u32 {aC[1]}, {aC[1]}, 0")
    e.raw(f"    s_mov_b32 {aC[2]}, L_code_end-{MAIN}")
    e.salu("s_mov_b32", aC[3], 0x20000)
    e.salu("s_lshr_b32", S(39), S(2), 3)
    e.salu("s_mul_i32", S(38), S(39), 3)
    e.salu("s_add_u32", S(38), S(38), sWave)
    e.salu("s_mul_i32", S(38), S(38), 320)
    e.salu("s_sub_u32", S(38), S(38), 5 * 320)
    e.valu("v_lshlrev_b32", V(14), 6, lane)
    e.salu("s_mov_b64", EXEC, 0x1F)
    e.buf_load("buffer_load_dword", V(253), V(14), aC, S(38))
    e.salu("s_mov_b64", EXEC, -1)
    e.salu("s_and_b32", S(38), S(2), 7)
    e.salu("s_mul_i32", S(37), sWave, 3)
    e.salu("s_add_u32", S(38), S(38), 18)
    e.salu("s_sub_u32", S(38), S(38), S(37))
    e.salu("s_cmp_ge_u32", S(38), 3)
    e.salu("s_cbranch_scc1", "L_aux")
    e.salu("s_mul_i32", S(37), S(39), 2304)
    e.valu("v_mul_u32_u24", V(13), 36, lane)
    e.salu("s_mov_b32", aW1[2], 73728)
    e.salu("s_mov_b32", aW2[2], 73728)
    e.salu("s_mov_b32", aW1[3], aC[3])
    e.salu("s_mov_b32", aW2[3], aC[3])
    e.salu("s_cmp_eq_u32", sWave, 6)
    e.waitcnt(lgkm=0)
    e.salu("s_cselect_b64", aW1[0:2], pWq, pWo)
    e.salu("s_cselect_b64", aW2[0:2], pWk, pWv)
    e.buf_load("buffer_load_dword", V(254), V(13), aW1, S(37))
    e.buf_load("buffer_load_dword", V(255), V(13), aW2, S(37))
    e.salu("s_branch", "L_aux")

    def publish(off, val):
        e.valu("v_mov_b32", vt, val)
        e.salu("s_mov_b64", EXEC, 1)
        e.mem(f"ds_max_u32 {vZ}, {vt} offset:{off}", reads=[vZ, vt])
        e.salu("s_mov_b64", EXEC, -1)

    ADAPT = opt.get("adapt", 0)
    sPrg, sXo, sTb, vTk, vSlot, vOwn = S(28, 4), S(58), S(59), [V(14), V(15)], V(16), V(17)

    def init(first):
        for i in range(3):
            e.valu("v_mul_u32_u24", vDf[i], 384, vDf[i])
            e.valu("v_add_u32", vDf[i], vDf[i], vDc[i])
        e.valu("v_mov_b32", vZ, 0)
        e.valu("v_lshlrev_b32", vLane4, 2, lane)
        e.salu("s_mov_b64", EXEC, 0xFFFFFFFF)
        e.ds_write("ds_write_b32", vLane4, vZ, SYNC)
        e.valu("v_mov_b32", vt, 0x3F803F80)
        e.salu("s_mov_b64", EXEC, 3)
        e.ds_write("ds_write_b32", vLane4, vt, ONES)
        e.salu("s_mov_b64", EXEC, -1)
        for k in range(4):
            e.salu("s_mov_b32", sCons[k], 0)
        if stamps:
            e.salu("s_mov_b32", S(76), 0)
            e.salu("s_mov_b32", S(78), 0)
        for r_ in (sStep, sK, sSlot):
            e.salu("s_mov_b32", r_, first)
        if first:
            e.salu("s_lshr_b32", sT, sH, 4)
            e.salu("s_mul_i32", sO0, sT, 393216)
            e.salu("s_and_b32", sT, sH, 15)
            e.salu("s_mul_i32", sT, sT, 12288)
            e.salu("s_add_u32", sO0, sO0, sT)
            e.salu("s_add_u32", sH, sH, 1024)
        if ADAPT:
            srd(e, sPrg, pWS, 0x1000000)
            e.salu("s_getreg_b32", sXo, "hwreg(HW_REG_XCC_ID)")
            e.salu("s_and_b32", sXo, sXo, 7)
            e.salu("s_lshl_b32", sXo, sXo, 7)
            e.salu("s_add_u32", sXo, sXo, WS_PRG)
            e.salu("s_lshr_b32", sT, S(2), 3)
            e.salu("s_lshl_b32", sT, sT, 2)
            e.valu("v_mov_b32", vSlot, sT)
            e.salu("s_mov_b32", sTb, 0)
        e.waitcnt(lgkm=0)
        e.barrier()

    sCnt = sNeed
    e.raw("L_ld_prod:")
    e.salu("s_mov_b32", sO1, 0)
    e.salu("s_cmp_lt_u32", S(2), NQP)
    e.salu("s_cbranch_scc0", "L_ld_wo0")
    e.salu("s_mov_b32", sSrc[2], 6144)
    e.salu("s_mov_b32", sLk, STAGE)
    e.salu("s_mov_b32", sCnt, 1)
    e.waitcnt(lgkm=0)
    st.mark(4)
    e.salu("s_mov_b64", sSrc[0:2], pQ)
    e.salu("s_call_b64", sRet, "L_ld_tiles")
    e.salu("s_branch", "L_ld_wq")
    e.raw("L_ld_tiles:")
    for h in range(2):
        e.salu("s_mov_b32" if h == 0 else "s_add_u32", M0, *([sLk] if h == 0 else [sLk, 3072]))
        e.salu("s_add_u32", sLk if h else sT2, sLk if h else sO1, TILE if h else 3072)
        for i in range(3):
            e.buf_load_lds(vDc[i], sSrc, sT2 if h else sO1, offset=1024 * i)
    e.salu("s_add_u32", sO1, sO1, TILE)
    e.salu("s_sub_u32", sCnt, sCnt, 1)
    e.salu("s_and_b32", sT, sCnt, 3)
    e.salu("s_cselect_b32", sT, 0, 2 * TILE)
    e.salu("s_add_u32", sLk, sLk, sT)
    e.salu("s_cmp_lg_u32", sCnt, 0)
    e.salu("s_cbranch_scc1", "L_ld_tiles")
    e.salu("s_setpc_b64", sRet)
    e.raw("L_ld_wq:")
    if opt.get("pdbg"):
        st.mark(6)
    e.salu("s_mov_b64", sSrc[0:2], pWq)
    e.salu("s_mov_b32", sSrc[2], 73728)
    e.raw("L_ld_w12:")
    e.salu("s_mov_b32", sO1, 0)
    e.salu("s_mov_b32", sLk, RING0 + wslot(0) * TILE)
    e.salu("s_mov_b32", sCnt, 4)
    e.salu("s_call_b64", sRet, "L_ld_tiles")
    if opt.get("pdbg"):
        st.mark(7)
    init(0)
    if opt.get("pdbg"):
        st.mark(9)
    e.waitcnt(vm=24)
    publish(S_WL, 1)
    st.mark(5)
    e.salu("s_mov_b32", sCnt, 8)
    e.salu("s_call_b64", sRet, "L_ld_tiles")
    if opt.get("pdbg"):
        st.mark(11)
    e.salu("s_cmp_ge_u32", S(2), NQP)
    e.salu("s_cbranch_scc1", "L_ld_w3")
    e.salu("s_mov_b64", sSrc[0:2], pWk)
    e.salu("s_mul_i32", sO1, S(2), 4 * TILE)
    e.salu("s_mov_b32", sCnt, 4)
    e.salu("s_call_b64", sRet, "L_ld_tiles")
    e.raw("L_ld_w3:")
    e.waitcnt(vm=24)
    publish(S_WL, 2)
    st.mark(1)
    e.salu("s_branch", "L_ld_stepp")
    e.raw("L_ld_wo0:")
    e.salu("s_mov_b32", sSrc[2], 73728)
    e.valu("v_lshrrev_b32", vt, 3, lane)
    e.valu("v_mul_u32_u24", vt, 384, vt)
    e.valu("v_and_b32", vt2, 7, lane)
    e.valu("v_lshl_add_u32", vt, vt2, 4, vt)
    e.salu("s_sub_u32", sT2, S(2), NQP)
    e.salu("s_lshl_b32", sT2, sT2, 7)
    e.salu("s_mov_b32", sT, WOB)
    e.waitcnt(lgkm=0)
    st.mark(4)
    e.salu("s_mov_b64", sSrc[0:2], pWo)
    e.label("L_ld_wo")
    e.salu("s_mov_b32", M0, sT)
    e.salu("s_add_u32", sT, sT, 1024)
    e.buf_load_lds(vt, sSrc, sT2)
    e.salu("s_add_u32", sT2, sT2, 3072)
    e.salu("s_cmp_lt_u32", sT, WOB + 24576)
    e.salu("s_cbranch_scc1", "L_ld_wo")
    e.salu("s_mov_b64", sSrc[0:2], pWv)
    e.salu("s_branch", "L_ld_w12")
    e.raw("L_ld_norm:")
    init(1)
    lk.at(1, vt, vt2)

    PD = opt.get("pd", 6)
    FLG = {0: "", 1: "sc1", 2: "sc0 sc1", 3: "sc1 nt", 4: "sc0 sc1 nt", 5: "nt"}
    LFL, PFL, SFL = FLG[opt.get("lfl", 1)], FLG[opt.get("pfl", 1)], FLG[opt.get("sfl", 1)]
    WFL = {0: "", 1: "sc1", 2: "sc0", 3: "nt"}[opt.get("wfl", 1)]
    WVO = [[V(112 + 12 * kk + 4 * t3, 4) for t3 in range(3)] for kk in range(6)]

    def stream(D, tag):
        e.label(f"L_ld_step{tag}")
        e.salu("s_cmp_lg_u32", sK, 0)
        e.salu("s_cbranch_scc1", f"L_ld_fine{tag}")
        e.salu("s_mul_i32", sO1, sH, 6144)
        e.salu("s_lshr_b32", sT, sH, 4)
        e.salu("s_mul_i32", sO0, sT, 393216)
        e.salu("s_and_b32", sT, sH, 15)
        e.salu("s_mul_i32", sT, sT, 12288)
        e.salu("s_add_u32", sO0, sO0, sT)
        e.salu("s_add_u32", sH, sH, 1024)
        e.salu("s_mov_b32", sSrc[0], pF1[0])
        e.salu("s_mov_b32", sSrc[1], pF1[1])
        e.salu("s_mov_b32", sSrc[2], 25165824)
        e.salu("s_mov_b32", sBase, sO1)
        e.salu("s_mov_b32", sWst, 6144)
        e.salu("s_mov_b32", sHalf, 3072)
        for i in range(3):
            e.valu("v_mov_b32", vD[i], vDc[i])
        e.salu("s_branch", f"L_ld_issue{tag}")
        e.raw(f"L_ld_fine{tag}:")
        e.salu("s_mov_b32", sSrc[0], pF0[0])
        e.salu("s_mov_b32", sSrc[1], pF0[1])
        e.salu("s_mov_b32", sSrc[2], 100663296)
        e.salu("s_sub_u32", sT, sK, 1)
        e.salu("s_lshr_b32", sT2, sT, 1)
        e.salu("s_mul_i32", sT2, sT2, 196608)
        e.salu("s_and_b32", sT, sT, 1)
        e.salu("s_mul_i32", sT, sT, 384)
        e.salu("s_add_u32", sBase, sO0, sT2)
        e.salu("s_add_u32", sBase, sBase, sT)
        e.salu("s_mov_b32", sWst, 12288)
        e.salu("s_mov_b32", sHalf, 6144)
        for i in range(3):
            e.valu("v_mov_b32", vD[i], vDf[i])
        e.raw(f"L_ld_issue{tag}:")
        e.salu("s_mul_i32", sLk, sSlot, TILE)
        e.salu("s_add_u32", sLk, sLk, RING0)
        e.salu("s_sub_i32", sNeed, sStep, NSLOT - 1)
        for w in range(4):
            ok = newlabel("free")
            e.salu("s_cmp_ge_i32", sCons[w], sNeed)
            e.salu("s_cbranch_scc1", ok)
            e.begin_cond()
            e.salu("s_mov_b32", sW, w)
            e.salu("s_call_b64", sRet, "L_ld_wait")
            e.salu("s_mov_b32", sCons[w], sT)
            e.end_cond()
            e.raw(f"{ok}:")
            for h in range(2):
                e.salu("s_add_u32", M0, sLk, w * WAVE_RING + 3072 * h)
                if h == 0:
                    e.salu("s_mov_b32", sT2, sBase)
                else:
                    e.salu("s_add_u32", sT2, sBase, sHalf)
                for i in range(3):
                    e.buf_load_lds(vD[i], sSrc, sT2, offset=1024 * i, flags="nt")
                if h == 0 and tag == "" and opt.get("mid"):
                    e.waitcnt(vm=opt["mid"])
            e.salu("s_add_u32", sBase, sBase, sWst)
            e.salu("s_add_i32", sVal, sStep, ((w - D) >> 2) + 1)
            e.salu("s_max_i32", sVal, sVal, 0)
            e.waitcnt(vm=opt.get("vmw", 6 * D) if tag == "" else 6 * D)
            publish(S_LANDED + 4 * ((w - D) & 3), sVal)
            if tag == "p" and w == opt.get("w3at", 1):
                lb_ = newlabel("w3")
                e.salu("s_cmp_lg_u32", sStep, 0)
                e.salu("s_cbranch_scc1", lb_)
                e.waitcnt(vm=6 * (w + 1))
                publish(S_WL, 3)
                e.raw(f"{lb_}:")
        e.salu("s_add_u32", sK, sK, 1)
        e.salu("s_cmp_eq_u32", sK, 5)
        e.salu("s_cselect_b32", sK, 0, sK)
        e.salu("s_add_u32", sSlot, sSlot, 1)
        e.salu("s_cmp_eq_u32", sSlot, NSLOT)
        e.salu("s_cselect_b32", sSlot, 0, sSlot)
        if tag == "p":
            e.salu("s_cmp_lg_u32", sStep, 1)
            e.salu("s_cbranch_scc1", "L_ld_noiss")
            e.begin_cond()
            lds_spin(e, vZ, S_ISS, vt, sT, 4)
            e.end_cond()
            e.raw("L_ld_noiss:")
        if stamps and opt.get("stepst", 0):
            e.smem("s_memrealtime s[90:91]", S(90, 2))
            e.salu("s_lshl_b32", sT, sStep, 2)
            e.salu("s_add_u32", sT, sT, STEPST)
            e.valu("v_mov_b32", vt2, sT)
            e.waitcnt(lgkm=0)
            e.valu("v_mov_b32", vt, S(90))
            e.ds_write("ds_write_b32", vt2, vt, 0)
        e.salu("s_add_u32", sStep, sStep, 1)
        if ADAPT:
            A0 = opt.get("afrom", 9)
            e.salu("s_cmp_ge_u32", sStep, 5 * NITER)
            e.salu("s_cbranch_scc1", f"L_ld_done{tag}")
            e.salu("s_cmp_lt_u32", sStep, A0)
            e.salu("s_cbranch_scc1", f"L_ld_step{tag}")
            e.salu("s_cmp_lg_u32", sStep, A0)
            e.salu("s_cbranch_scc1", f"L_ld_tg{tag}")
            lds_spin(e, vZ, S_QKRDY, vt, sT, 1)
            e.ds_read("ds_read_b32", vt, vZ, TAGS)
            e.waitcnt(lgkm=0)
            e.valu("v_readfirstlane_b32", sTb, vt)
            e.nop(3)
            e.salu("s_lshl_b32", sTb, sTb, 16)
            e.valu("v_mov_b32", vTk[0], -1)
            e.valu("v_mov_b32", vTk[1], -1)
            e.raw(f"L_ld_tg{tag}:")
            e.salu("s_add_u32", sT, sTb, sStep)
            e.salu("s_sub_u32", sT2, sT, 2)
            e.valu("v_mov_b32", vOwn, sT)
            e.salu("s_mov_b64", EXEC, 1)
            e.buf_store("buffer_store_dword", vOwn, vSlot, sPrg, sXo)
            e.salu("s_mov_b32", S(61), 0)
            e.salu("s_mov_b32", S(60), -1)
            e.salu("s_mov_b64", EXEC, S(60, 2))
            e.salu("s_bitcmp1_b32", sStep, 0)
            e.salu("s_cbranch_scc1", f"L_ld_odd{tag}")
            for par in range(2):
                if par:
                    e.raw(f"L_ld_odd{tag}:")
                e.valu("v_subrev_u32", vt, sT2, vTk[par])
                e.buf_load("buffer_load_dword", vTk[par], vLane4, sPrg, sXo, flags="sc1")
                if not par:
                    e.salu("s_branch", f"L_ld_tk{tag}")
            e.raw(f"L_ld_tk{tag}:")
            e.valu("v_cmp_gt_u32", VCC, 32, vt)
            e.salu("s_mov_b64", EXEC, -1)
            e.nop(1)
            e.salu("s_bcnt1_i32_b64", sT, VCC)
            e.salu("s_cmp_gt_u32", sT, ADAPT)
            e.salu("s_cbranch_scc1", "L_ld_stepp")
            e.salu("s_cmp_lt_u32", sStep, A0 + 2)
            e.salu("s_cbranch_scc1", f"L_ld_step{tag}")
            e.salu("s_branch", "L_ld_step")
            e.raw(f"L_ld_done{tag}:")
        else:
            e.salu("s_cmp_lt_u32", sStep, 5 * NITER)
            e.fence()
            e.salu("s_cbranch_scc1", f"L_ld_step{tag}")
        st.mark(2)
        srd(e, sWS, pWS, 0x1000000)
        e.valu("v_lshlrev_b32", vt2, 4, lane)
        lds_spin(e, vZ, S_WVL, vt, sT, 1)
        NL = 0 if opt.get("nolf") else 18
        for t3 in range(3):
            for kk in range(6):
                if NL:
                    e.salu("s_mov_b32", sT2, WS_WVO + ((9 + t3) * 6 + kk) * 1024)
                    e.buf_load("buffer_load_dwordx4", WVO[kk][t3], vt2, sWS, sT2, flags=WFL)
        for i in range(80 - D, 80):
            e.waitcnt(vm=6 * (79 - i) + NL)
            publish(S_LANDED + 4 * (i & 3), (i >> 2) + 1)
        st.mark(3)
        lk.at(3, V(14), V(15))
        if stamps:
            e.salu("s_getreg_b32", S(80), "hwreg(HW_REG_XCC_ID)")
            if opt.get("stepst", 0):
                e.valu("v_add_u32", V(14), STEPST, vLane4)
                e.ds_read("ds_read_b32", vt, V(14), 0)
                e.salu("s_lshl_b32", sT, S(2), 8)
                e.salu("s_add_u32", sT, sT, WS_STAMP + 0x40000)
                e.waitcnt(lgkm=0)
                e.buf_store("buffer_store_dword", vt, vLane4, sWS, sT)
        e.salu("s_setprio", 0)
        e.salu("s_mov_b32", S(36), 3)
        e.valu("v_mov_b32", V(11), 0)
        e.valu("v_and_b32", V(1), 15, lane)
        e.fence()
        e.salu("s_branch", "L_tail")

    stream(opt.get("depth", 4), "")

    stream(PD, "p")

    e.raw("L_ld_wait:")
    e.salu("s_lshl_b32", sT, sW, 2)
    e.valu("v_mov_b32", vt2, sT)
    e.ds_read("ds_read_b32", vt, vt2, S_CONS)
    e.waitcnt(lgkm=0)
    e.valu("v_readfirstlane_b32", sT, vt)
    e.nop(1)
    e.salu("s_cmp_ge_i32", sT, sNeed)
    e.salu("s_cbranch_scc1", "L_ld_wait_ret")
    if stamps:
        e.salu("s_add_u32", S(76), S(76), 1)
        e.salu("s_mov_b32", S(78), sStep)
    lds_spin(e, vt2, S_CONS, vt, sT, sNeed)
    e.raw("L_ld_wait_ret:")
    e.fence()
    e.salu("s_setpc_b64", sRet)

    e.w.clear(); e.cread.clear(); e.stread.clear()
    e.raw("L_compute:")
    vSy = V(1)
    vPc = V(2)
    vPoll = V(3)
    Gx = V(4, 4)
    vA = [V(8), V(9)]
    vT = [V(10 + k) for k in range(4)]
    vL2 = V(14, 2)
    vCs2 = V(16, 2)
    vNm2 = V(18, 2)
    vOne = V(20)
    tC = V(21)
    tA, tB = V(22), V(23)
    vOnes = V(24, 4)
    Qk = [V(28 + 4 * k, 4) for k in range(6)]
    acc = [V(52 + 4 * k, 4) for k in range(12)]
    A1 = [V(100 + 4 * k, 4) for k in range(6)]
    A0 = [V(124 + 4 * k, 4) for k in range(6)]
    T0 = [V(148 + 6 * k, 4) for k in range(12)]
    T1 = [V(152 + 6 * k, 2) for k in range(12)]
    TH = [V(150 + 6 * k, 4) for k in range(12)]
    Sc, Uc = V(220, 4), V(224, 4)
    Sx, Ux, SSx = V(228, 4), V(232, 4), V(236, 4)
    pc = V(240, 4)
    Pf = V(244, 4)
    pp = V(248, 4)
    mu2 = V(252, 2)
    vM = V(254)
    ss1 = V(255)
    X = Gx
    sWS = S(32, 4)
    sLds = S(36)
    sT, sT2 = S(40), S(42)
    sIt = S(41)
    sInv2, sEps2 = S(44, 2), S(46, 2)
    sInv, sEps = sInv2[0], sEps2[0]
    sRet = S(48, 2)
    sThr = S(50)
    sPc, sLand = S(51), S(52)
    sSl, sDl, sTile = S(54), S(55), S(56)
    sM1, sM2, sMd = S(58, 2), S(60, 2), S(38, 2)
    tmp = [V(228 + k) for k in range(12)]
    lq = LQ(e)
    EARLY = opt.get("early", 2)
    GRAM = opt.get("gram", 2)
    sEa = S(57)

    e.salu("s_mul_i32", sLds, sWave, WAVE_RING)
    e.salu("s_add_u32", sLds, sLds, RING0)
    if opt.get("cprio", 1):
        e.salu("s_setprio", opt.get("cprio", 1))
    e.barrier()
    j, g = tmp[0], tmp[1]
    e.valu("v_and_b32", j, 15, lane)
    e.valu("v_lshrrev_b32", g, 4, lane)
    afrag_addrs(e, j, g, sLds, vA, tmp[2], tmp[3])
    rp, c4, p_ = tmp[2], tmp[3], tmp[4]
    e.valu("v_lshrrev_b32", rp, 2, j)
    e.valu("v_and_b32", c4, 3, j)
    e.valu("v_lshl_add_u32", p_, g, 2, rp)
    e.valu("v_mul_u32_u24", tmp[5], 384, p_)
    e.valu("v_lshl_add_u32", tmp[5], c4, 3, tmp[5])
    e.valu("v_add_u32", tmp[5], sLds, tmp[5])
    e.valu("v_and_b32", tmp[6], 6, p_)
    for q in range(4):
        e.valu("v_xor_b32", tmp[7], 2 * q, tmp[6])
        e.valu("v_lshl_add_u32", vT[q], tmp[7], 4, tmp[5])
    vQa = [Pf[0], Pf[1]]
    e.valu("v_subrev_u32", vQa[0], sLds, vA[0])
    e.valu("v_subrev_u32", vQa[1], sLds, vA[1])
    for k in range(4):
        e.valu("v_mov_b32", vOnes[k], 0x3F803F80)
        e.valu("v_mov_b32", pc[k], 0)
        e.valu("v_mov_b32", pp[k], 0)
    e.valu("v_mov_b32", vOne, 1.0)
    for k in range(2):
        e.salu("s_mov_b32", sInv2[k], 1.0 / 192.0)
        e.salu("s_mov_b32", sEps2[k], 1.0e-5)
        e.salu("s_mov_b32", sM1[k], 0xAAAAAAAA)
        e.salu("s_mov_b32", sM2[k], 0xCCCCCCCC)
    e.salu("s_mov_b32", sMd[0], 0x00F0000F)
    e.salu("s_mov_b32", sMd[1], 0xF0000F00)
    e.salu("s_mov_b32", sThr, THR)
    e.salu("s_mov_b32", sIt, 0)
    e.salu("s_mov_b32", sPc, 0)
    e.salu("s_mov_b32", sLand, 0)
    e.salu("s_mov_b32", sSl, 0)
    e.salu("s_mov_b32", sTile, TILE)
    e.salu("s_lshl_b32", sT, sWave, 2)
    e.valu("v_mov_b32", vSy, sT)
    e.waitcnt(lgkm=0)
    srd(e, sWS, pWS, 0x1000000)
    e.salu("s_cmp_lt_u32", S(2), NQP)
    e.salu("s_cbranch_scc1", "L_qkprod")
    e.salu("s_cmp_lt_u32", S(2), NPR)
    e.salu("s_cbranch_scc1", "L_wvprod")
    e.label("L_c_start")

    def wait_piece(sleep=1):
        e.salu("s_add_u32", sPc, sPc, 1)
        have = newlabel("have")
        e.salu("s_cmp_ge_u32", sLand, sPc)
        e.salu("s_cbranch_scc1", have)
        e.begin_cond()
        lds_spin(e, vSy, S_LANDED, vPoll, sLand, sPc, sleep=sleep)
        e.end_cond()
        e.raw(f"{have}:")

    def rot_ops():
        def sc():
            e.salu("s_add_u32", sSl, sSl, 1)
            e.salu("s_cmp_eq_u32", sSl, NSLOT)
            e.salu("s_cselect_b32", sDl, -(NSLOT - 1) * TILE, sTile)
            e.salu("s_cselect_b32", sSl, 0, sSl)
        return (sc, [lambda a_=a_: e.valu("v_add_u32", a_, sDl, a_) for a_ in vA] + [lambda: e.valu("v_mov_b32", vPc, sPc)],
                [lambda a_=a_: e.valu("v_add_u32", a_, sDl, a_) for a_ in vT])

    def poll_ahead():
        if EARLY:
            e.ds_read("ds_read_b32", vPoll, vSy, S_LANDED)
            lq.add("p")

    def release(done=False):
        if not done:
            poll_ahead()
            sc, fa, ft = rot_ops()
            sc()
            for f_ in fa + ft:
                f_()
        lq.drain()
        e.ds_write("ds_write_b32", vSy, vPc, S_CONS)
        lq.add()

    def early(AF, again=False):
        if not EARLY:
            return
        lb_ = newlabel("early")
        e.valu("v_readfirstlane_b32", sLand, vPoll)
        e.salu("s_mov_b32", sEa, 0)
        e.nop(1)
        e.salu("s_cmp_gt_u32", sLand, sPc)
        e.salu("s_cbranch_scc0", lb_)
        e.begin_cond()
        e.salu("s_mov_b32", sEa, 1)
        a_reads(AF)
        e.end_cond()
        e.raw(f"{lb_}:")
        lq.q = []
        if again:
            e.ds_read("ds_read_b32", vPoll, vSy, S_LANDED)

    def early2(AF):
        lb_ = newlabel("early")
        e.waitcnt(lgkm=0)
        e.valu("v_readfirstlane_b32", sLand, vPoll)
        e.salu("s_cmp_lg_u32", sEa, 0)
        e.salu("s_cbranch_scc1", lb_)
        e.salu("s_cmp_gt_u32", sLand, sPc)
        e.salu("s_cbranch_scc0", lb_)
        e.begin_cond()
        e.salu("s_mov_b32", sEa, 1)
        a_reads(AF)
        e.end_cond()
        e.raw(f"{lb_}:")
        lq.q = []

    def begin_piece(AF, sleep=1):
        if not EARLY:
            wait_piece(sleep)
            a_reads(AF)
            return
        lb_ = newlabel("begun")
        e.salu("s_add_u32", sPc, sPc, 1)
        e.salu("s_cmp_lg_u32", sEa, 0)
        e.salu("s_cbranch_scc1", lb_)
        e.begin_cond()
        lds_spin(e, vSy, S_LANDED, vPoll, sLand, sPc, sleep=sleep)
        a_reads(AF)
        e.end_cond()
        e.raw(f"{lb_}:")

    def a_reads(AF):
        for kk in range(6):
            e.ds_read("ds_read_b128", AF[kk], vA[kk & 1], (kk >> 1) * 128)
            lq.add(("a", kk))

    def tr_read(dst, cb):
        e.ds_read("ds_read_b64_tr_b16", dst, vT[cb & 3], (cb >> 2) * 128)
        lq.add(("t", cb))

    def ones_read(dst):
        e.ds_read("ds_read_b64", dst, tC, ONES)
        lq.add()

    def diag(G, out):
        e.valu("v_cndmask_b32", tA, G[0], G[1], sM1)
        e.valu("v_cndmask_b32", tB, G[2], G[3], sM1)
        e.valu("v_cndmask_b32", out, tA, tB, sM2)

    def sumsq_ops(SS):
        return [lambda: e.valu("v_cndmask_b32", tA, SS[0], SS[1], sM1),
                lambda: e.valu("v_cndmask_b32", tB, SS[2], SS[3], sM1),
                lambda: e.valu("v_cndmask_b32", Gx[0], Gx[0], Gx[1], sM1),
                lambda: e.valu("v_cndmask_b32", Gx[2], Gx[2], Gx[3], sM1),
                lambda: e.valu("v_cndmask_b32", tA, tA, tB, sM2),
                lambda: e.valu("v_cndmask_b32", Gx[0], Gx[0], Gx[2], sM2),
                ] + ([lambda: e.valu("v_add_f32", tA, tA, ss1),
                      lambda: e.valu("v_fma_f32", tA, Gx[0], 2.0, tA),
                      lambda: e.valu("v_cndmask_b32", tA, 0, tA, sMd)] if GRAM == 1 else
                     [lambda: e.valu("v_fma_f32", tA, Gx[0], 2.0, tA),
                      lambda: e.valu("v_cndmask_b32", tA, 0, tA, sMd),
                      lambda: e.valu("v_add_f32", tA, tA, ss1)])

    def stats_ops(U_, SS_, packed=True):
        fl = []
        if packed:
            for h in range(2):
                sl = slice(2 * h, 2 * h + 2)
                fl.append(lambda sl=sl: e.valu("v_pk_mul_f32", U_[sl], U_[sl], sInv2))
            for h in range(2):
                sl = slice(2 * h, 2 * h + 2)
                fl.append(lambda sl=sl: e.valu("v_pk_fma_f32", Gx[sl], U_[sl], U_[sl], sEps2, mods=NEG1))
            for h in range(2):
                sl = slice(2 * h, 2 * h + 2)
                fl.append(lambda sl=sl: e.valu("v_pk_fma_f32", SS_[sl], SS_[sl], sInv2, Gx[sl]))
        else:
            for r in range(4):
                fl.append(lambda r=r: e.valu("v_mul_f32", U_[r], sInv, U_[r]))
            for r in range(4):
                fl.append(lambda r=r: e.valu("v_fma_f32", Gx[r], Neg(U_[r]), U_[r], sEps))
            for h in range(2):
                sl = slice(2 * h, 2 * h + 2)
                fl.append(lambda sl=sl: e.valu("v_pk_fma_f32", SS_[sl], SS_[sl], sInv2, Gx[sl]))
        for r in range(4):
            fl.append(lambda r=r: e.valu("v_max_f32", SS_[r], sEps, SS_[r]))
        for r in range(4):
            fl.append(lambda r=r: e.valu("v_rsq_f32", SS_[r], SS_[r]))
        return fl

    def coarse_phase(first):
        if first:
            wait_piece()
            a_reads(A1)
        else:
            begin_piece(A1)
        if first:
            for cb in range(6):
                tr_read(T1[cb], cb)
        else:
            for cb in range(12):
                e.mfma(MF32, acc[cb], TH[cb], Pf, acc[cb])
                tr_read(T1[cb], cb)
        for kk in range(6):
            if first or kk == 0:
                lq.wait(("a", kk if first else 5))
            if GRAM == 1:
                e.mfma(MF32, SSx, A1[kk], A1[kk], SSx if kk else 0)
            e.mfma(MF32, Uc, A1[kk], vOnes, Uc if kk else 0)
            if first:
                tr_read(T1[6 + kk], 6 + kk)
        if not first:
            sc, fa, ft = rot_ops()
            sc()
            fl = fa + ft
            for kk in range(6):
                e.mfma(MF32, Sc, A1[kk], Qk[kk], Sc if kk else 0)
                for _ in range(2):
                    if fl:
                        fl.pop(0)()
                if kk == 3:
                    poll_ahead()
        release(done=not first)
        if not first:
            early(A0)
        if GRAM == 1:
            diag(SSx, ss1)
        else:
            for n in range(24):
                r = A1[n >> 2][n & 3]
                d = tA if n & 1 == 0 else tB
                e.valu("v_dot2_f32_bf16", d, r, r, d if n >= 2 else 0)
            e.valu("v_add_f32", ss1, tA, tB)

    def tile_dots(AF, U, SS, first, trs, waits, rel=True, nxt=None):
        trs = list(trs)
        hide = rel and not first
        if hide:
            sc, fa, ft = rot_ops()
        for kk in range(6):
            if waits:
                lq.wait(("a", kk))
            e.mfma(MF32, U, AF[kk], vOnes, U if kk else Uc)
            for _ in range(2 if kk in (1, 2) else 1):
                if trs:
                    tr_read(*trs.pop(0))
            if hide and kk == 0:
                sc()
            if hide and kk == 5:
                ft.pop(0)()
                ft.pop(0)()
            if not first:
                e.mfma(MF32, Sx, AF[kk], Qk[kk], Sx if kk else Sc)
            if trs:
                tr_read(*trs.pop(0))
            if hide and kk < 3:
                fa.pop(0)()
            if hide and kk == 4:
                poll_ahead()
            if hide and kk == 5:
                ft.pop(0)()
                ft.pop(0)()
        assert not trs
        if rel:
            release(done=hide)
        else:
            lq.drain()
        for n in range(24):
            r, r1 = AF[n >> 2][n & 3], A1[n >> 2][n & 3]
            e.valu("v_dot2_f32_bf16", tA, r, r, tA if n else ss1)
            e.valu("v_dot2_f32_bf16", tB, r, r1, tB if n else 0)
        e.valu("v_fma_f32", tA, tB, 2.0, tA)
        e.mfma(MFF, SS, tA, vOne, 0)
        if first:
            return
        if nxt is not None:
            early(nxt, again=not waits and EARLY > 1)
        for f_ in stats_ops(U, SS):
            f_()

    def tile_mfmas(AF, U, SS, first, trs, waits, rel=True, nxt=None):
        if GRAM == 0 or (GRAM == 2 and rel):
            return tile_dots(AF, U, SS, first, trs, waits, rel, nxt)
        trs = list(trs)
        for kk in range(6):
            if waits:
                lq.wait(("a", kk))
            e.mfma(MF32, SS, AF[kk], AF[kk], SS if kk else 0)
            if trs and kk >= 2:
                tr_read(*trs.pop(0))
            e.mfma(MF32, Gx, AF[kk], A1[kk], Gx if kk else 0)
            if trs:
                tr_read(*trs.pop(0))
        fl = sumsq_ops(SS)
        hide = rel and not first
        if hide:
            sc, fa, ft = rot_ops()
        for kk in range(6):
            e.mfma(MF32, U, AF[kk], vOnes, U if kk else Uc)
            if kk < 2:
                if trs:
                    tr_read(*trs.pop(0))
                if hide and kk == 0:
                    sc()
                    fa.pop(0)()
                elif hide:
                    fa.pop(0)()
                    fa.pop(0)()
                elif kk == 1:
                    e.nop(8 - 3 - (2 if waits else 0))
            else:
                for _ in range(2):
                    fl.pop(0)()
        assert not trs
        if first:
            while fl:
                fl.pop(0)()
            e.mfma(MFF, SS, tA, vOne, 0)
            release()
            return
        fl.pop(0)()
        e.mfma(MF32, Sx, AF[0], Qk[0], Sc)
        if hide:
            ft.pop(0)()
            ft.pop(0)()
        else:
            e.nop(1)
        e.mfma(MFF, SS, tA, vOne, 0)
        fl = stats_ops(U, SS, packed=False)
        for kk in range(1, 6):
            e.mfma(MF32, Sx, AF[kk], Qk[kk], Sx)
            if kk >= 2:
                for _ in range(2):
                    fl.pop(0)()
            elif hide:
                ft.pop(0)()
                ft.pop(0)()
            if hide and kk == 3:
                poll_ahead()
        if rel:
            release(done=True)
        else:
            lq.drain()
        if nxt is not None:
            early(nxt, again=not waits and EARLY > 1)
        while fl:
            fl.pop(0)()

    def tile_phase(t, first, AF=None, U=None, SS=None):
        AF = AF or A0
        U = U or Ux
        SS = SS or SSx
        half = t & 1
        if first:
            wait_piece()
            a_reads(AF)
        else:
            begin_piece(AF)
        nxt = None if first else (A1 if t == 3 else A0)
        if t == 2:
            e.valu("v_mov_b32", tC, 0)
            for cb in range(12):
                e.mfma(MF32, acc[cb], T0[cb], Pf, acc[cb])
                tr_read(T0[cb][0:2], cb)
                ones_read(T0[cb][2:4])
            e.label("L_tile2b")
            lq.wait(("a", 5))
            tile_mfmas(AF, U, SS, first, [], False, nxt=nxt)
        else:
            tile_mfmas(AF, U, SS, first, [(T0[cb][2 * half:2 * half + 2], cb) for cb in range(12)], True, nxt=nxt)

    def softmax(t, last=False):
        half = t & 1
        for h in range(2):
            sl = slice(2 * h, 2 * h + 2)
            e.valu("v_pk_fma_f32", Sx[sl], Ux[sl], vCs2, Sx[sl], mods=NEG1)
        for h in range(2):
            e.valu("v_pk_fma_f32", X[2 * h:2 * h + 2], Sx[2 * h:2 * h + 2], SSx[2 * h:2 * h + 2], vNm2)
        e.valu("v_max3_f32", tC, X[0], X[1], X[2])
        e.valu("v_max_f32", tC, tC, X[3])
        e.valu("v_cmp_lt_f32", VCC, sThr, tC)
        for r in range(4):
            e.valu("v_exp_f32", X[r], X[r])
        lbl = newlabel("sm")
        e.salu("s_cbranch_vccz", lbl)
        e.begin_cond()
        e.salu("s_call_b64", sRet, "L_rescale")
        e.end_cond()
        e.raw(f"{lbl}:")
        dst = pp if half == 0 else Sx
        for h in range(2):
            e.valu("v_pk_mul_f32", dst[2 * h:2 * h + 2], X[2 * h:2 * h + 2], SSx[2 * h:2 * h + 2])
            if not last:
                e.valu("v_pk_add_f32", vL2, vL2, X[2 * h:2 * h + 2])
        for h in range(2):
            if t == 0:
                e.valu("v_mov_b32", pc[2 * h], dst[2 * h])
                e.valu("v_mov_b32", pc[2 * h + 1], dst[2 * h + 1])
            else:
                e.valu("v_pk_add_f32", pc[2 * h:2 * h + 2], pc[2 * h:2 * h + 2], dst[2 * h:2 * h + 2])
        if not last:
            for h in range(2):
                sl = slice(2 * h, 2 * h + 2)
                if t == 3 and h == 0:
                    e.valu("v_pk_mul_f32", mu2, dst[sl], Ux[sl])
                else:
                    e.valu("v_pk_fma_f32", mu2, dst[sl], Ux[sl], mu2)
        if t == 1:
            e.valu("v_cvt_pk_bf16_f32", Pf[0], pp[0], pp[1])
            e.valu("v_cvt_pk_bf16_f32", Pf[1], pp[2], pp[3])
            e.valu("v_cvt_pk_bf16_f32", Pf[2], Sx[0], Sx[1])
            e.valu("v_cvt_pk_bf16_f32", Pf[3], Sx[2], Sx[3])
        if t == 2:
            e.valu("v_cvt_pk_bf16_f32", Pf[0], pp[0], pp[1])
            e.valu("v_cvt_pk_bf16_f32", Pf[1], pp[2], pp[3])
            e.valu("v_cvt_pk_bf16_f32", Pf[2], Neg(mu2[0]), Neg(mu2[1]))
            e.valu("v_mov_b32", Pf[3], 0)
            if EARLY > 1:
                early2(A0)
            for cb in range(12):
                e.mfma(MF32, acc[cb], T0[cb], Pf, acc[cb])
        if t == 3:
            e.valu("v_cvt_pk_bf16_f32", Pf[0], Sx[0], Sx[1])
            e.valu("v_cvt_pk_bf16_f32", Pf[1], Sx[2], Sx[3])
            e.valu("v_cvt_pk_bf16_f32", Pf[2], pc[0], pc[1])
            e.valu("v_cvt_pk_bf16_f32", Pf[3], pc[2], pc[3])

    U1, SS1, S1 = acc[6], acc[7], acc[8]
    coarse_phase(True)
    tile_phase(0, True)
    e.salu("s_sub_u32", sT, S(2), NQP)
    e.salu("s_cmp_ge_u32", sT, NPR - NQP)
    e.salu("s_cbranch_scc1", "L_nowf")
    e.begin_cond()
    srd(e, S(24, 4), pDbg, 256)
    e.salu("s_lshl_b32", sT, sT, 4)
    e.valu("v_mov_b32", tA, 1)
    e.waitcnt(vm=0)
    e.salu("s_mov_b64", EXEC, 1)
    e.buf_store("buffer_store_dword", tA, vSy, S(24, 4), sT, offset=DBG_WVO, flags="sc1")
    e.salu("s_mov_b64", EXEC, -1)
    st.mark(11)
    e.end_cond()
    e.raw("L_nowf:")
    tile_phase(1, True, AF=acc[:6], U=U1, SS=SS1)
    for f_ in stats_ops(Ux, SSx) + stats_ops(U1, SS1):
        f_()
    wait_piece()
    st.mark(6)
    lk.at(9, tA, tB)
    e.valu("v_mov_b32", tC, 0)
    lds_spin(e, tC, S_QKRDY, vPoll, sT, 1, sleep=1)
    lq.q = []
    st.mark(2)
    lk.at(2, tA, tB)
    st.cyc(8)
    for kk in range(6):
        e.ds_read("ds_read_b128", Qk[kk], vQa[kk & 1], QK + (kk >> 1) * 128)
    for kk in range(6):
        e.waitcnt(lgkm=5 - kk)
        e.mfma(MF32, Sc, A1[kk], Qk[kk], Sc if kk else 0)
        e.mfma(MF32, acc[9], vOnes, Qk[kk], acc[9] if kk else 0)
    for kk in range(6):
        e.mfma(MF32, Sx, A0[kk], Qk[kk], Sx if kk else Sc)
        e.mfma(MF32, S1, acc[kk], Qk[kk], S1 if kk else Sc)
    a_reads(A0)
    e.valu("v_mov_b32", vCs2[0], acc[9][0])
    e.valu("v_mov_b32", vCs2[1], acc[9][0])
    for (U_, SS_, S_) in ((Ux, SSx, Sx), (U1, SS1, S1)):
        for h in range(2):
            sl = slice(2 * h, 2 * h + 2)
            e.valu("v_pk_fma_f32", S_[sl], U_[sl], vCs2, S_[sl], mods=NEG1)
            e.valu("v_pk_mul_f32", S_[sl], S_[sl], SS_[sl])
    e.valu("v_max3_f32", vM, Sx[0], Sx[1], Sx[2])
    e.valu("v_max3_f32", tC, Sx[3], S1[0], S1[1])
    e.valu("v_max3_f32", vM, vM, S1[2], S1[3])
    e.valu("v_max_f32", vM, vM, tC)
    xg_reduce(e, "v_max_f32", vM, tA, tB)
    e.valu("v_cmp_le_f32_e64", VCC, "|%s|" % vM, sThr)
    e.valu("v_cndmask_b32_e64", vM, vM, 0, VCC)
    e.valu("v_sub_f32", vNm2[0], 0, vM)
    e.valu("v_sub_f32", vNm2[1], 0, vM)
    for S_ in (Sx, S1):
        for h in range(2):
            sl = slice(2 * h, 2 * h + 2)
            e.valu("v_pk_add_f32", S_[sl], S_[sl], vNm2)
        for r in range(4):
            e.valu("v_exp_f32", S_[r], S_[r])
    e.valu("v_pk_add_f32", vL2, Sx[0:2], Sx[2:4])
    e.valu("v_pk_add_f32", vL2, vL2, S1[0:2])
    e.valu("v_pk_add_f32", vL2, vL2, S1[2:4])
    for (SS_, S_) in ((SSx, Sx), (SS1, S1)):
        for h in range(2):
            sl = slice(2 * h, 2 * h + 2)
            e.valu("v_pk_mul_f32", S_[sl], S_[sl], SS_[sl])
    e.valu("v_cvt_pk_bf16_f32", Pf[0], Sx[0], Sx[1])
    e.valu("v_cvt_pk_bf16_f32", Pf[1], Sx[2], Sx[3])
    e.valu("v_cvt_pk_bf16_f32", Pf[2], S1[0], S1[1])
    e.valu("v_cvt_pk_bf16_f32", Pf[3], S1[2], S1[3])
    for h in range(2):
        sl = slice(2 * h, 2 * h + 2)
        e.valu("v_pk_add_f32", pc[sl], Sx[sl], S1[sl])
    e.valu("v_pk_mul_f32", mu2, Sx[0:2], Ux[0:2])
    e.valu("v_pk_fma_f32", mu2, Sx[2:4], Ux[2:4], mu2)
    e.valu("v_pk_fma_f32", mu2, S1[0:2], U1[0:2], mu2)
    e.valu("v_pk_fma_f32", mu2, S1[2:4], U1[2:4], mu2)
    e.valu("v_mov_b32", tC, 0)
    for cb in range(12):
        e.mfma(MF32, acc[cb], T0[cb], Pf, 0)
        tr_read(T0[cb][0:2], cb)
        ones_read(T0[cb][2:4])
    e.fence()
    e.salu("s_branch", "L_tile2b")
    lq.q = []

    e.raw("L_rescale:")
    e.nop(16)
    for r in range(4):
        e.valu("v_mul_f32", X[r], Sx[r], SSx[r])
    e.valu("v_max3_f32", tC, X[0], X[1], X[2])
    e.valu("v_max3_f32", tC, tC, X[3], vM)
    xg_reduce(e, "v_max_f32", tC, tA, tB)
    al = V(22, 2)
    e.valu("v_sub_f32", al[0], vM, tC)
    e.valu("v_exp_f32", al[0], al[0])
    e.valu("v_mov_b32", vM, tC)
    e.valu("v_sub_f32", vNm2[0], 0, tC)
    e.valu("v_sub_f32", vNm2[1], 0, tC)
    e.valu("v_mov_b32", al[1], al[0])
    for r in range(4):
        e.valu("v_sub_f32", X[r], X[r], tC)
    for r in range(4):
        e.valu("v_exp_f32", X[r], X[r])
    for q_ in [vL2, mu2, pc[0:2], pc[2:4], pp[0:2], pp[2:4]] + [a_[2 * h:2 * h + 2] for a_ in acc for h in range(2)]:
        e.valu("v_pk_mul_f32", q_, q_, al)
    e.fence()
    e.salu("s_setpc_b64", sRet)

    e.label("L_loop")
    if opt.get("nocmp"):
        e.drop.update((MF32, MFF, "ds_read_b128", "ds_read_b64_tr_b16", "ds_read_b64"))
    st.cyc(7)
    coarse_phase(False)
    tile_phase(0, False)
    softmax(0)
    tile_phase(1, False)
    softmax(1)
    tile_phase(2, False)
    softmax(2)
    e.salu("s_cmp_eq_u32", sIt, NITER - 1)
    e.salu("s_cbranch_scc1", "L_last")
    tile_phase(3, False)
    softmax(3)
    e.salu("s_add_u32", sIt, sIt, 1)
    e.fence()
    e.salu("s_branch", "L_loop")

    e.drop.clear()
    e.raw("L_last:")
    lq.q = [None]
    for a_ in acc:
        for r_ in a_.regs():
            e.w[r_] = (e.pos - 1, "xdl4", (a_.f, a_.i, a_.n))
    st.cyc(9)
    fr = [T0[cb][0:2] for cb in range(12)]
    vFr, vSt = fr[0][0], fr[0][1]
    vOn1, vZ0 = fr[1][0], fr[1][1]
    if opt.get("lprio", 2):
        e.salu("s_setprio", opt.get("lprio", 2))
    e.valu("v_and_b32", tA, 15, lane)
    e.valu("v_lshrrev_b32", tB, 4, lane)
    e.valu("v_lshlrev_b32", vFr, 4, lane)
    e.valu("v_lshlrev_b32", tB, 2, tB)
    e.valu("v_add_u32", vFr, sLds, vFr)
    e.valu("v_lshl_add_u32", vSt, tA, 4, tB)
    e.valu("v_add_u32", vSt, sLds, vSt)
    FINE = opt.get("fine", 0)
    if FINE:
        st.cyc(5)
    lq.q = []
    begin_piece(A0, sleep=0)
    if FINE:
        st.cyc(7)
    tile_mfmas(A0, Ux, SSx, False, [(T0[cb][2:4], cb) for cb in range(12)], True, rel=False)
    if FINE:
        st.cyc(8)
    softmax(3, True)
    st.mark(3)
    if FINE:
        st.cyc(11)

    def put(kk):
        pk = A1[kk]
        for q_ in range(2):
            e.valu("v_cvt_pk_bf16_f32", pk[2 * q_], acc[2 * kk + q_][0], acc[2 * kk + q_][1])
            e.valu("v_cvt_pk_bf16_f32", pk[2 * q_ + 1], acc[2 * kk + q_][2], acc[2 * kk + q_][3])
        e.ds_write("ds_write_b128", vFr, pk, FRAG + 1024 * kk)

    def flagval():
        e.salu("s_cmp_eq_u64", VCC, 0)
        e.salu("s_cselect_b32", sT, 1, 2)
        e.valu("v_mov_b32", vOn1, sT)
    fill = [lambda: e.valu("v_cmp_neq_f32", VCC, 0, vM),
            lambda: e.valu("v_add_f32", X[0], X[0], X[1]),
            lambda: e.valu("v_add_f32", X[2], X[2], X[3]),
            lambda: e.valu("v_add_f32", vL2[0], vL2[0], vL2[1]),
            lambda: e.valu("v_add_f32", X[0], X[0], X[2]),
            lambda: e.ds_write("ds_write_b32", vSt, vM, WST + 512),
            lambda: e.valu("v_add_f32", vL2[0], vL2[0], X[0]),
            flagval,
            lambda: e.ds_write("ds_write_b32", vSt, vL2[0], WST)]
    post = []
    for kk in range(6):
        pk = A1[kk]
        for q_ in range(2):
            for h in range(2):
                post.append(lambda kk=kk, q_=q_, h=h, pk=pk: e.valu("v_cvt_pk_bf16_f32", pk[2 * q_ + h], acc[2 * kk + q_][2 * h], acc[2 * kk + q_][2 * h + 1]))
        post.append(lambda kk=kk, pk=pk: e.ds_write("ds_write_b128", vFr, pk, FRAG + 1024 * kk))
    for cb in range(12):
        e.mfma(MF32, acc[cb], TH[cb], Pf, acc[cb])
        if cb < 3:
            for _ in range(3):
                fill.pop(0)()
        else:
            for _ in range(2 + (cb & 1 ^ 1)):
                post.pop(0)()
    while post:
        post.pop(0)()
    e.ds_write("ds_write_b32", vSy, vOn1, S_FR)
    st.mark(4)
    if FINE:
        st.cyc(1)
    e.salu("s_setprio", 0)

    sId = S(53)
    e.salu("s_cmp_lt_u32", S(2), NWG - NCB)
    e.salu("s_cbranch_scc1", "L_r_end")
    e.salu("s_sub_u32", sId, S(2), NWG - NCB)
    e.salu("s_and_b32", sT, sId, 7)
    e.salu("s_lshr_b32", sT2, sId, 4)
    e.salu("s_lshl_b32", sT2, sT2, 3)
    e.salu("s_or_b32", sT, sT, sT2)
    e.salu("s_lshl_b32", sT, sT, 1)
    e.salu("s_bfe_u32", sT2, sId, 0x10003)
    e.salu("s_or_b32", sId, sT, sT2)
    sQ, sO = S(24, 4), S(28, 4)
    srd(e, sQ, pQ, 6144)
    srd(e, sO, S(18, 2), 6144)
    nq, wgp, vP, vO, c0, c1, vW, vR, c2, vAlt, tg = [V(28 + k) for k in range(11)]
    e.valu("v_and_b32", nq, 3, lane)
    e.valu("v_lshrrev_b32", wgp, 2, lane)
    e.valu("v_lshlrev_b32", vP, 15, wgp)
    e.valu("v_lshl_add_u32", vP, nq, 4, vP)
    e.valu("v_lshlrev_b32", c0, 2, nq)
    e.ds_read("ds_read_b32", tg, c0, TAGS)
    e.salu("s_lshl_b32", sT, sWave, 19)
    e.salu("s_lshl_b32", sT2, sId, 6)
    e.salu("s_add_u32", sT, sT, sT2)
    e.salu("s_add_u32", sT, sT, WS_P)
    sC = [S(4), S(5), S(6)]
    e.salu("s_and_b32", sT2, sId, 3)
    e.salu("s_mul_i32", sT2, sT2, 4 * 384)
    e.valu("v_mul_u32_u24", vO, 384, nq)
    e.valu("v_add_u32", vO, sT2, vO)
    e.salu("s_lshr_b32", sT2, sId, 5)
    e.salu("s_mul_i32", sC[2], sT2, 96)
    e.salu("s_bfe_u32", sT2, sId, 0x20002)
    e.salu("s_lshl_b32", sT2, sT2, 3)
    e.salu("s_add_u32", sC[2], sC[2], sT2)
    e.salu("s_bitcmp1_b32", sId, 4)
    e.salu("s_cselect_b32", sC[0], 36, 0)
    e.salu("s_cselect_b32", sC[1], 64, 4)
    e.salu("s_cselect_b32", sT2, 68, 32)
    e.salu("s_add_u32", sC[0], sC[0], sC[2])
    e.salu("s_add_u32", sC[1], sC[1], sC[2])
    e.salu("s_add_u32", sC[2], sC[2], sT2)
    qv = V(56, 3)
    for k in range(3):
        e.buf_load("buffer_load_dword", qv[k], vO, sQ, sC[k])
    if opt.get("tlbo", 0):
        e.buf_load("buffer_load_dword", V(59), vO, sO, sC[0])
    e.valu("v_lshrrev_b32", c0, 4, lane)
    e.valu("v_lshlrev_b32", vW, 7, c0)
    e.valu("v_lshl_add_u32", vW, nq, 5, vW)
    e.salu("s_lshl_b32", sT2, sWave, 9)
    e.salu("s_add_u32", sT2, sT2, CEX)
    e.valu("v_add_u32", vW, sT2, vW)
    e.valu("v_and_b32", vR, 15, lane)
    e.valu("v_lshlrev_b32", vR, 5, vR)
    P = [V(40 + 4 * i, 4) for i in range(4)]
    R8 = V(60, 8)
    a6, L, M = R8[0:6], R8[6], R8[7]
    qf = V(120, 6)
    sBad = [S(44, 2), S(46, 2), S(58, 2), S(60, 2)]
    sLo1, sHi1 = S(38), S(39)
    e.valu("v_mov_b32", c0, 0)
    for k in range(8):
        e.valu("v_mov_b32", R8[k], 0)
    e.valu("v_mov_b32", vAlt, 0)
    for i in range(4):
        e.salu("s_mov_b64", sBad[i], -1)
    e.salu("s_mov_b32", sLo1, 0x00003F80)
    e.salu("s_mov_b32", sHi1, 0x3F800000)
    e.waitcnt(vm=0, lgkm=0)
    for k in range(3):
        e.valu("v_lshlrev_b32", qf[2 * k], 16, qv[k])
        e.valu("v_and_b32", qf[2 * k + 1], 0xFFFF0000, qv[k])
    if opt.get("gate", 1):
        lds_spin(e, c0, S_EMP, c1, sT2, 4)
    if opt.get("pre", 4):
        e.salu("s_mov_b64", EXEC, {1: 0x1, 2: 0x10001, 4: 0x1111, 8: 0x11111111}[opt.get("pre", 4)])
        e.label("L_tpre")
        e.buf_load("buffer_load_dword", c0, vP, sWS, sT, offset=12, flags=PFL)
        e.waitcnt(vm=0)
        e.valu("v_xor_b32", c0, c0, tg)
        e.valu("v_and_b32", c0, 0xFFFE, c0)
        e.valu("v_cmp_ne_u32", VCC, 0, c0)
        e.salu("s_cbranch_vccnz", "L_tpre")
        e.salu("s_mov_b64", EXEC, -1)
    e.label("L_tpoll")
    for i in range(4):
        lb_ = newlabel("tskip")
        e.salu("s_add_u32", sT2, sT, PSZ * i)
        e.salu("s_cmp_eq_u64", sBad[i], 0)
        e.salu("s_cbranch_scc1", lb_)
        e.begin_cond()
        e.salu("s_mov_b64", EXEC, sBad[i])
        e.buf_load("buffer_load_dwordx4", P[i], vP, sWS, sT2, flags=LFL)
        e.end_cond()
        e.raw(f"{lb_}:")
    e.waitcnt(vm=0)
    for i in range(4):
        lb_ = newlabel("tchk")
        e.salu("s_cmp_eq_u64", sBad[i], 0)
        e.salu("s_cbranch_scc1", lb_)
        e.begin_cond()
        e.salu("s_mov_b64", EXEC, sBad[i])
        e.valu("v_xor_b32", c2, P[i][3], tg)
        e.valu("v_and_b32", c0, 0xFFFE, c2)
        e.valu("v_and_b32", c1, 0xFFFF0000, P[i][3])
        e.valu("v_or_b32_dpp", c0, c0, c0, mods="quad_perm:[1,0,3,2] row_mask:0xf bank_mask:0xf")
        e.valu("v_or_b32_dpp", c0, c0, c0, mods="quad_perm:[2,3,0,1] row_mask:0xf bank_mask:0xf")
        e.valu("v_cmp_eq_u32", VCC, 0, c0)
        e.nop(1)
        e.salu("s_andn2_b64", sBad[i], sBad[i], VCC)
        e.salu("s_and_b64", EXEC, VCC, VCC)
        e.salu("s_cbranch_scc0", lb_)
        for k in range(6):
            e.valu("v_dot2_f32_bf16", a6[k], P[i][k >> 1], sHi1 if k & 1 else sLo1, a6[k])
        e.valu("v_add_f32", L, L, c1)
        e.valu("v_or_b32", vAlt, vAlt, c2)
        e.end_cond()
        e.raw(f"{lb_}:")
    e.salu("s_mov_b64", EXEC, -1)
    sCn, sPi, sMk = S(54), S(55), S(56, 2)
    e.salu("s_or_b64", sMk, sBad[0], sBad[1])
    e.salu("s_or_b64", VCC, sBad[2], sBad[3])
    e.salu("s_or_b64", sMk, sMk, VCC)
    e.salu("s_cbranch_scc0", "L_tfull")
    e.salu("s_mov_b32", sCn, 0)
    for i in (3, 2, 1, 0):
        e.salu("s_bcnt1_i32_b64", sT2, sBad[i])
        e.salu("s_cselect_b32", sPi, PSZ * i if i else 0, sPi)
        e.salu("s_cselect_b64", sMk, sBad[i], sMk)
        e.salu("s_add_u32", sCn, sCn, sT2)
    e.salu("s_cmp_le_u32", sCn, 4 * opt.get("tfew", 8))
    e.salu("s_cbranch_scc1", "L_tpoll")
    e.salu("s_ff1_i32_b64", sT2, sMk)
    e.salu("s_lshl_b64", EXEC, 1, sT2)
    e.salu("s_add_u32", sPi, sPi, sT)
    e.label("L_tprobe")
    e.buf_load("buffer_load_dword", c0, vP, sWS, sPi, offset=12, flags=PFL)
    e.waitcnt(vm=0)
    e.valu("v_xor_b32", c0, c0, tg)
    e.valu("v_and_b32", c0, 0xFFFE, c0)
    e.valu("v_cmp_ne_u32", VCC, 0, c0)
    e.salu("s_cbranch_vccnz", "L_tprobe")
    e.salu("s_mov_b64", EXEC, -1)
    e.salu("s_branch", "L_tpoll")
    e.label("L_tfull")
    st.mark(10)
    lk.at(6, c0, c1)
    e.valu("v_and_b32", c0, 1, vAlt)
    e.valu("v_cmp_ne_u32", VCC, 0, c0)
    e.salu("s_cbranch_vccnz", "L_tgen")
    e.label("L_trows")
    for k in (4, 8):
        for x in range(7):
            e.valu("v_add_f32_dpp", R8[x], R8[x], R8[x], mods=f"row_ror:{k} row_mask:0xf bank_mask:0xf")
    e.salu("s_mov_b32", S(46), 0x000F000F)
    e.salu("s_mov_b32", S(47), 0x000F000F)
    e.salu("s_mov_b64", EXEC, S(46, 2))
    e.ds_write("ds_write_b128", vW, R8[0:4], 0)
    e.ds_write("ds_write_b128", vW, R8[4:8], 16)
    e.salu("s_mov_b64", EXEC, -1)
    e.waitcnt(lgkm=0)
    e.barrier()
    e.salu("s_cmp_lg_u32", sWave, 0)
    e.salu("s_cbranch_scc1", "L_r_end")
    Xv = [V(80 + 8 * v, 8) for v in range(4)]
    for v in range(4):
        e.ds_read("ds_read_b128", Xv[v][4:8], vR, CEX + 512 * v + 16)
    for v in range(4):
        e.ds_read("ds_read_b128", Xv[v][0:4], vR, CEX + 512 * v)
    e.waitcnt(lgkm=4)
    e.valu("v_or3_b32", c0, Xv[0][7], Xv[1][7], Xv[2][7])
    e.valu("v_or_b32", c0, c0, Xv[3][7])
    e.valu("v_cmp_ne_u32", VCC, 0, c0)
    e.salu("s_cbranch_vccnz", "L_fgen")
    e.label("L_fsum")
    for h in (3, 2, 0, 1):
        sl = slice(2 * h, 2 * h + 2)
        if h == 0:
            e.waitcnt(lgkm=0)
        e.valu("v_pk_add_f32", R8[sl], Xv[0][sl], Xv[1][sl])
        e.valu("v_pk_add_f32", Xv[2][sl], Xv[2][sl], Xv[3][sl])
    for h in (3, 2, 0, 1):
        sl = slice(2 * h, 2 * h + 2)
        e.valu("v_pk_add_f32", R8[sl], R8[sl], Xv[2][sl])
    for k in (4, 8):
        for x in (6, 0, 1, 2, 3, 4, 5):
            e.valu("v_add_f32_dpp", R8[x], R8[x], R8[x], mods=f"row_ror:{k} row_mask:0xf bank_mask:0xf")
            if k == 8 and x == 1:
                e.valu("v_rcp_f32", L, L)
    for h in range(3):
        sl = slice(2 * h, 2 * h + 2)
        e.valu("v_pk_mul_f32", a6[sl], a6[sl], R8[6:8], mods="op_sel_hi:[1,0]")
    for h in range(3):
        e.valu("v_cvt_pk_bf16_f32", qv[h], a6[2 * h], a6[2 * h + 1])
    for h in range(3):
        e.valu("v_lshlrev_b32", a6[2 * h], 16, qv[h])
        e.valu("v_and_b32", a6[2 * h + 1], 0xFFFF0000, qv[h])
    for h in range(3):
        sl = slice(2 * h, 2 * h + 2)
        e.valu("v_pk_add_f32", a6[sl], a6[sl], qf[sl])
    e.salu("s_mov_b64", EXEC, 0xF)
    for h in range(3):
        e.valu("v_cvt_pk_bf16_f32", qv[h], a6[2 * h], a6[2 * h + 1])
        e.buf_store("buffer_store_dword", qv[h], vO, sO, sC[h])
    e.salu("s_mov_b64", EXEC, -1)
    st.mark(12)
    lk.at(7, c0, c1)
    lk.spend(c0, c1)
    e.label("L_r_end")
    st.dump(sWS, 14, [V(126), V(127)])
    e.salu("s_endpgm")

    e.raw("L_tgen:")
    e.nop(4)
    Fv = [V(112 + 2 * i, 2) for i in range(4)]
    tw, vE = V(70), V(71)
    e.valu("v_mov_b32", c0, 0)
    e.ds_read("ds_read_b64", V(72, 2), c0, TAGS)
    e.valu("v_lshlrev_b32", vE, 9, wgp)
    e.valu("v_lshl_add_u32", vE, nq, 3, vE)
    e.salu("s_and_b32", sT2, sId, 3)
    e.salu("s_lshl_b32", sT2, sT2, 5)
    e.salu("s_lshl_b32", sPi, sWave, 13)
    e.salu("s_add_u32", sPi, sPi, sT2)
    e.salu("s_add_u32", sPi, sPi, WS_E)
    e.waitcnt(lgkm=0)
    e.valu("v_lshl_or_b32", tw, V(73), 16, V(72))
    for i in range(4):
        e.valu("v_mov_b32", Fv[i][0], 0)
        e.valu("v_and_b32", c0, 1, P[i][3])
        e.valu("v_cmp_ne_u32", VCC, 0, c0)
        e.nop(1)
        e.salu("s_and_b64", EXEC, VCC, VCC)
        e.salu("s_cbranch_scc0", f"L_tg{i}e")
        e.label(f"L_tg{i}")
        e.buf_load("buffer_load_dwordx2", Fv[i], vE, sWS, sPi, offset=128 * i, flags="sc1")
        e.waitcnt(vm=0)
        e.valu("v_cmp_ne_u32", VCC, Fv[i][1], tw)
        e.salu("s_cbranch_vccnz", f"L_tg{i}")
        e.raw(f"L_tg{i}e:")
        e.salu("s_mov_b64", EXEC, -1)
    e.valu("v_max3_f32", M, Fv[0][0], Fv[1][0], Fv[2][0])
    e.valu("v_max_f32", M, M, Fv[3][0])
    for k in (4, 8):
        e.valu("v_max_f32_dpp", M, M, M, mods=f"row_ror:{k} row_mask:0xf bank_mask:0xf")
    xg_reduce(e, "v_max_f32", M, c0, c1)
    for k in range(7):
        e.valu("v_mov_b32", R8[k], 0)
    for i in range(4):
        e.valu("v_sub_f32", c2, Fv[i][0], M)
        e.valu("v_exp_f32", c2, c2)
        for k in range(7):
            if k & 1 or k == 6:
                e.valu("v_and_b32", c0, 0xFFFF0000, P[i][k >> 1])
            else:
                e.valu("v_lshlrev_b32", c0, 16, P[i][k >> 1])
            e.valu("v_fmac_f32", R8[k], c2, c0, rmw=True)
    e.fence()
    e.salu("s_branch", "L_trows")

    e.raw("L_fgen:")
    e.waitcnt(lgkm=0)
    e.valu("v_max3_f32", M, Xv[0][7], Xv[1][7], Xv[2][7])
    e.valu("v_max_f32", M, M, Xv[3][7])
    for v in range(4):
        e.valu("v_sub_f32", c0, Xv[v][7], M)
        e.valu("v_exp_f32", c0, c0)
        for k in range(7):
            e.valu("v_mul_f32", Xv[v][k], Xv[v][k], c0)
    e.fence()
    e.salu("s_branch", "L_fsum")

    e.w.clear(); e.cread.clear(); e.stread.clear()
    e.raw("L_qkprod:")
    pj, pg, pz, p0, p1 = V(28), V(29), V(30), V(31), V(32)
    vB = [V(34 + k) for k in range(4)]
    vTp = [V(38 + k) for k in range(3)]
    vTq = [V(41 + k) for k in range(3)]
    vXw = [V(44 + k) for k in range(3)]
    vL16 = V(47)
    qp = [V(52 + k) for k in range(24)]
    sCb = S(53)
    sCode = S(28, 4)
    e.salu("s_getpc_b64", sCode[0:2])
    e.salu("s_mov_b32", sCode[2], 4096)
    e.salu("s_mov_b32", sCode[3], 0x20000)
    e.valu("v_lshlrev_b32", p0, 6, lane)
    e.buf_load("buffer_load_dword", V(50), p0, sCode, 0)
    e.valu("v_and_b32", pj, 15, lane)
    e.valu("v_lshrrev_b32", pg, 4, lane)
    e.valu("v_mov_b32", pz, 0)
    e.valu("v_lshlrev_b32", vL16, 4, lane)
    e.valu("v_add_u32", vL16, QL, vL16)
    e.valu("v_mul_u32_u24", p0, 384, pj)
    e.valu("v_and_b32", p1, 1, pg)
    e.valu("v_lshl_add_u32", p0, p1, 3, p0)
    e.valu("v_add_u32", p0, STAGE, p0)
    e.valu("v_lshrrev_b32", p1, 1, pg)
    e.valu("v_and_b32", vB[3], 6, pj)
    e.valu("v_xor_b32", p1, p1, vB[3])
    for q in range(4):
        e.valu("v_xor_b32", vB[q], 2 * q, p1)
        e.valu("v_lshl_add_u32", vB[q], vB[q], 4, p0)
    e.valu("v_lshrrev_b32", p0, 2, pj)
    e.valu("v_lshl_add_u32", p0, pg, 2, p0)
    e.valu("v_and_b32", p1, 6, p0)
    e.valu("v_mul_u32_u24", p0, 384, p0)
    e.valu("v_and_b32", vTq[0], 3, pj)
    e.valu("v_lshl_add_u32", p0, vTq[0], 3, p0)
    for c in range(3):
        e.salu("s_mul_i32", sCb, sWave, 3)
        e.salu("s_add_u32", sCb, sCb, c)
        e.salu("s_and_b32", sT, sCb, 3)
        e.salu("s_lshl_b32", sT, sT, 1)
        e.valu("v_xor_b32", vTp[c], sT, p1)
        e.valu("v_lshl_add_u32", vTp[c], vTp[c], 4, p0)
        e.salu("s_lshr_b32", sT, sCb, 2)
        e.salu("s_lshl_b32", sT, sT, 7)
        e.salu("s_add_u32", sT, sT, RING0 + wslot(0) * TILE)
        e.valu("v_add_u32", vTp[c], sT, vTp[c])
        e.valu("v_add_u32", vTq[c], (wslot(8) - wslot(0)) * TILE, vTp[c])
        e.salu("s_lshr_b32", sT, sCb, 1)
        e.salu("s_lshl_b32", sT, sT, 10)
        e.salu("s_and_b32", sT2, sCb, 1)
        e.salu("s_lshl_b32", sT2, sT2, 3)
        e.salu("s_add_u32", sT, sT, sT2)
        e.valu("v_add_u32", vXw[c], sT, vL16)
    lds_spin(e, pz, S_WL, p0, sT, 1)
    st.mark(5)
    for kk in range(6):
        for hf in range(2):
            e.ds_read("ds_read_b64", V(52 + 4 * kk + 2 * hf, 2), vB[2 * (kk & 1) + hf], (kk >> 1) * 128)
    sm, one2 = V(76), V(77)
    mean, var = V(78, 2), V(80, 2)
    xs = [V(82, 2), V(84, 2)]
    e.valu("v_mov_b32", one2, 0x3F803F80)
    e.waitcnt(lgkm=0)
    if opt.get("lnfast", 1):
        for k in range(24):
            e.valu("v_dot2_f32_bf16", sm, qp[k], one2, sm if k else 0)
            e.valu("v_dot2_f32_bf16", var[0], qp[k], qp[k], var[0] if k else 0)
        for sw in ("v_permlane32_swap_b32", "v_permlane16_swap_b32"):
            e.valu("v_mov_b32", p0, sm)
            e.valu("v_mov_b32", p1, sm)
            e.valu("v_mov_b32", xs[0][0], var[0])
            e.valu("v_mov_b32", xs[0][1], var[0])
            e.valu(sw, p0, p1)
            e.valu(sw, xs[0][0], xs[0][1])
            e.valu("v_add_f32", sm, p0, p1)
            e.valu("v_add_f32", var[0], xs[0][0], xs[0][1])
        e.valu("v_mul_f32", mean[0], sInv, sm)
        e.valu("v_mul_f32", var[0], sInv, var[0])
        e.valu("v_fma_f32", var[0], Neg(mean[0]), mean[0], var[0])
        e.valu("v_max_f32", var[0], 0, var[0])
    else:
        for k in range(24):
            e.valu("v_dot2_f32_bf16", sm, qp[k], one2, sm if k else 0)
        xg_reduce(e, "v_add_f32", sm, p0, p1)
        e.valu("v_mul_f32", mean[0], sInv, sm)
        e.valu("v_mul_f32", mean[1], sInv, sm)
        for k in range(24):
            x = xs[k & 1]
            e.valu("v_lshlrev_b32", x[0], 16, qp[k])
            e.valu("v_and_b32", x[1], 0xFFFF0000, qp[k])
            e.valu("v_pk_add_f32", x, x, mean, mods="neg_lo:[0,1] neg_hi:[0,1]")
            if k == 0:
                e.valu("v_pk_mul_f32", var, x, x)
            else:
                e.valu("v_pk_fma_f32", var, x, x, var)
        e.valu("v_add_f32", var[0], var[0], var[1])
        xg_reduce(e, "v_add_f32", var[0], p0, p1)
        e.valu("v_mul_f32", var[0], sInv, var[0])
    bf16_round(e, mean[0])
    e.valu("v_mov_b32", mean[1], mean[0])
    bf16_round(e, var[0])
    e.valu("v_add_f32", var[0], 1.0e-5, var[0])
    bf16_round(e, var[0])
    e.valu("v_sqrt_f32", var[0], var[0])
    bf16_round(e, var[0])
    e.valu("v_rcp_f32", var[0], var[0])
    e.valu("v_mov_b32", var[1], var[0])
    for k in range(24):
        x = xs[k & 1]
        e.valu("v_lshlrev_b32", x[0], 16, qp[k])
        e.valu("v_and_b32", x[1], 0xFFFF0000, qp[k])
        e.valu("v_pk_add_f32", x, x, mean, mods="neg_lo:[0,1] neg_hi:[0,1]")
        e.valu("v_cvt_pk_bf16_f32", qp[k], x[0], x[1])
        e.valu("v_lshlrev_b32", x[0], 16, qp[k])
        e.valu("v_and_b32", x[1], 0xFFFF0000, qp[k])
        e.valu("v_pk_mul_f32", x, x, var)
        e.valu("v_cvt_pk_bf16_f32", qp[k], x[0], x[1])
    st.mark(10)
    lds_spin(e, pz, S_WL, p0, sT, 2)
    e.waitcnt(vm=0)
    if opt.get("pdbg"):
        st.mark(1)
    Fr = [[V(100 + 12 * kk + 4 * c, 4) for c in range(3)] for kk in range(6)]
    Dq = [V(88 + 4 * c, 4) for c in range(3)]
    for kk in range(6):
        for c in range(3):
            for hf in range(2):
                t = 2 * kk + hf
                base = vTp[c] if t < 8 else vTq[c]
                e.ds_read("ds_read_b64_tr_b16", Fr[kk][c][2 * hf:2 * hf + 2], base, (wslot(t) - wslot(0 if t < 8 else 8)) * TILE)
        if kk >= 2:
            e.waitcnt(lgkm=12)
            for c in range(3):
                e.mfma(MF32, Dq[c], Fr[kk - 2][c], V(52 + 4 * (kk - 2), 4), Dq[c] if kk - 2 else 0)
    for kk in (4, 5):
        e.waitcnt(lgkm=6 * (5 - kk))
        for c in range(3):
            e.mfma(MF32, Dq[c], Fr[kk][c], V(52 + 4 * kk, 4), Dq[c])
    for c in range(3):
        pk = V(76 + 2 * c, 2)
        e.valu("v_cvt_pk_bf16_f32", pk[0], Dq[c][0], Dq[c][1])
        e.valu("v_cvt_pk_bf16_f32", pk[1], Dq[c][2], Dq[c][3])
        e.ds_write("ds_write_b64", vXw[c], pk, 0)
    lds_inc(e, pz, p0, S_AUX)
    e.salu("s_cmp_ge_u32", sWave, 2)
    e.salu("s_cbranch_scc1", "L_qkp_done")
    if opt.get("pdbg"):
        st.mark(12)
    lds_spin(e, pz, S_WL, p0, sT, 3)
    if opt.get("pdbg"):
        st.mark(13)
    e.salu("s_mul_i32", sT, sWave, 2 * TILE)
    e.salu("s_add_u32", sT, sT, RING0 + wslot(12) * TILE - STAGE)
    for q in range(4):
        e.valu("v_add_u32", vB[q], sT, vB[q])
    for c in range(2):
        for kk in range(6):
            for hf in range(2):
                e.ds_read("ds_read_b64", V(100 + 24 * c + 4 * kk + 2 * hf, 2), vB[2 * (kk & 1) + hf], c * TILE + (kk >> 1) * 128)
    lds_spin(e, pz, S_AUX, p0, sT, 4)
    for kk in range(6):
        e.ds_read("ds_read_b128", V(52 + 4 * kk, 4), vL16, 1024 * kk)
    e.salu("s_lshl_b32", sT2, S(2), 1)
    e.salu("s_add_u32", sT2, sT2, sWave)
    e.salu("s_lshl_b32", sT2, sT2, 10)
    e.salu("s_add_u32", sT2, sT2, WS_QK)
    e.valu("v_lshlrev_b32", V(33), 4, lane)
    for kk in range(6):
        e.waitcnt(lgkm=5 - kk)
        for c in range(2):
            e.mfma(MF32, Dq[c], V(100 + 24 * c + 4 * kk, 4), V(52 + 4 * kk, 4), Dq[c] if kk else 0)
    lds_spin(e, pz, S_EMPT, p0, sT, 1)
    e.salu("s_mov_b32", sT, QSCALE)
    pk = V(76, 4)
    for c in range(2):
        for r in range(4):
            e.valu("v_mul_f32", Dq[c][r], sT, Dq[c][r])
        e.valu("v_cvt_pk_bf16_f32", pk[2 * c], Dq[c][0], Dq[c][1])
        e.valu("v_cvt_pk_bf16_f32", pk[2 * c + 1], Dq[c][2], Dq[c][3])
    for k in range(4):
        e.valu("v_min_u32", pk[k], -2, pk[k])
    e.buf_store("buffer_store_dwordx4", pk, V(33), sWS, sT2, flags="sc1")
    st.mark(11)
    e.label("L_qkp_done")
    lds_inc(e, pz, p0, S_ISS)
    e.waitcnt(lgkm=0)
    e.fence()
    e.salu("s_branch", "L_c_start")

    e.w.clear(); e.cread.clear(); e.stread.clear()
    e.raw("L_wvprod:")
    Bw = [V(28 + 4 * kd, 4) for kd in range(6)]
    Dv = [V(52 + 4 * t, 4) for t in range(12)]
    Av = [[V(100 + 24 * b_ + 4 * kd, 4) for kd in range(6)] for b_ in range(2)]
    w0, w1, wz, vTw = V(148), V(149), V(150), V(151)
    vAb = [[V(152), V(153)], [V(154), V(155)]]
    e.salu("s_getpc_b64", sCode[0:2])
    e.salu("s_mov_b32", sCode[2], 4096)
    e.salu("s_mov_b32", sCode[3], 0x20000)
    e.valu("v_lshlrev_b32", w0, 6, lane)
    e.buf_load("buffer_load_dword", V(156), w0, sCode, 0)
    e.valu("v_mov_b32", wz, 0)
    for b_ in range(2):
        for k in range(2):
            e.valu("v_add_u32", vAb[b_][k], RING0 + wslot(8 * b_) * TILE, vQa[k])
    e.valu("v_lshrrev_b32", w0, 4, lane)
    e.valu("v_bfe_u32", w1, lane, 2, 2)
    e.valu("v_lshl_add_u32", w0, w0, 3, w1)
    e.valu("v_and_b32", w1, 3, lane)
    e.valu("v_lshlrev_b32", w1, 3, w1)
    e.valu("v_lshl_add_u32", vTw, w0, 7, w1)
    e.salu("s_lshl_b32", sT, sWave, 5)
    e.salu("s_add_u32", sT, sT, WOB)
    e.valu("v_add_u32", vTw, sT, vTw)
    lds_spin(e, wz, S_WL, w0, sT, 1)
    for kd in range(6):
        for hf in range(2):
            e.ds_read("ds_read_b64_tr_b16", Bw[kd][2 * hf:2 * hf + 2], vTw, (32 * kd + 4 * hf) * 128)

    def wv_reads(t):
        return [lambda kd=kd: e.ds_read("ds_read_b128", Av[t & 1][kd], vAb[t >> 3][kd & 1], (wslot(t) - wslot(t & 8)) * TILE + (kd >> 1) * 128)
                for kd in range(6)]
    lds_spin(e, wz, S_WL, w0, sT, 2)
    e.waitcnt(vm=0)
    st.mark(5)
    for f_ in wv_reads(0):
        f_()
    for t in range(12):
        if t == 7:
            lds_spin(e, wz, S_WL, w0, sT, 3)
        nx = wv_reads(t + 1) if t < 11 else []
        for kd in range(6):
            e.waitcnt(lgkm=5)
            e.mfma(MF32, Dv[t], Av[t & 1][kd], Bw[kd], Dv[t] if kd else 0)
            if nx:
                nx.pop(0)()
            elif kd < 5:
                e.waitcnt(lgkm=4 - kd)
    lds_inc(e, wz, w0, S_ISS)
    m2 = V(158, 2)
    n2 = V(160, 2)
    for t in range(1, 12):
        e.valu("v_pk_add_f32", m2, Dv[0][0:2] if t == 1 else m2, Dv[t][0:2])
        e.valu("v_pk_add_f32", n2, Dv[0][2:4] if t == 1 else n2, Dv[t][2:4])
    e.valu("v_pk_add_f32", m2, m2, n2)
    e.valu("v_add_f32", m2[0], m2[0], m2[1])
    xg_reduce(e, "v_add_f32", m2[0], w0, w1)
    e.valu("v_mul_f32", m2[0], sInv, m2[0])
    e.salu("s_sub_u32", sT, S(2), NQP)
    e.salu("s_lshl_b32", sT, sT, 2)
    e.salu("s_add_u32", sT, sT, sWave)
    e.salu("s_mul_i32", sT, sT, 6144)
    e.salu("s_add_u32", sT, sT, WS_WVO)
    e.valu("v_lshlrev_b32", w0, 4, lane)
    for kk in range(6):
        pk = V(164 + 4 * kk, 4)
        for c in range(2):
            for h in range(2):
                x = Dv[2 * kk + c][2 * h:2 * h + 2]
                e.valu("v_pk_add_f32", x, x, m2, mods="op_sel_hi:[1,0] neg_lo:[0,1] neg_hi:[0,1]")
                e.valu("v_cvt_pk_bf16_f32", pk[2 * c + h], x[0], x[1])
        e.salu("s_add_u32", sT2, sT, 1024 * kk)
        e.buf_store("buffer_store_dwordx4", pk, w0, sWS, sT2, flags="sc1")
    st.mark(10)
    e.waitcnt(lgkm=0)
    e.nop(2)
    e.fence()
    e.salu("s_branch", "L_c_start")

    e.w.clear(); e.cread.clear(); e.stread.clear()
    e.raw("L_aux:")
    sA = S(36)
    sT, sT2, sT3 = S(37), S(38), S(39)
    sW0, sW1, sW2, sWS, sDbg = S(24, 4), S(28, 4), S(40, 4), S(32, 4), S(44, 4)
    sStg = S(48)
    j, g = V(1), V(2)
    vSl = V(3)
    vSt = V(4)
    vTr = [V(5 + k) for k in range(4)]
    vZ = V(11)
    vLn16 = V(12)
    vX = V(13)
    t0, t1 = V(14), V(15)
    e.salu("s_sub_u32", sA, sWave, 5)
    e.valu("v_mov_b32", vZ, 0)
    e.valu("v_and_b32", j, 15, lane)
    e.valu("v_lshrrev_b32", g, 4, lane)
    e.valu("v_lshlrev_b32", vLn16, 4, lane)
    for k in range(4):
        e.valu("v_mov_b32", V(16 + k), -1)
    e.waitcnt(lgkm=0)
    srd(e, sWS, pWS, 0x1000000)
    e.salu("s_cmp_ge_u32", S(2), NQP)
    e.salu("s_cbranch_scc1", "L_aux_noinv0")
    e.salu("s_cmp_lg_u32", sA, 1)
    e.salu("s_cbranch_scc1", "L_aux_noinv0")
    e.begin_cond()
    e.salu("s_lshl_b32", sT2, S(2), 11)
    e.salu("s_add_u32", sT2, sT2, WS_QK)
    for k in range(2):
        e.buf_store("buffer_store_dwordx4", V(16, 4), vLn16, sWS, sT2, offset=1024 * k, flags="sc1")
    e.smem("s_memrealtime s[52:53]", S(52, 2))
    e.waitcnt(lgkm=0)
    e.salu("s_mul_i32", S(54), S(52), 0x9E3779B1)
    e.salu("s_mov_b32", S(55), S(53))
    for r in range(3):
        e.salu("s_lshr_b64", S(56, 2), S(54, 2), 15 * r)
        e.salu("s_lshl_b32", sT3, S(56), 1)
        e.salu("s_and_b32", sT3, sT3, 0xFFFE)
        e.valu("v_mov_b32", V(20 + r), sT3)
    e.salu("s_mul_i32", sT3, S(54), 0x85EBCA6B)
    e.salu("s_lshr_b32", sT3, sT3, 16)
    e.salu("s_and_b32", sT3, sT3, 0xFFFE)
    e.valu("v_mov_b32", V(23), sT3)
    e.salu("s_lshl_b32", sT2, S(2), 7)
    e.salu("s_add_u32", sT2, sT2, WS_QK + 6144)
    e.salu("s_mov_b64", EXEC, 1)
    e.buf_store("buffer_store_dwordx4", V(20, 4), vZ, sWS, sT2, flags="sc1")
    e.salu("s_mov_b64", EXEC, -1)
    e.end_cond()
    e.raw("L_aux_noinv0:")
    e.barrier()
    srd(e, sDbg, pDbg, 256)
    e.salu("s_cmp_ge_u32", S(2), NQP)
    e.salu("s_cbranch_scc1", "L_aux_noinv")
    e.salu("s_cmp_lg_u32", sA, 1)
    e.salu("s_cbranch_scc1", "L_aux_noinv")
    e.begin_cond()
    e.valu("v_mov_b32", t0, 1)
    e.salu("s_lshl_b32", sT2, S(2), 5)
    e.waitcnt(vm=0)
    e.ds_write("ds_write_b32", vZ, t0, S_EMPT)
    e.salu("s_mov_b64", EXEC, 1)
    e.buf_store("buffer_store_dword", t0, vZ, sDbg, sT2, flags="sc1")
    e.salu("s_mov_b64", EXEC, -1)
    st.mark(8)
    e.end_cond()
    e.label("L_aux_noinv")

    e.salu("s_cmp_lt_u32", S(2), NQP)
    e.salu("s_cselect_b32", sT3, S_ISS - S_LANDED, 0)
    e.valu("v_mov_b32", t1, sT3)

    e.salu("s_cmp_lg_u32", sA, 0)
    e.salu("s_cbranch_scc1", "L_aux_w")
    vQw = [V(232 + k) for k in range(4)]
    QR = 208
    e.valu("v_mul_u32_u24", t0, 384, j)
    e.valu("v_and_b32", V(16), 1, g)
    e.valu("v_lshl_add_u32", t0, V(16), 3, t0)
    e.valu("v_lshrrev_b32", V(16), 1, g)
    e.valu("v_and_b32", vX, 6, j)
    e.valu("v_xor_b32", V(16), V(16), vX)
    for q in range(4):
        e.valu("v_xor_b32", vX, 2 * q, V(16))
        e.valu("v_lshl_add_u32", vQw[q], vX, 4, t0)
    e.valu("v_lshlrev_b32", vX, 5, lane)
    e.salu("s_cmp_lt_u32", S(2), NPR)
    e.salu("s_cselect_b32", sT2, 1, opt.get("fstart", 3))
    lds_spin(e, t1, S_LANDED, t0, sT, sT2, sleep=4)
    e.salu("s_mov_b64", EXEC, (1 << NQP) - 1)
    e.label("L_qpoll")
    e.buf_load("buffer_load_dword", t0, vX, sDbg, 0, flags="sc1")
    e.waitcnt(vm=0)
    e.valu("v_cmp_eq_u32", VCC, 0, t0)
    e.salu("s_cbranch_vccz", "L_qpolled")
    e.salu("s_sleep", 8)
    e.salu("s_branch", "L_qpoll")
    e.raw("L_qpolled:")
    e.salu("s_mov_b64", EXEC, -1)
    st.mark(7)
    e.salu("s_cmp_lt_u32", S(2), NPR)
    e.salu("s_cselect_b32", sT2, opt.get("wqstart", 3), opt.get("qstart", 6))
    e.salu("s_cmp_lt_u32", S(2), NQP)
    e.salu("s_cselect_b32", sT2, 4, sT2)
    lds_spin(e, t1, S_LANDED, t0, sT, sT2, sleep=2)
    st.mark(5)
    e.salu("s_mov_b32", sT2, WS_QK + 6144)
    e.buf_load("buffer_load_dwordx4", V(236, 4), vZ, sWS, sT2, flags="sc1")
    e.label("L_qdata")
    for k in range(6):
        e.salu("s_mov_b32", sT2, WS_QK + 1024 * k)
        e.buf_load("buffer_load_dwordx4", V(QR + 4 * k, 4), vLn16, sWS, sT2, flags="sc1")
    e.waitcnt(vm=0)
    e.valu("v_max3_u32", t0, V(QR), V(QR + 1), V(QR + 2))
    for k in range(3, 23, 2):
        e.valu("v_max3_u32", t0, t0, V(QR + k), V(QR + k + 1))
    e.valu("v_max_u32", t0, t0, V(QR + 23))
    e.valu("v_cmp_eq_u32", VCC, -1, t0)
    e.salu("s_cbranch_vccnz", "L_qdata")
    st.mark(6)
    e.ds_write("ds_write_b128", vZ, V(236, 4), TAGS)
    for ct in range(12):
        e.ds_write("ds_write_b64", vQw[ct & 3], V(QR + 2 * ct, 2), QK + (ct >> 2) * 128)
    e.valu("v_mov_b32", t0, 1)
    e.ds_write("ds_write_b32", vZ, t0, S_QKRDY)
    st.mark(1)

    e.label("L_aux_w")
    e.salu("s_cmp_lg_u32", sA, 2)
    e.salu("s_cbranch_scc1", "L_aux_wf2")
    e.valu("v_lshlrev_b32", vX, 2, lane)
    lds_spin(e, vZ, S_LANDED, t0, sT, opt.get("wstart", 10), sleep=8)
    lds_spin(e, vZ, S_QKRDY, t0, sT, 1, sleep=8)
    e.salu("s_mov_b64", EXEC, 0xFFF)
    e.label("L_wpoll")
    e.buf_load("buffer_load_dword", t0, vX, sDbg, 0, offset=DBG_WVO, flags="sc1")
    e.waitcnt(vm=0)
    e.valu("v_cmp_eq_u32", VCC, 0, t0)
    e.salu("s_cbranch_vccz", "L_wpolled")
    e.salu("s_sleep", opt.get("wsleep", 16))
    e.salu("s_branch", "L_wpoll")
    e.raw("L_wpolled:")
    e.salu("s_mov_b64", EXEC, -1)
    e.valu("v_mov_b32", t0, 1)
    e.ds_write("ds_write_b32", vZ, t0, S_WVL)
    e.label("L_aux_wf2")
    lds_spin(e, vZ, S_WVL, t0, sT, 1, sleep=8)
    st.mark(9)
    lk.at(8, t0, t1)
    e.salu("s_mul_i32", sT, sA, 3 * 6144)
    e.salu("s_add_u32", sT, sT, WS_WVO)
    WB = opt.get("wfb", 3)
    n = 0
    for t3 in range(3):
        for kk in range(6):
            if opt.get("noaf"):
                continue
            e.salu("s_add_u32", sT2, sT, (t3 * 6 + kk) * 1024)
            e.buf_load("buffer_load_dwordx4", WVO[kk][t3], vLn16, sWS, sT2, flags=WFL)
            n += 1
            if n % WB == 0:
                e.waitcnt(vm=0)
    if opt.get("tlbp", 0):
        e.salu("s_mov_b32", sT2, WS_PG1)
        e.buf_load("buffer_load_dword", V(252), vZ, sWS, sT2)
    st.mark(2)
    lk.at(4, t0, t1)

    e.label("L_tail")
    D = [V(16 + 4 * t3, 4) for t3 in range(3)]
    Dw2 = [V(32 + 4 * t3, 4) for t3 in range(3)]
    Bf = [[V(48 + 32 * b_ + 4 * kk, 4) for kk in range(6)] for b_ in range(2)]
    l4 = [V(72, 4), V(104, 4)]
    fl_ = [V(76), V(108)]
    G2 = [V(192, 4), V(196, 4)]
    vTg = V(200)
    vF0, vF2, vS0, vS2, vS = V(2), V(3), V(4), V(5), V(6)
    lt, lr = V(7), V(8)
    e.valu("v_lshlrev_b32", vS, 4, j)
    e.valu("v_add_u32", vF0, RING0, vLn16)
    e.valu("v_add_u32", vF2, RING0 + 2 * WAVE_RING, vLn16)
    e.valu("v_add_u32", vS0, RING0 + WST, vS)
    e.valu("v_add_u32", vS2, RING0 + WST + 2 * WAVE_RING, vS)
    sP = S(49)
    e.salu("s_lshl_b32", sP, S(2), 13)
    e.salu("s_lshl_b32", sT2, sA, 11)
    e.salu("s_add_u32", sP, sP, sT2)
    e.salu("s_add_u32", sP, sP, WS_P)
    sHi = S(51)
    e.salu("s_mov_b32", sHi, 40.0)
    e.valu("v_and_b32", lr, 3, j)
    e.valu("v_lshlrev_b32", lr, 2, lr)
    e.ds_read("ds_read_b32", vTg, lr, TAGS)
    lds_spin(e, vZ, S_FR, t1, sT, 1, sleep=opt.get("fsleep", 1))
    if opt.get("fine"):
        st.cyc(5)

    def batch(w):
        fb, sb = (vF0, vS0) if w < 2 else (vF2, vS2)
        o = (w & 1) * WAVE_RING
        ops = [lambda: e.ds_read("ds_read_b32", fl_[w & 1], vZ, S_FR + 4 * w)]
        for kk in range(6):
            ops.append(lambda kk=kk: e.ds_read("ds_read_b128", Bf[w & 1][kk], fb, FRAG + o + 1024 * kk))
        ops.append(lambda: e.ds_read("ds_read_b128", l4[w & 1], sb, o))
        return ops

    def peek(w):
        e.waitcnt(lgkm=0)
        e.valu("v_readfirstlane_b32", sT, fl_[w & 1])

    def arrived(w, peeked=False):
        top, ok = newlabel("bt"), newlabel("bo")
        if peeked:
            e.salu("s_cbranch_scc1", ok)
            e.salu("s_branch", top + "x")
        e.label(top, fence=False)
        peek(w)
        e.nop(1)
        e.salu("s_cmp_eq_u32", sT, 1)
        e.salu("s_cbranch_scc1", ok)
        e.raw(f"{top}x:")
        e.salu("s_cmp_eq_u32", sT, 2)
        e.salu("s_cbranch_scc1", "L_agen")
        e.begin_cond()
        for f_ in batch(w):
            f_()
        e.end_cond()
        e.salu("s_branch", top)
        e.raw(f"{ok}:")

    def meta():
        return [lambda: e.valu("v_cvt_pk_bf16_f32", lr, 0, lt),
                lambda: e.valu("v_or_b32", G2[0][3], lr, vTg),
                lambda: e.valu("v_or_b32", G2[1][3], lr, vTg)]

    def cv(g_, k, t3, r):
        return lambda: e.valu("v_cvt_pk_bf16_f32", G2[g_][k], D[t3][r], D[t3][r + 1])

    def stg(g_):
        return lambda: e.buf_store("buffer_store_dwordx4", G2[g_], vLn16, sWS, sP, offset=1024 * g_, flags=SFL)
    fin0 = [cv(0, 0, 0, 0), cv(0, 1, 0, 2), cv(0, 2, 1, 0), stg(0), cv(1, 0, 1, 2)]
    fin1 = [cv(1, 1, 2, 0), cv(1, 2, 2, 2), stg(1)]

    for f_ in batch(0)[1:]:
        f_()
    e.salu("s_cmp_eq_u32", sT, 2)
    e.salu("s_cbranch_scc1", "L_agen")
    e.waitcnt(vm=0)
    for w in range(4):
        B, lw = Bf[w & 1], l4[w & 1]
        fill = [lambda lw=lw: e.valu("v_add_f32", lw[0], lw[0], lw[1]),
                lambda lw=lw: e.valu("v_add_f32", lw[2], lw[2], lw[3])]
        if w == 0:
            fill.append(lambda lw=lw: e.valu("v_add_f32", lt, lw[0], lw[2]))
        else:
            fill.append(lambda lw=lw: e.valu("v_add_f32", lw[0], lw[0], lw[2]))
            fill.append(lambda lw=lw: e.valu("v_add_f32", lt, lt, lw[0]))
        if w < 3:
            fill = batch(w + 1) + fill
            while len(fill) < 14:
                fill.append(lambda: None)
            fill += [lambda w=w: peek(w + 1), lambda: None, lambda: e.salu("s_cmp_eq_u32", sT, 1)]
            n = 0
            for kk in range(6):
                if w == 0 and kk < 3:
                    e.waitcnt(lgkm=6 - kk + n if kk < 2 else n)
                for t3 in range(3):
                    e.mfma(MF32, D[t3], WVO[kk][t3], B[kk], D[t3] if kk or w else 0)
                    n += 1
                    if fill:
                        fill.pop(0)()
            assert not fill
            arrived(w + 1, peeked=True)
            if opt.get("fine"):
                st.cyc((6, 7, 10)[w])
            elif w == 2:
                st.mark(10)
        else:
            fill += meta()
            for kk in range(6):
                for t3 in range(2):
                    e.mfma(MF32, D[t3], WVO[kk][t3], B[kk], D[t3])
                    if fill:
                        fill.pop(0)()
            while fill:
                fill.pop(0)()
            fill = list(fin0)
            for kk in range(6):
                e.mfma(MF32, D[2], WVO[kk][2], B[kk], D[2])
                if kk == 2:
                    e.nop(3)
                if kk >= 2:
                    for _ in range(2):
                        if fill:
                            fill.pop(0)()
            if opt.get("fine"):
                st.cyc(1)
            for f_ in fill + fin1:
                f_()
    e.label("L_aend", fence=False)
    lds_inc(e, vZ, t1, S_EMP)
    if not opt.get("pdbg"):
        st.mark(4)
    lk.at(5, V(14), V(15))
    if opt.get("fine"):
        st.cyc(11)
    st.dump(sWS, 12, [V(14), V(15)])
    e.salu("s_endpgm")

    e.raw("L_agen:")
    e.waitcnt(vm=0)
    sAlt, sW_, sOff = S(56, 2), S(58), S(59)
    Mx, ref, be, c0, c1, mw = V(9), V(10), V(13), V(14), V(204), V(205)
    vFa, vSa = V(2), V(3)
    B = Bf[0]
    lw = l4[0]
    for w in range(4):
        lds_spin(e, vZ, S_FR + 4 * w, t1, sT, 1)
        e.valu("v_add_u32", vSa, RING0 + WST + w * WAVE_RING, vS)
        e.ds_read("ds_read_b32", mw, vSa, 512)
        e.waitcnt(lgkm=0)
        if w == 0:
            e.valu("v_mov_b32", Mx, mw)
        else:
            e.valu("v_max_f32", Mx, Mx, mw)
    e.valu("v_cmp_nlt_f32_e64", sAlt, "|%s|" % Mx, sHi)
    e.valu("v_cndmask_b32", ref, 0, Mx, sAlt)
    e.valu("v_mov_b32", lt, 0)
    for t3 in range(3):
        for r in range(4):
            e.valu("v_mov_b32", D[t3][r], 0)
    e.salu("s_mov_b32", sW_, 0)
    e.label("L_agen_w")
    e.salu("s_mul_i32", sOff, sW_, WAVE_RING)
    e.salu("s_add_u32", sOff, sOff, RING0)
    e.valu("v_add_u32", vFa, sOff, vLn16)
    e.valu("v_add_u32", vSa, sOff, vS)
    for kk in range(6):
        e.ds_read("ds_read_b128", B[kk], vFa, FRAG + 1024 * kk)
    e.ds_read("ds_read_b32", mw, vSa, WST + 512)
    e.ds_read("ds_read_b128", lw, vSa, WST)
    e.waitcnt(lgkm=0)
    for kk in range(6):
        for t3 in range(3):
            e.mfma(MF32, Dw2[t3], WVO[kk][t3], B[kk], Dw2[t3] if kk else 0)
    e.valu("v_sub_f32", c0, mw, ref)
    e.valu("v_exp_f32", be, c0)
    e.valu("v_add_f32", lw[0], lw[0], lw[1])
    e.valu("v_add_f32", lw[2], lw[2], lw[3])
    e.valu("v_add_f32", lw[0], lw[0], lw[2])
    e.valu("v_fmac_f32", lt, be, lw[0], rmw=True)
    for t3 in range(3):
        for r in range(4):
            e.valu("v_fmac_f32", D[t3][r], be, Dw2[t3][r], rmw=True)
    e.salu("s_add_u32", sW_, sW_, 1)
    e.salu("s_cmp_lt_u32", sW_, 4)
    e.fence()
    e.salu("s_cbranch_scc1", "L_agen_w")
    e.valu("v_cndmask_b32", c0, 0, 1, sAlt)
    e.valu("v_or_b32", vTg, vTg, c0)
    e.ds_read("ds_read_b64", lw[2:4], vZ, TAGS)
    e.valu("v_mov_b32", lw[0], ref)
    e.valu("v_lshrrev_b32", c0, 1, vS)
    e.salu("s_lshl_b32", sT2, S(2), 7)
    e.salu("s_add_u32", sT2, sT2, WS_E)
    e.waitcnt(lgkm=0)
    e.valu("v_lshl_or_b32", lw[1], lw[3], 16, lw[2])
    e.salu("s_mov_b64", EXEC, 0xFFFF)
    e.buf_store("buffer_store_dwordx2", lw[0:2], c0, sWS, sT2, flags="sc1")
    e.salu("s_mov_b64", EXEC, -1)
    for f_ in meta() + fin0 + fin1:
        f_()
    e.fence()
    e.salu("s_branch", "L_aend")
    e.raw("L_exit:")
    e.salu("s_endpgm")
    return e


def build(stamps=False, opt=None):
    m = gen_main(stamps, opt)
    return header(0) + m.text() + "L_code_end:\n" + kd(MAIN, 256, 96)


if __name__ == "__main__":
    import argparse
    ap = argparse.ArgumentParser()
    ap.add_argument("-o", default=os.path.join(os.path.dirname(os.path.abspath(__file__)), "..", NAME + ".s"))
    ap.add_argument("--stamps", action="store_true")
    ap.add_argument("--opt", default="")
    a = ap.parse_args()
    opt = {}
    for kv in a.opt.split(","):
        if kv:
            k, _, v = kv.partition("=")
            opt[k] = int(v) if v else 1
    open(a.o, "w").write(build(a.stamps, opt))
```

```python
import sys
import os
sys.path.insert(0, os.path.dirname(os.path.abspath(__file__)))
from emit import Em, R, V, S, Neg, VCC, EXEC, M0

NAME = "standalone__detection_seg_dino__vision"
MAIN = NAME + "_kernel"

TILE = 6144
NSLOT = 6
WAVE_RING = NSLOT * TILE
QK = 0
SYNC = 6912
TAGS = SYNC + 128
STAGE = 7168
RING0 = 13312
DH = RING0 + 4 * WAVE_RING
LDS_BYTES = DH + 3072
HB = 6144
STEPST = 6656
QL = QK
FRAG = 0
WST = TILE
BULK = 2 * TILE
FIN = RING0 + 4 * TILE
FINL = RING0 + 5 * TILE


def pitem(k, u):
    return (1024 * u, STAGE + 1024 * u, 4096 + 1024 * (u & 1) + STAGE * (u >> 1))[k]
CEX = RING0 + 4 * TILE


def wslot(t):
    return 6 * (t // 4) + 2 + t % 4


(S_LANDED, S_CONS, S_QKRDY, S_AUX, S_ISS, S_WL, S_EMPT, S_EMP, S_WVL, S_DH, S_FIN, S_FR, S_PK, S_BK) = [
    SYNC + 4 * k for k in (0, 4, 8, 9, 10, 11, 12, 13, 16, 18, 19, 20, 24, 28)]
BAD = 0x40
ONES = SYNC + 144
THR = 32.0

WS_P = 0x80000
PSZ = 8192
NCB = 128
WS_E = 0x30000
WS_QK = 0
WS_WVO = 0x10000
WS_STAMP = 0x800000
DBG_WVO = 128

NWG = 256
NITER = 4
NQP = 3
NPR = 6
WOB = RING0 + 20 * TILE

QSCALE = (192 ** -0.5) * 1.4426950408889634
MF32, MF16, MFF = "v_mfma_f32_16x16x32_bf16", "v_mfma_f32_16x16x16_bf16", "v_mfma_f32_16x16x4_f32"
NEG1 = "neg_lo:[1,0,0] neg_hi:[1,0,0]"


def header(extra_lds=0):
    launch = f"; @launch grid=({NWG},1,1) block=(512,1,1) lds={LDS_BYTES + extra_lds}"
    return f"""; Kernarg layout for this problem (80 bytes, ptrs only, base s[0:1]):
{launch}
.amdgcn_target "amdgcn-amd-amdhsa--gfx950"
.text
"""


def kd(name, vgpr, sgpr):
    return f""".section .rodata,"a"
.p2align 6
.amdhsa_kernel {name}
  .amdhsa_next_free_vgpr {vgpr}
  .amdhsa_next_free_sgpr {sgpr}
  .amdhsa_accum_offset {(vgpr + 3) // 4 * 4}
  .amdhsa_group_segment_fixed_size 0
  .amdhsa_kernarg_size 80
  .amdhsa_user_sgpr_count 2
  .amdhsa_user_sgpr_kernarg_segment_ptr 1
  .amdhsa_system_sgpr_workgroup_id_x 1
  .amdhsa_float_denorm_mode_32 3
.end_amdhsa_kernel
"""


def srd(e, q, ptr, nbytes):
    e.salu("s_mov_b32", q[0], ptr[0])
    e.salu("s_mov_b32", q[1], ptr[1])
    e.salu("s_mov_b32", q[2], nbytes)
    e.salu("s_mov_b32", q[3], 0x20000)


def xg_reduce(e, op, x, t0, t1):
    for sw in ("v_permlane32_swap_b32", "v_permlane16_swap_b32"):
        e.valu("v_mov_b32", t0, x)
        e.valu("v_mov_b32", t1, x)
        e.valu(sw, t0, t1)
        e.valu(op, x, t0, t1)


def bf16_round(e, x):
    e.valu("v_cvt_pk_bf16_f32", x, x, x)
    e.valu("v_and_b32", x, 0xFFFF0000, x)


def tile_lane_offsets(e, lane, vDc, vDf, t0, t1):
    for i in range(3):
        e.valu("v_add_u32", t0, 64 * i, lane)
        e.valu("v_mul_u32_u24", t0, 0xAAB, t0)
        e.valu("v_lshrrev_b32", t0, 16, t0)
        e.valu("v_and_b32", t1, 6, t0)
        e.valu("v_xor_b32", t1, t1, lane)
        e.valu("v_lshlrev_b32", vDc[i], 4, t1)
        if vDf is not None:
            e.valu("v_mul_u32_u24", t0, 384, t0)
            e.valu("v_add_u32", vDf[i], t0, vDc[i])


def afrag_addrs(e, j, g, base, out, t0, t1):
    e.valu("v_and_b32", t0, 6, j)
    e.valu("v_xor_b32", t0, t0, g)
    e.valu("v_mul_u32_u24", t1, 384, j)
    if base is not None:
        e.valu("v_add_u32", t1, base, t1)
    e.valu("v_lshl_add_u32", out[0], t0, 4, t1)
    e.valu("v_xor_b32", t0, 4, t0)
    e.valu("v_lshl_add_u32", out[1], t0, 4, t1)


class Stamps:
    def __init__(self, e, on):
        self.e, self.on = e, on

    def mark(self, k):
        if self.on:
            self.e.smem(f"s_memrealtime s[{64 + 2 * k}:{65 + 2 * k}]", S(64 + 2 * k, 2))

    def cyc(self, k):
        if self.on:
            self.e.smem(f"s_memtime s[{64 + 2 * k}:{65 + 2 * k}]", S(64 + 2 * k, 2))

    def dump(self, sWS, nst, vt):
        if not self.on:
            return
        e = self.e
        e.waitcnt(lgkm=0)
        e.salu("s_lshl_b32", S(62), S(2), 3)
        e.salu("s_add_u32", S(62), S(62), S(3))
        e.salu("s_lshl_b32", S(62), S(62), 6)
        e.salu("s_add_u32", S(62), S(62), WS_STAMP)
        for k in range(nst):
            e.raw(f"    v_writelane_b32 {vt[0]}, s{64 + 2 * k}, {k}")
        e.valu("v_lshlrev_b32", vt[1], 2, V(0))
        e.salu("s_mov_b64", EXEC, 0xFFFF)
        e.buf_store("buffer_store_dword", vt[0], vt[1], sWS, S(62))
        e.salu("s_mov_b64", EXEC, -1)


class Leak:
    def __init__(self, e, which):
        self.e, self.which = e, which

    def start(self):
        if self.which:
            self.e.smem("s_memrealtime s[92:93]" if self.which != 10 else "s_memtime s[92:93]", S(92, 2))

    def at(self, k, vt0, vt1):
        if self.which == k:
            e = self.e
            e.smem("s_memrealtime s[90:91]", S(90, 2))
            e.waitcnt(lgkm=0)
            e.valu("v_mov_b32", vt0, S(90))
            e.valu("v_mov_b32", vt1, 0)
            e.ds_write("ds_write_b32", vt1, vt0, STEPST)
            e.waitcnt(lgkm=0)

    def spend(self, vt0, vt1):
        if not self.which:
            return
        e = self.e
        e.salu("s_cmp_lg_u32", S(2), 201)
        e.salu("s_cbranch_scc1", "L_leak_end")
        e.valu("v_mov_b32", vt1, 0)
        e.ds_read("ds_read_b32", vt0, vt1, STEPST)
        e.smem("s_memrealtime s[88:89]", S(88, 2))
        e.waitcnt(lgkm=0)
        e.valu("v_readfirstlane_b32", S(90), vt0)
        e.nop(3)
        if self.which == 10:
            e.smem("s_memtime s[90:91]", S(90, 2))
            e.waitcnt(lgkm=0)
        e.salu("s_sub_u32", S(90), S(90), S(92))
        e.salu("s_lshl_b32" if self.which != 10 else "s_lshr_b32", S(90), S(90), 3 if self.which != 10 else 2)
        e.salu("s_min_u32", S(90), S(90), 40000)
        e.label("L_leak")
        e.smem("s_memrealtime s[86:87]", S(86, 2))
        e.waitcnt(lgkm=0)
        e.salu("s_sub_u32", S(91), S(86), S(88))
        e.salu("s_cmp_lt_u32", S(91), S(90))
        e.salu("s_cbranch_scc1", "L_leak")
        e.raw("L_leak_end:")


class LQ:
    def __init__(self, e):
        self.e, self.q = e, []

    def add(self, tag=None):
        self.q.append(tag)

    def wait(self, tag):
        idx = max(i for i, t in enumerate(self.q) if t == tag)
        n = len(self.q) - 1 - idx
        self.e.waitcnt(lgkm=min(n, 15))
        self.q = self.q[idx + 1:]

    def drain(self):
        self.e.waitcnt(lgkm=0)
        self.q = []


LBL = [0]


def newlabel(p):
    LBL[0] += 1
    return f"L_{p}{LBL[0]}"


def lds_spin(e, vaddr, off, vt, sdst, need, sleep=1):
    top, done = newlabel("spin"), newlabel("spun")
    e.label(top)
    e.ds_read("ds_read_b32", vt, vaddr, off)
    e.waitcnt(lgkm=0)
    e.valu("v_readfirstlane_b32", sdst, vt)
    e.nop(1)
    e.salu("s_cmp_ge_u32", sdst, need)
    if sleep:
        e.salu("s_cbranch_scc1", done)
        e.salu("s_sleep", sleep)
        e.salu("s_branch", top)
        e.raw(f"{done}:")
    else:
        e.salu("s_cbranch_scc0", top)


def lds_inc(e, vz, vt, off):
    e.valu("v_mov_b32", vt, 1)
    e.salu("s_mov_b64", EXEC, 1)
    e.mem(f"ds_add_u32 {vz}, {vt} offset:{off}", reads=[vz, vt])
    e.salu("s_mov_b64", EXEC, -1)


def gen_main(stamps=False, opt=None):
    opt = opt or {}
    e = Em()
    st = Stamps(e, stamps)
    lk = Leak(e, opt.get("leak", 0))
    e.raw(f".globl {MAIN}")
    e.raw(".p2align 8")
    e.raw(f".type {MAIN},@function")
    e.raw(f"{MAIN}:")
    sWave = S(3)
    lane = V(0)
    e.salu("s_cmp_ge_u32", S(2), NWG)
    e.salu("s_cbranch_scc1", "L_exit")
    st.mark(0)
    lk.start()
    e.smem("s_load_dwordx16 s[4:19], s[0:1], 0", S(4, 16))
    e.smem("s_load_dwordx4 s[20:23], s[0:1], 64", S(20, 4))
    pQ, pF0, pF1, pWq, pWk, pWv, pWo = [S(4 + 2 * k, 2) for k in range(7)]
    pDbg, pWS = S(20, 2), S(22, 2)
    e.valu("v_lshrrev_b32", V(1), 6, V(0))
    e.valu("v_and_b32", V(0), 63, V(0))
    e.valu("v_readfirstlane_b32", sWave, V(1))
    e.nop(3)
    e.salu("s_cmp_lt_u32", sWave, 4)
    e.salu("s_cbranch_scc1", "L_compute")
    e.salu("s_cmp_gt_u32", sWave, 4)
    e.salu("s_cbranch_scc1", "L_aux0")

    vDc = [V(1), V(2), V(3)]
    vDf = [V(4), V(5), V(6)]
    vD = [V(7), V(8), V(9)]
    vZ, vt, vt2 = V(10), V(11), V(12)
    vLane4 = V(13)
    sSrc = S(24, 4)
    sWS = S(32, 4)
    sStep, sK, sH, sO1, sO0, sBase, sWst, sHalf, sLk = [S(36 + k) for k in range(9)]
    sT, sT2, sVal, sNeed = S(45), S(46), S(47), S(48)
    sCons = [S(50 + k) for k in range(4)]
    sRet = S(54, 2)
    sW = S(56)
    sSlot = S(57)
    e.salu("s_setprio", 3)
    for i in range(3):
        e.valu("v_add_u32", vDf[i], 64 * i, lane)
        e.valu("v_mul_u32_u24", vDf[i], 0xAAB, vDf[i])
        e.valu("v_lshrrev_b32", vDf[i], 16, vDf[i])
        e.valu("v_and_b32", vt, 6, vDf[i])
        e.valu("v_xor_b32", vt, vt, lane)
        e.valu("v_lshlrev_b32", vDc[i], 4, vt)
    e.salu("s_and_b32", sH, S(2), 7)
    e.salu("s_lshl_b32", sH, sH, 5)
    e.salu("s_lshr_b32", sT, S(2), 3)
    e.salu("s_or_b32", sH, sH, sT)
    e.salu("s_lshl_b32", sH, sH, 2)
    e.salu("s_mov_b32", sSrc[3], 0x20000)
    e.salu("s_mov_b32", sSrc[2], 25165824)
    e.salu("s_mul_i32", sO1, sH, 6144)
    e.salu("s_mov_b32", sLk, RING0)
    e.salu("s_cmp_lt_u32", S(2), NPR)
    e.salu("s_cbranch_scc1", "L_ld_prod")
    e.waitcnt(lgkm=0)
    st.mark(1)
    e.salu("s_mov_b32", sSrc[0], pF1[0])
    e.salu("s_mov_b32", sSrc[1], pF1[1])
    e.raw("L_ld_first:")
    for h in range(2):
        e.salu("s_mov_b32" if h == 0 else "s_add_u32", M0, *([sLk] if h == 0 else [sLk, 3072]))
        e.salu("s_add_u32", sLk if h else sT2, sLk if h else sO1, WAVE_RING if h else 3072)
        for i in range(3):
            e.buf_load_lds(vDc[i], sSrc, sT2 if h else sO1, offset=1024 * i, flags="nt")
    e.salu("s_add_u32", sO1, sO1, 6144)
    e.salu("s_cmp_lt_u32", sLk, RING0 + 4 * WAVE_RING)
    e.salu("s_cbranch_scc1", "L_ld_first")
    st.mark(5)
    e.salu("s_branch", "L_ld_norm")

    e.raw("L_aux0:")
    aC, aW1, aW2 = S(24, 4), S(28, 4), S(40, 4)
    e.salu("s_getpc_b64", aC[0:2])
    e.raw("L_aux_pc:")
    e.raw(f"    s_sub_u32 {aC[0]}, {aC[0]}, L_aux_pc-{MAIN}")
    e.raw(f"    s_subb_u32 {aC[1]}, {aC[1]}, 0")
    e.raw(f"    s_mov_b32 {aC[2]}, L_code_end-{MAIN}")
    e.salu("s_mov_b32", aC[3], 0x20000)
    e.salu("s_lshr_b32", S(39), S(2), 3)
    e.salu("s_mul_i32", S(38), S(39), 3)
    e.salu("s_add_u32", S(38), S(38), sWave)
    e.salu("s_mul_i32", S(38), S(38), 384)
    e.salu("s_sub_u32", S(38), S(38), 5 * 384)
    e.valu("v_lshlrev_b32", V(14), 6, lane)
    e.salu("s_mov_b64", EXEC, 0x3F)
    e.buf_load("buffer_load_dword", V(253), V(14), aC, S(38))
    e.salu("s_mov_b64", EXEC, -1)
    e.salu("s_and_b32", S(38), S(2), 7)
    e.salu("s_mul_i32", S(37), sWave, 3)
    e.salu("s_add_u32", S(38), S(38), 18)
    e.salu("s_sub_u32", S(38), S(38), S(37))
    e.salu("s_cmp_ge_u32", S(38), 3)
    e.salu("s_cbranch_scc1", "L_aux")
    e.salu("s_mul_i32", S(37), S(39), 2304)
    e.valu("v_mul_u32_u24", V(13), 36, lane)
    e.salu("s_mov_b32", aW1[2], 73728)
    e.salu("s_mov_b32", aW2[2], 73728)
    e.salu("s_mov_b32", aW1[3], aC[3])
    e.salu("s_mov_b32", aW2[3], aC[3])
    e.salu("s_cmp_eq_u32", sWave, 6)
    e.waitcnt(lgkm=0)
    e.salu("s_cselect_b64", aW1[0:2], pWq, pWo)
    e.salu("s_cselect_b64", aW2[0:2], pWk, pWv)
    e.buf_load("buffer_load_dword", V(254), V(13), aW1, S(37))
    e.buf_load("buffer_load_dword", V(255), V(13), aW2, S(37))
    e.salu("s_branch", "L_aux")

    def publish(off, val):
        e.valu("v_mov_b32", vt, val)
        e.salu("s_mov_b64", EXEC, 1)
        e.mem(f"ds_max_u32 {vZ}, {vt} offset:{off}", reads=[vZ, vt])
        e.salu("s_mov_b64", EXEC, -1)

    def init(first):
        for i in range(3):
            e.valu("v_mul_u32_u24", vDf[i], 384, vDf[i])
            e.valu("v_add_u32", vDf[i], vDf[i], vDc[i])
        e.valu("v_mov_b32", vZ, 0)
        e.valu("v_lshlrev_b32", vLane4, 2, lane)
        e.salu("s_mov_b64", EXEC, 0xFFFFFFFF)
        e.ds_write("ds_write_b32", vLane4, vZ, SYNC)
        e.valu("v_mov_b32", vt, 0x3F803F80)
        e.salu("s_mov_b64", EXEC, 3)
        e.ds_write("ds_write_b32", vLane4, vt, ONES)
        e.salu("s_mov_b64", EXEC, -1)
        for k in range(4):
            e.salu("s_mov_b32", sCons[k], 0)
        if stamps:
            e.salu("s_mov_b32", S(76), 0)
            e.salu("s_mov_b32", S(78), 0)
        for r_ in (sStep, sK, sSlot):
            e.salu("s_mov_b32", r_, first)
        if first:
            e.salu("s_lshr_b32", sT, sH, 4)
            e.salu("s_mul_i32", sO0, sT, 393216)
            e.salu("s_and_b32", sT, sH, 15)
            e.salu("s_mul_i32", sT, sT, 12288)
            e.salu("s_add_u32", sO0, sO0, sT)
            e.salu("s_add_u32", sH, sH, 1024)
        e.waitcnt(lgkm=0)
        e.barrier()

    sCnt = sNeed
    e.raw("L_ld_prod:")
    e.salu("s_mov_b32", sO1, 0)
    e.salu("s_cmp_lt_u32", S(2), NQP)
    e.salu("s_cbranch_scc0", "L_ld_wo0")
    e.salu("s_mov_b32", sSrc[2], 6144)
    e.salu("s_mov_b32", sLk, STAGE)
    e.salu("s_mov_b32", sCnt, 1)
    e.waitcnt(lgkm=0)
    st.mark(4)
    e.salu("s_mov_b64", sSrc[0:2], pQ)
    e.salu("s_call_b64", sRet, "L_ld_tiles")
    e.salu("s_branch", "L_ld_wq")
    e.raw("L_ld_tiles:")
    for h in range(2):
        e.salu("s_mov_b32" if h == 0 else "s_add_u32", M0, *([sLk] if h == 0 else [sLk, 3072]))
        e.salu("s_add_u32", sLk if h else sT2, sLk if h else sO1, TILE if h else 3072)
        for i in range(3):
            e.buf_load_lds(vDc[i], sSrc, sT2 if h else sO1, offset=1024 * i)
    e.salu("s_add_u32", sO1, sO1, TILE)
    e.salu("s_sub_u32", sCnt, sCnt, 1)
    e.salu("s_and_b32", sT, sCnt, 3)
    e.salu("s_cselect_b32", sT, 0, 2 * TILE)
    e.salu("s_add_u32", sLk, sLk, sT)
    e.salu("s_cmp_lg_u32", sCnt, 0)
    e.salu("s_cbranch_scc1", "L_ld_tiles")
    e.salu("s_setpc_b64", sRet)
    e.raw("L_ld_wq:")
    if opt.get("pdbg"):
        st.mark(6)
    e.salu("s_mov_b64", sSrc[0:2], pWq)
    e.salu("s_mov_b32", sSrc[2], 73728)
    e.raw("L_ld_w12:")
    e.salu("s_mov_b32", sO1, 0)
    e.salu("s_mov_b32", sLk, RING0 + wslot(0) * TILE)
    e.salu("s_mov_b32", sCnt, 4)
    e.salu("s_call_b64", sRet, "L_ld_tiles")
    if opt.get("pdbg"):
        st.mark(7)
    init(0)
    if opt.get("pdbg"):
        st.mark(9)
    e.waitcnt(vm=24)
    publish(S_WL, 1)
    st.mark(5)
    e.salu("s_mov_b32", sCnt, 8)
    e.salu("s_call_b64", sRet, "L_ld_tiles")
    if opt.get("pdbg"):
        st.mark(11)
    e.salu("s_cmp_ge_u32", S(2), NQP)
    e.salu("s_cbranch_scc1", "L_ld_w3")
    e.salu("s_mov_b64", sSrc[0:2], pWk)
    e.salu("s_mul_i32", sO1, S(2), 4 * TILE)
    e.salu("s_mov_b32", sCnt, 4)
    e.salu("s_call_b64", sRet, "L_ld_tiles")
    e.raw("L_ld_w3:")
    e.waitcnt(vm=24)
    publish(S_WL, 2)
    st.mark(1)
    e.salu("s_branch", "L_ld_stepp")
    e.raw("L_ld_wo0:")
    e.salu("s_mov_b32", sSrc[2], 73728)
    e.valu("v_lshrrev_b32", vt, 3, lane)
    e.valu("v_mul_u32_u24", vt, 384, vt)
    e.valu("v_and_b32", vt2, 7, lane)
    e.valu("v_lshl_add_u32", vt, vt2, 4, vt)
    e.salu("s_sub_u32", sT2, S(2), NQP)
    e.salu("s_lshl_b32", sT2, sT2, 7)
    e.salu("s_mov_b32", sT, WOB)
    e.waitcnt(lgkm=0)
    st.mark(4)
    e.salu("s_mov_b64", sSrc[0:2], pWo)
    e.label("L_ld_wo")
    e.salu("s_mov_b32", M0, sT)
    e.salu("s_add_u32", sT, sT, 1024)
    e.buf_load_lds(vt, sSrc, sT2)
    e.salu("s_add_u32", sT2, sT2, 3072)
    e.salu("s_cmp_lt_u32", sT, WOB + 24576)
    e.salu("s_cbranch_scc1", "L_ld_wo")
    e.salu("s_mov_b64", sSrc[0:2], pWv)
    e.salu("s_branch", "L_ld_w12")
    e.raw("L_ld_norm:")
    init(1)
    lk.at(1, vt, vt2)

    PD = opt.get("pd", 6)
    FLG = {0: "", 1: "sc1", 2: "sc0 sc1", 3: "sc1 nt", 4: "sc0 sc1 nt", 5: "nt"}
    LFL, PFL, SFL = FLG[opt.get("lfl", 1)], FLG[opt.get("pfl", 1)], FLG[opt.get("sfl", 1)]
    WFL = {0: "", 1: "sc1", 2: "sc0", 3: "nt"}[opt.get("wfl", 1)]
    WVO = [[V(112 + 12 * kk + 4 * t3, 4) for t3 in range(3)] for kk in range(6)]

    def stream(D, tag):
        e.label(f"L_ld_step{tag}")
        e.salu("s_cmp_lg_u32", sK, 0)
        e.salu("s_cbranch_scc1", f"L_ld_fine{tag}")
        e.salu("s_mul_i32", sO1, sH, 6144)
        e.salu("s_lshr_b32", sT, sH, 4)
        e.salu("s_mul_i32", sO0, sT, 393216)
        e.salu("s_and_b32", sT, sH, 15)
        e.salu("s_mul_i32", sT, sT, 12288)
        e.salu("s_add_u32", sO0, sO0, sT)
        e.salu("s_add_u32", sH, sH, 1024)
        e.salu("s_mov_b32", sSrc[0], pF1[0])
        e.salu("s_mov_b32", sSrc[1], pF1[1])
        e.salu("s_mov_b32", sSrc[2], 25165824)
        e.salu("s_mov_b32", sBase, sO1)
        e.salu("s_mov_b32", sWst, 6144)
        e.salu("s_mov_b32", sHalf, 3072)
        for i in range(3):
            e.valu("v_mov_b32", vD[i], vDc[i])
        e.salu("s_branch", f"L_ld_issue{tag}")
        e.raw(f"L_ld_fine{tag}:")
        e.salu("s_mov_b32", sSrc[0], pF0[0])
        e.salu("s_mov_b32", sSrc[1], pF0[1])
        e.salu("s_mov_b32", sSrc[2], 100663296)
        e.salu("s_sub_u32", sT, sK, 1)
        e.salu("s_lshr_b32", sT2, sT, 1)
        e.salu("s_mul_i32", sT2, sT2, 196608)
        e.salu("s_and_b32", sT, sT, 1)
        e.salu("s_mul_i32", sT, sT, 384)
        e.salu("s_add_u32", sBase, sO0, sT2)
        e.salu("s_add_u32", sBase, sBase, sT)
        e.salu("s_mov_b32", sWst, 12288)
        e.salu("s_mov_b32", sHalf, 6144)
        for i in range(3):
            e.valu("v_mov_b32", vD[i], vDf[i])
        e.raw(f"L_ld_issue{tag}:")
        e.salu("s_mul_i32", sLk, sSlot, TILE)
        e.salu("s_add_u32", sLk, sLk, RING0)
        e.salu("s_sub_i32", sNeed, sStep, NSLOT - 1)
        for w in range(4):
            ok = newlabel("free")
            e.salu("s_cmp_ge_i32", sCons[w], sNeed)
            e.salu("s_cbranch_scc1", ok)
            e.begin_cond()
            e.salu("s_mov_b32", sW, w)
            e.salu("s_call_b64", sRet, "L_ld_wait")
            e.salu("s_mov_b32", sCons[w], sT)
            e.end_cond()
            e.raw(f"{ok}:")
            for h in range(2):
                e.salu("s_add_u32", M0, sLk, w * WAVE_RING + 3072 * h)
                if h == 0:
                    e.salu("s_mov_b32", sT2, sBase)
                else:
                    e.salu("s_add_u32", sT2, sBase, sHalf)
                for i in range(3):
                    e.buf_load_lds(vD[i], sSrc, sT2, offset=1024 * i, flags="nt")
            e.salu("s_add_u32", sBase, sBase, sWst)
            e.salu("s_add_i32", sVal, sStep, ((w - D) >> 2) + 1)
            e.salu("s_max_i32", sVal, sVal, 0)
            e.waitcnt(vm=6 * D)
            publish(S_LANDED + 4 * ((w - D) & 3), sVal)
            if tag == "p" and w == opt.get("w3at", 1):
                lb_ = newlabel("w3")
                e.salu("s_cmp_lg_u32", sStep, 0)
                e.salu("s_cbranch_scc1", lb_)
                e.waitcnt(vm=6 * (w + 1))
                publish(S_WL, 3)
                e.raw(f"{lb_}:")
        e.salu("s_add_u32", sK, sK, 1)
        e.salu("s_cmp_eq_u32", sK, 5)
        e.salu("s_cselect_b32", sK, 0, sK)
        e.salu("s_add_u32", sSlot, sSlot, 1)
        e.salu("s_cmp_eq_u32", sSlot, NSLOT)
        e.salu("s_cselect_b32", sSlot, 0, sSlot)
        if tag == "p":
            e.salu("s_cmp_lg_u32", sStep, 1)
            e.salu("s_cbranch_scc1", "L_ld_noiss")
            e.begin_cond()
            lds_spin(e, vZ, S_ISS, vt, sT, 4)
            e.end_cond()
            e.raw("L_ld_noiss:")
        if stamps and opt.get("stepst", 0):
            e.smem("s_memrealtime s[90:91]", S(90, 2))
            e.salu("s_lshl_b32", sT, sStep, 2)
            e.salu("s_add_u32", sT, sT, STEPST)
            e.valu("v_mov_b32", vt2, sT)
            e.waitcnt(lgkm=0)
            e.valu("v_mov_b32", vt, S(90))
            e.ds_write("ds_write_b32", vt2, vt, 0)
        e.salu("s_add_u32", sStep, sStep, 1)
        e.salu("s_cmp_lt_u32", sStep, 5 * NITER)
        e.fence()
        e.salu("s_cbranch_scc1", f"L_ld_step{tag}")
        st.mark(2)
        srd(e, sWS, pWS, 0x1000000)
        e.valu("v_lshlrev_b32", vt2, 4, lane)
        lds_spin(e, vZ, S_WVL, vt, sT, 1)
        NL = 0 if opt.get("nolf") else 18
        for t3 in range(3):
            for kk in range(6):
                if NL:
                    e.salu("s_mov_b32", sT2, WS_WVO + ((9 + t3) * 6 + kk) * 1024)
                    e.buf_load("buffer_load_dwordx4", WVO[kk][t3], vt2, sWS, sT2, flags=WFL)
        e.valu("v_mov_b32", vt, 5 * NITER)
        e.valu("v_mov_b32", V(16), 5 * NITER - 1)
        e.salu("s_mov_b64", EXEC, 1)
        for i in range(80 - D, 80):
            e.waitcnt(vm=6 * (79 - i) + NL)
            e.ds_write("ds_write_b32", vZ, vt if i >= 76 else V(16), S_LANDED + 4 * (i & 3))
        e.salu("s_mov_b64", EXEC, -1)
        st.mark(3)
        lk.at(3, V(14), V(15))
        if stamps:
            e.salu("s_getreg_b32", S(80), "hwreg(HW_REG_XCC_ID)")
            if opt.get("stepst", 0):
                e.valu("v_add_u32", V(14), STEPST, vLane4)
                e.ds_read("ds_read_b32", vt, V(14), 0)
                e.salu("s_lshl_b32", sT, S(2), 8)
                e.salu("s_add_u32", sT, sT, WS_STAMP + 0x40000)
                e.waitcnt(lgkm=0)
                e.buf_store("buffer_store_dword", vt, vLane4, sWS, sT)
        e.salu("s_setprio", 0)
        e.salu("s_mov_b32", S(36), 3)
        e.valu("v_mov_b32", V(11), 0)
        e.valu("v_and_b32", V(1), 15, lane)
        lds_spin(e, V(11), S_DH, V(15), sT, 3)
        e.valu("v_add_u32", V(14), DH, vt2)
        for t3 in range(3):
            e.ds_read("ds_read_b128", V(16 + 4 * t3, 4), V(14), 1024 * t3)
        e.fence()
        e.salu("s_branch", "L_tail")

    stream(opt.get("depth", 4), "")

    stream(PD, "p")

    e.raw("L_ld_wait:")
    e.salu("s_lshl_b32", sT, sW, 2)
    e.valu("v_mov_b32", vt2, sT)
    e.ds_read("ds_read_b32", vt, vt2, S_CONS)
    e.waitcnt(lgkm=0)
    e.valu("v_readfirstlane_b32", sT, vt)
    e.nop(1)
    e.salu("s_cmp_ge_i32", sT, sNeed)
    e.salu("s_cbranch_scc1", "L_ld_wait_ret")
    if stamps:
        e.salu("s_add_u32", S(76), S(76), 1)
        e.salu("s_mov_b32", S(78), sStep)
    lds_spin(e, vt2, S_CONS, vt, sT, sNeed)
    e.raw("L_ld_wait_ret:")
    e.fence()
    e.salu("s_setpc_b64", sRet)

    e.w.clear(); e.cread.clear(); e.stread.clear()
    e.raw("L_compute:")
    vSy = V(1)
    vPc = V(2)
    vPoll = V(3)
    Gx = V(4, 4)
    vA = [V(8), V(9)]
    vT = [V(10 + k) for k in range(4)]
    vL2 = V(14, 2)
    vCs2 = V(16, 2)
    vNm2 = V(18, 2)
    vOne = V(20)
    tC = V(21)
    tA, tB = V(22), V(23)
    vOnes = V(24, 4)
    Qk = [V(28 + 4 * k, 4) for k in range(6)]
    acc = [V(52 + 4 * k, 4) for k in range(12)]
    A1 = [V(100 + 4 * k, 4) for k in range(6)]
    A0 = [V(124 + 4 * k, 4) for k in range(6)]
    T0 = [V(148 + 6 * k, 4) for k in range(12)]
    T1 = [V(152 + 6 * k, 2) for k in range(12)]
    TH = [V(150 + 6 * k, 4) for k in range(12)]
    Sc, Uc = V(220, 4), V(224, 4)
    Sx, Ux, SSx = V(228, 4), V(232, 4), V(236, 4)
    pc = V(240, 4)
    Pf = V(244, 4)
    pp = V(248, 4)
    mu2 = V(252, 2)
    vM = V(254)
    ss1 = V(255)
    X = Gx
    sWS = S(32, 4)
    sLds = S(36)
    sT, sT2 = S(40), S(42)
    sIt = S(41)
    sInv2, sEps2 = S(44, 2), S(46, 2)
    sInv, sEps = sInv2[0], sEps2[0]
    sRet = S(48, 2)
    sThr = S(50)
    sPc, sLand = S(51), S(52)
    sSl, sDl, sTile = S(54), S(55), S(56)
    sM1, sM2, sMd = S(58, 2), S(60, 2), S(38, 2)
    tmp = [V(228 + k) for k in range(12)]
    lq = LQ(e)
    EARLY = opt.get("early", 2)
    GRAM = opt.get("gram", 2)
    sEa = S(57)
    sBadS, sK1, sTv, sRet2 = S(53), S(37), S(43), S(24, 2)

    e.salu("s_mul_i32", sLds, sWave, WAVE_RING)
    e.salu("s_add_u32", sLds, sLds, RING0)
    if opt.get("cprio", 1):
        e.salu("s_setprio", opt.get("cprio", 1))
    e.barrier()
    j, g = tmp[0], tmp[1]
    e.valu("v_and_b32", j, 15, lane)
    e.valu("v_lshrrev_b32", g, 4, lane)
    afrag_addrs(e, j, g, sLds, vA, tmp[2], tmp[3])
    rp, c4, p_ = tmp[2], tmp[3], tmp[4]
    e.valu("v_lshrrev_b32", rp, 2, j)
    e.valu("v_and_b32", c4, 3, j)
    e.valu("v_lshl_add_u32", p_, g, 2, rp)
    e.valu("v_mul_u32_u24", tmp[5], 384, p_)
    e.valu("v_lshl_add_u32", tmp[5], c4, 3, tmp[5])
    e.valu("v_add_u32", tmp[5], sLds, tmp[5])
    e.valu("v_and_b32", tmp[6], 6, p_)
    for q in range(4):
        e.valu("v_xor_b32", tmp[7], 2 * q, tmp[6])
        e.valu("v_lshl_add_u32", vT[q], tmp[7], 4, tmp[5])
    vQa = [Pf[0], Pf[1]]
    e.valu("v_subrev_u32", vQa[0], sLds, vA[0])
    e.valu("v_subrev_u32", vQa[1], sLds, vA[1])
    for k in range(4):
        e.valu("v_mov_b32", vOnes[k], 0x3F803F80)
        e.valu("v_mov_b32", pc[k], 0)
        e.valu("v_mov_b32", pp[k], 0)
    e.valu("v_mov_b32", vOne, 1.0)
    for k in range(2):
        e.salu("s_mov_b32", sInv2[k], 1.0 / 192.0)
        e.salu("s_mov_b32", sEps2[k], 1.0e-5)
        e.salu("s_mov_b32", sM1[k], 0xAAAAAAAA)
        e.salu("s_mov_b32", sM2[k], 0xCCCCCCCC)
    e.salu("s_mov_b32", sMd[0], 0x00F0000F)
    e.salu("s_mov_b32", sMd[1], 0xF0000F00)
    e.salu("s_mov_b32", sThr, THR)
    e.salu("s_mov_b32", sIt, 0)
    e.salu("s_mov_b32", sPc, 0)
    e.salu("s_mov_b32", sLand, 0)
    e.salu("s_mov_b32", sSl, 0)
    e.salu("s_mov_b32", sTile, TILE)
    e.salu("s_lshl_b32", sT, sWave, 2)
    e.valu("v_mov_b32", vSy, sT)
    e.waitcnt(lgkm=0)
    srd(e, sWS, pWS, 0x1000000)
    sXo, sCo, sFo = [S(6 + i) for i in range(3)], [S(9 + i) for i in range(3)], [S(12 + i) for i in range(3)]
    sP0, sP2, sL8 = S(15), S(16), S(17)
    for i in range(3):
        e.salu("s_mul_i32", sT, sWave, 3)
        e.salu("s_add_u32", sT, sT, i)
        e.salu("s_and_b32", sXo[i], sT, 3)
        e.salu("s_lshl_b32", sXo[i], sXo[i], 1)
        e.salu("s_lshr_b32", sCo[i], sT, 2)
        e.salu("s_lshl_b32", sCo[i], sCo[i], 7)
        e.salu("s_add_u32", sCo[i], sCo[i], RING0)
        e.salu("s_lshr_b32", sT2, sT, 1)
        e.salu("s_lshl_b32", sT2, sT2, 10)
        e.salu("s_and_b32", sT, sT, 1)
        e.salu("s_lshl_b32", sT, sT, 3)
        e.salu("s_add_u32", sFo[i], sT, sT2)
    e.salu("s_lshl_b32", sP0, sWave, 10)
    e.salu("s_and_b32", sT, sWave, 1)
    e.salu("s_lshl_b32", sT, sT, 10)
    e.salu("s_lshr_b32", sT2, sWave, 1)
    e.salu("s_mul_i32", sT2, sT2, STAGE)
    e.salu("s_add_u32", sP2, sT, sT2)
    e.salu("s_lshl_b32", sL8, sWave, 8)
    e.salu("s_cmp_lt_u32", S(2), NQP)
    e.salu("s_cbranch_scc1", "L_qkprod")
    e.salu("s_cmp_lt_u32", S(2), NPR)
    e.salu("s_cbranch_scc1", "L_wvprod")
    e.label("L_c_start")

    def wait_piece(sleep=1):
        e.salu("s_add_u32", sPc, sPc, 1)
        have = newlabel("have")
        e.salu("s_cmp_ge_u32", sLand, sPc)
        e.salu("s_cbranch_scc1", have)
        e.begin_cond()
        lds_spin(e, vSy, S_LANDED, vPoll, sLand, sPc, sleep=sleep)
        e.end_cond()
        e.raw(f"{have}:")

    def rot_ops():
        def sc():
            e.salu("s_add_u32", sSl, sSl, 1)
            e.salu("s_cmp_eq_u32", sSl, NSLOT)
            e.salu("s_cselect_b32", sDl, -(NSLOT - 1) * TILE, sTile)
            e.salu("s_cselect_b32", sSl, 0, sSl)
        return (sc, [lambda a_=a_: e.valu("v_add_u32", a_, sDl, a_) for a_ in vA] + [lambda: e.valu("v_mov_b32", vPc, sPc)],
                [lambda a_=a_: e.valu("v_add_u32", a_, sDl, a_) for a_ in vT])

    def poll_ahead():
        if EARLY:
            e.ds_read("ds_read_b32", vPoll, vSy, S_LANDED)
            lq.add("p")

    def release(done=False):
        if not done:
            poll_ahead()
            sc, fa, ft = rot_ops()
            sc()
            for f_ in fa + ft:
                f_()
        lq.drain()
        e.ds_write("ds_write_b32", vSy, vPc, S_CONS)
        lq.add()

    def early(AF, again=False):
        if not EARLY:
            return
        lb_ = newlabel("early")
        e.valu("v_readfirstlane_b32", sLand, vPoll)
        e.salu("s_mov_b32", sEa, 0)
        e.nop(1)
        e.salu("s_cmp_gt_u32", sLand, sPc)
        e.salu("s_cbranch_scc0", lb_)
        e.begin_cond()
        e.salu("s_mov_b32", sEa, 1)
        a_reads(AF)
        e.end_cond()
        e.raw(f"{lb_}:")
        lq.q = []
        if again:
            e.ds_read("ds_read_b32", vPoll, vSy, S_LANDED)

    def early2(AF):
        lb_ = newlabel("early")
        e.waitcnt(lgkm=0)
        e.valu("v_readfirstlane_b32", sLand, vPoll)
        e.salu("s_cmp_lg_u32", sEa, 0)
        e.salu("s_cbranch_scc1", lb_)
        e.salu("s_cmp_gt_u32", sLand, sPc)
        e.salu("s_cbranch_scc0", lb_)
        e.begin_cond()
        e.salu("s_mov_b32", sEa, 1)
        a_reads(AF)
        e.end_cond()
        e.raw(f"{lb_}:")
        lq.q = []

    def begin_piece(AF, sleep=1):
        if not EARLY:
            wait_piece(sleep)
            a_reads(AF)
            return
        lb_ = newlabel("begun")
        e.salu("s_add_u32", sPc, sPc, 1)
        e.salu("s_cmp_lg_u32", sEa, 0)
        e.salu("s_cbranch_scc1", lb_)
        e.begin_cond()
        lds_spin(e, vSy, S_LANDED, vPoll, sLand, sPc, sleep=sleep)
        a_reads(AF)
        e.end_cond()
        e.raw(f"{lb_}:")

    def a_reads(AF):
        for kk in range(6):
            e.ds_read("ds_read_b128", AF[kk], vA[kk & 1], (kk >> 1) * 128)
            lq.add(("a", kk))

    def tr_read(dst, cb):
        e.ds_read("ds_read_b64_tr_b16", dst, vT[cb & 3], (cb >> 2) * 128)
        lq.add(("t", cb))

    def ones_read(dst):
        e.ds_read("ds_read_b64", dst, tC, ONES)
        lq.add()

    def diag(G, out):
        e.valu("v_cndmask_b32", tA, G[0], G[1], sM1)
        e.valu("v_cndmask_b32", tB, G[2], G[3], sM1)
        e.valu("v_cndmask_b32", out, tA, tB, sM2)

    def sumsq_ops(SS):
        return [lambda: e.valu("v_cndmask_b32", tA, SS[0], SS[1], sM1),
                lambda: e.valu("v_cndmask_b32", tB, SS[2], SS[3], sM1),
                lambda: e.valu("v_cndmask_b32", Gx[0], Gx[0], Gx[1], sM1),
                lambda: e.valu("v_cndmask_b32", Gx[2], Gx[2], Gx[3], sM1),
                lambda: e.valu("v_cndmask_b32", tA, tA, tB, sM2),
                lambda: e.valu("v_cndmask_b32", Gx[0], Gx[0], Gx[2], sM2),
                ] + ([lambda: e.valu("v_add_f32", tA, tA, ss1),
                      lambda: e.valu("v_fma_f32", tA, Gx[0], 2.0, tA),
                      lambda: e.valu("v_cndmask_b32", tA, 0, tA, sMd)] if GRAM == 1 else
                     [lambda: e.valu("v_fma_f32", tA, Gx[0], 2.0, tA),
                      lambda: e.valu("v_cndmask_b32", tA, 0, tA, sMd),
                      lambda: e.valu("v_add_f32", tA, tA, ss1)])

    def stats_ops(U_, SS_, packed=True):
        fl = []
        if packed:
            for h in range(2):
                sl = slice(2 * h, 2 * h + 2)
                fl.append(lambda sl=sl: e.valu("v_pk_mul_f32", U_[sl], U_[sl], sInv2))
            for h in range(2):
                sl = slice(2 * h, 2 * h + 2)
                fl.append(lambda sl=sl: e.valu("v_pk_fma_f32", Gx[sl], U_[sl], U_[sl], sEps2, mods=NEG1))
            for h in range(2):
                sl = slice(2 * h, 2 * h + 2)
                fl.append(lambda sl=sl: e.valu("v_pk_fma_f32", SS_[sl], SS_[sl], sInv2, Gx[sl]))
        else:
            for r in range(4):
                fl.append(lambda r=r: e.valu("v_mul_f32", U_[r], sInv, U_[r]))
            for r in range(4):
                fl.append(lambda r=r: e.valu("v_fma_f32", Gx[r], Neg(U_[r]), U_[r], sEps))
            for h in range(2):
                sl = slice(2 * h, 2 * h + 2)
                fl.append(lambda sl=sl: e.valu("v_pk_fma_f32", SS_[sl], SS_[sl], sInv2, Gx[sl]))
        for r in range(4):
            fl.append(lambda r=r: e.valu("v_max_f32", SS_[r], sEps, SS_[r]))
        for r in range(4):
            fl.append(lambda r=r: e.valu("v_rsq_f32", SS_[r], SS_[r]))
        return fl

    def coarse_phase(first, split=False):
        if first:
            wait_piece()
            a_reads(A1)
        else:
            begin_piece(A1)
        if first:
            for cb in range(6):
                tr_read(T1[cb], cb)
        elif not split:
            for cb in range(12):
                e.mfma(MF32, acc[cb], TH[cb], Pf, acc[cb])
                tr_read(T1[cb], cb)
        for kk in range(6):
            if first or split or kk == 0:
                lq.wait(("a", kk if first or split else 5))
            if GRAM == 1:
                e.mfma(MF32, SSx, A1[kk], A1[kk], SSx if kk else 0)
            e.mfma(MF32, Uc, A1[kk], vOnes, Uc if kk else 0)
            if first:
                tr_read(T1[6 + kk], 6 + kk)
        if not first:
            sc, fa, ft = rot_ops()
            sc()
            fl = fa + ft
            for kk in range(6):
                e.mfma(MF32, Sc, A1[kk], Qk[kk], Sc if kk else 0)
                for _ in range(2):
                    if fl:
                        fl.pop(0)()
                if kk == 3:
                    poll_ahead()
        release(done=not first)
        if not first:
            early(A0)
        if GRAM == 1:
            diag(SSx, ss1)
        else:
            for n in range(24):
                r = A1[n >> 2][n & 3]
                d = tA if n & 1 == 0 else tB
                e.valu("v_dot2_f32_bf16", d, r, r, d if n >= 2 else 0)
            e.valu("v_add_f32", ss1, tA, tB)

    def tile_dots(AF, U, SS, first, trs, waits, rel=True, nxt=None, mid=None):
        trs = list(trs)
        hide = rel and not first
        if hide:
            sc, fa, ft = rot_ops()
        for kk in range(6):
            if waits:
                lq.wait(("a", kk))
            e.mfma(MF32, U, AF[kk], vOnes, U if kk else Uc)
            many = len(trs) > 16
            for _ in range(3 if many else 2 if kk in (1, 2) or len(trs) > 12 - 2 * kk else 1):
                if trs:
                    trs.pop(0)()
            if hide and kk == 0:
                sc()
            if hide and kk == 5:
                ft.pop(0)()
                ft.pop(0)()
            if not first:
                e.mfma(MF32, Sx, AF[kk], Qk[kk], Sx if kk else Sc)
            for _ in range(3 if many else 2 if len(trs) > 11 - 2 * kk else 1):
                if trs:
                    trs.pop(0)()
            if hide and kk < 3:
                fa.pop(0)()
            if hide and kk == 4:
                poll_ahead()
            if hide and kk == 5:
                ft.pop(0)()
                ft.pop(0)()
        assert not trs
        if rel:
            release(done=hide)
        else:
            lq.drain()
        if mid is not None:
            mid()
        for n in range(24):
            r, r1 = AF[n >> 2][n & 3], A1[n >> 2][n & 3]
            e.valu("v_dot2_f32_bf16", tA, r, r, tA if n else ss1)
            e.valu("v_dot2_f32_bf16", tB, r, r1, tB if n else 0)
        e.valu("v_fma_f32", tA, tB, 2.0, tA)
        e.mfma(MFF, SS, tA, vOne, 0)
        if first:
            return
        if nxt is not None:
            early(nxt, again=not waits and EARLY > 1)
        for f_ in stats_ops(U, SS):
            f_()

    def tile_mfmas(AF, U, SS, first, trs, waits, rel=True, nxt=None, force=False):
        if GRAM == 0 or (GRAM == 2 and rel and not force):
            return tile_dots(AF, U, SS, first, trs, waits, rel, nxt)
        trs = list(trs)
        for kk in range(6):
            if waits:
                lq.wait(("a", kk))
            many = len(trs) > 14 - 2 * kk
            e.mfma(MF32, SS, AF[kk], AF[kk], SS if kk else 0)
            for _ in range(3 if len(trs) > 25 - 4 * kk else 2 if many else 1 if kk >= 2 else 0):
                if trs:
                    trs.pop(0)()
            e.mfma(MF32, Gx, AF[kk], A1[kk], Gx if kk else 0)
            for _ in range(2 if many else 1):
                if trs:
                    trs.pop(0)()
        fl = sumsq_ops(SS)
        hide = rel and not first
        if hide:
            sc, fa, ft = rot_ops()
        for kk in range(6):
            e.mfma(MF32, U, AF[kk], vOnes, U if kk else Uc)
            if kk < 2:
                if trs:
                    trs.pop(0)()
                if hide and kk == 0:
                    sc()
                    fa.pop(0)()
                elif hide:
                    fa.pop(0)()
                    fa.pop(0)()
                elif kk == 1:
                    e.nop(8 - 3 - (2 if waits else 0))
            else:
                for _ in range(2):
                    fl.pop(0)()
        assert not trs
        if first:
            while fl:
                fl.pop(0)()
            e.mfma(MFF, SS, tA, vOne, 0)
            release()
            return
        fl.pop(0)()
        e.mfma(MF32, Sx, AF[0], Qk[0], Sc)
        if hide:
            ft.pop(0)()
            ft.pop(0)()
        else:
            e.nop(1)
        e.mfma(MFF, SS, tA, vOne, 0)
        fl = stats_ops(U, SS, packed=False)
        for kk in range(1, 6):
            e.mfma(MF32, Sx, AF[kk], Qk[kk], Sx)
            if kk >= 2:
                for _ in range(2):
                    fl.pop(0)()
            elif hide:
                ft.pop(0)()
                ft.pop(0)()
            if hide and kk == 3:
                poll_ahead()
        if rel:
            release(done=True)
        else:
            lq.drain()
        if nxt is not None:
            early(nxt, again=not waits and EARLY > 1)
        while fl:
            fl.pop(0)()

    def tile_phase(t, first, AF=None, U=None, SS=None):
        AF = AF or A0
        U = U or Ux
        SS = SS or SSx
        half = t & 1
        if first:
            wait_piece()
            a_reads(AF)
        else:
            begin_piece(AF)
        nxt = None if first else (A1 if t == 3 else A0)
        if t == 2:
            e.valu("v_mov_b32", tC, 0)
            for cb in range(12):
                e.mfma(MF32, acc[cb], T0[cb], Pf, acc[cb])
                tr_read(T0[cb][0:2], cb)
                ones_read(T0[cb][2:4])
            e.label("L_tile2b")
            lq.wait(("a", 5))
            tile_mfmas(AF, U, SS, first, [], False, nxt=nxt)
        else:
            tile_mfmas(AF, U, SS, first, [lambda cb=cb: tr_read(T0[cb][2 * half:2 * half + 2], cb) for cb in range(12)], True, nxt=nxt)

    def softmax(t, last=False, split=False):
        half = t & 1
        for h in range(2):
            sl = slice(2 * h, 2 * h + 2)
            e.valu("v_pk_fma_f32", Sx[sl], Ux[sl], vCs2, Sx[sl], mods=NEG1)
        for h in range(2):
            e.valu("v_pk_fma_f32", X[2 * h:2 * h + 2], Sx[2 * h:2 * h + 2], SSx[2 * h:2 * h + 2], vNm2)
        e.valu("v_max3_f32", tC, X[0], X[1], X[2])
        e.valu("v_max_f32", tC, tC, X[3])
        e.valu("v_cmp_lt_f32", VCC, sThr, tC)
        for r in range(4):
            e.valu("v_exp_f32", X[r], X[r])
        if split:
            e.salu("s_cmp_lg_u64", VCC, 0)
            e.salu("s_cselect_b32", sBadS, BAD, sBadS)
        else:
            lbl = newlabel("sm")
            e.salu("s_cbranch_vccz", lbl)
            e.begin_cond()
            e.salu("s_call_b64", sRet, "L_rescale")
            e.end_cond()
            e.raw(f"{lbl}:")
        dst = pp if half == 0 else Sx
        for h in range(2):
            e.valu("v_pk_mul_f32", dst[2 * h:2 * h + 2], X[2 * h:2 * h + 2], SSx[2 * h:2 * h + 2])
            if not last:
                e.valu("v_pk_add_f32", vL2, vL2, X[2 * h:2 * h + 2])
        for h in range(2):
            if t == 0:
                e.valu("v_mov_b32", pc[2 * h], dst[2 * h])
                e.valu("v_mov_b32", pc[2 * h + 1], dst[2 * h + 1])
            else:
                e.valu("v_pk_add_f32", pc[2 * h:2 * h + 2], pc[2 * h:2 * h + 2], dst[2 * h:2 * h + 2])
        if not last:
            for h in range(2):
                sl = slice(2 * h, 2 * h + 2)
                if t == 3 and h == 0:
                    e.valu("v_pk_mul_f32", mu2, dst[sl], Ux[sl])
                else:
                    e.valu("v_pk_fma_f32", mu2, dst[sl], Ux[sl], mu2)
        if t == 1:
            e.valu("v_cvt_pk_bf16_f32", Pf[0], pp[0], pp[1])
            e.valu("v_cvt_pk_bf16_f32", Pf[1], pp[2], pp[3])
            e.valu("v_cvt_pk_bf16_f32", Pf[2], Sx[0], Sx[1])
            e.valu("v_cvt_pk_bf16_f32", Pf[3], Sx[2], Sx[3])
        if t == 2:
            e.valu("v_cvt_pk_bf16_f32", Pf[0], pp[0], pp[1])
            e.valu("v_cvt_pk_bf16_f32", Pf[1], pp[2], pp[3])
            e.valu("v_cvt_pk_bf16_f32", Pf[2], Neg(mu2[0]), Neg(mu2[1]))
            e.valu("v_mov_b32", Pf[3], 0)
            if not split:
                if EARLY > 1:
                    early2(A0)
                for cb in range(12):
                    e.mfma(MF32, acc[cb], T0[cb], Pf, acc[cb])
        if t == 3:
            e.valu("v_cvt_pk_bf16_f32", Pf[0], Sx[0], Sx[1])
            e.valu("v_cvt_pk_bf16_f32", Pf[1], Sx[2], Sx[3])
            e.valu("v_cvt_pk_bf16_f32", Pf[2], pc[0], pc[1])
            e.valu("v_cvt_pk_bf16_f32", Pf[3], pc[2], pc[3])

    U1, SS1, S1 = acc[6], acc[7], acc[8]
    coarse_phase(True)
    tile_phase(0, True)
    e.salu("s_sub_u32", sT, S(2), NQP)
    e.salu("s_cmp_ge_u32", sT, NPR - NQP)
    e.salu("s_cbranch_scc1", "L_nowf")
    e.begin_cond()
    srd(e, S(24, 4), pDbg, 256)
    e.salu("s_lshl_b32", sT, sT, 4)
    e.valu("v_mov_b32", tA, 1)
    e.waitcnt(vm=0)
    e.salu("s_mov_b64", EXEC, 1)
    e.buf_store("buffer_store_dword", tA, vSy, S(24, 4), sT, offset=DBG_WVO, flags="sc1")
    e.salu("s_mov_b64", EXEC, -1)
    st.mark(11)
    e.end_cond()
    e.raw("L_nowf:")
    tile_phase(1, True, AF=acc[:6], U=U1, SS=SS1)
    for f_ in stats_ops(Ux, SSx) + stats_ops(U1, SS1):
        f_()
    wait_piece()
    st.mark(6)
    lk.at(9, tA, tB)
    e.valu("v_mov_b32", tC, 0)
    lds_spin(e, tC, S_QKRDY, vPoll, sT, 1, sleep=1)
    lq.q = []
    st.mark(2)
    lk.at(2, tA, tB)
    st.cyc(8)
    for kk in range(6):
        e.ds_read("ds_read_b128", Qk[kk], vQa[kk & 1], QK + (kk >> 1) * 128)
    for kk in range(6):
        e.waitcnt(lgkm=5 - kk)
        e.mfma(MF32, Sc, A1[kk], Qk[kk], Sc if kk else 0)
        e.mfma(MF32, acc[9], vOnes, Qk[kk], acc[9] if kk else 0)
    for kk in range(6):
        e.mfma(MF32, Sx, A0[kk], Qk[kk], Sx if kk else Sc)
        e.mfma(MF32, S1, acc[kk], Qk[kk], S1 if kk else Sc)
    a_reads(A0)
    e.valu("v_mov_b32", vCs2[0], acc[9][0])
    e.valu("v_mov_b32", vCs2[1], acc[9][0])
    for (U_, SS_, S_) in ((Ux, SSx, Sx), (U1, SS1, S1)):
        for h in range(2):
            sl = slice(2 * h, 2 * h + 2)
            e.valu("v_pk_fma_f32", S_[sl], U_[sl], vCs2, S_[sl], mods=NEG1)
            e.valu("v_pk_mul_f32", S_[sl], S_[sl], SS_[sl])
    e.valu("v_max3_f32", vM, Sx[0], Sx[1], Sx[2])
    e.valu("v_max3_f32", tC, Sx[3], S1[0], S1[1])
    e.valu("v_max3_f32", vM, vM, S1[2], S1[3])
    e.valu("v_max_f32", vM, vM, tC)
    xg_reduce(e, "v_max_f32", vM, tA, tB)
    e.valu("v_cmp_le_f32_e64", VCC, "|%s|" % vM, sThr)
    e.valu("v_cndmask_b32_e64", vM, vM, 0, VCC)
    e.valu("v_sub_f32", vNm2[0], 0, vM)
    e.valu("v_sub_f32", vNm2[1], 0, vM)
    for S_ in (Sx, S1):
        for h in range(2):
            sl = slice(2 * h, 2 * h + 2)
            e.valu("v_pk_add_f32", S_[sl], S_[sl], vNm2)
        for r in range(4):
            e.valu("v_exp_f32", S_[r], S_[r])
    e.valu("v_pk_add_f32", vL2, Sx[0:2], Sx[2:4])
    e.valu("v_pk_add_f32", vL2, vL2, S1[0:2])
    e.valu("v_pk_add_f32", vL2, vL2, S1[2:4])
    for (SS_, S_) in ((SSx, Sx), (SS1, S1)):
        for h in range(2):
            sl = slice(2 * h, 2 * h + 2)
            e.valu("v_pk_mul_f32", S_[sl], S_[sl], SS_[sl])
    e.valu("v_cvt_pk_bf16_f32", Pf[0], Sx[0], Sx[1])
    e.valu("v_cvt_pk_bf16_f32", Pf[1], Sx[2], Sx[3])
    e.valu("v_cvt_pk_bf16_f32", Pf[2], S1[0], S1[1])
    e.valu("v_cvt_pk_bf16_f32", Pf[3], S1[2], S1[3])
    for h in range(2):
        sl = slice(2 * h, 2 * h + 2)
        e.valu("v_pk_add_f32", pc[sl], Sx[sl], S1[sl])
    e.valu("v_pk_mul_f32", mu2, Sx[0:2], Ux[0:2])
    e.valu("v_pk_fma_f32", mu2, Sx[2:4], Ux[2:4], mu2)
    e.valu("v_pk_fma_f32", mu2, S1[0:2], U1[0:2], mu2)
    e.valu("v_pk_fma_f32", mu2, S1[2:4], U1[2:4], mu2)
    e.valu("v_mov_b32", tC, 0)
    for cb in range(12):
        e.mfma(MF32, acc[cb], T0[cb], Pf, 0)
        tr_read(T0[cb][0:2], cb)
        ones_read(T0[cb][2:4])
    e.fence()
    e.salu("s_branch", "L_tile2b")
    lq.q = []

    e.raw("L_rescale:")
    e.nop(16)
    for r in range(4):
        e.valu("v_mul_f32", X[r], Sx[r], SSx[r])
    e.valu("v_max3_f32", tC, X[0], X[1], X[2])
    e.valu("v_max3_f32", tC, tC, X[3], vM)
    xg_reduce(e, "v_max_f32", tC, tA, tB)
    al = V(22, 2)
    e.valu("v_sub_f32", al[0], vM, tC)
    e.valu("v_exp_f32", al[0], al[0])
    e.valu("v_mov_b32", vM, tC)
    e.valu("v_sub_f32", vNm2[0], 0, tC)
    e.valu("v_sub_f32", vNm2[1], 0, tC)
    e.valu("v_mov_b32", al[1], al[0])
    for r in range(4):
        e.valu("v_sub_f32", X[r], X[r], tC)
    for r in range(4):
        e.valu("v_exp_f32", X[r], X[r])
    for q_ in [vL2, mu2, pc[0:2], pc[2:4], pp[0:2], pp[2:4]] + [a_[2 * h:2 * h + 2] for a_ in acc for h in range(2)]:
        e.valu("v_pk_mul_f32", q_, q_, al)
    e.fence()
    e.salu("s_setpc_b64", sRet)

    e.label("L_loop")
    if opt.get("nocmp"):
        e.drop.update((MF32, MFF, "ds_read_b128", "ds_read_b64_tr_b16", "ds_read_b64"))
    st.cyc(7)
    coarse_phase(False)
    tile_phase(0, False)
    softmax(0)
    tile_phase(1, False)
    softmax(1)
    tile_phase(2, False)
    softmax(2)
    e.salu("s_cmp_eq_u32", sIt, NITER - 1)
    e.salu("s_cbranch_scc1", "L_last")
    tile_phase(3, False)
    softmax(3)
    e.salu("s_add_u32", sIt, sIt, 1)
    e.salu("s_cmp_lt_u32", sIt, NITER - 1)
    e.fence()
    e.salu("s_cbranch_scc1", "L_loop")

    e.drop.clear()
    FINE = opt.get("fine", 0)
    a3 = [V(52 + 4 * i, 4) for i in range(3)]
    Pq = [V(64 + 4 * u, 4) for u in range(4)]
    vTx = [[V(80 + 3 * u + i) for i in range(3)] for u in range(4)]
    vL16, vP0, vP2, vFl = V(92), V(93), V(94), V(95)
    fl4 = V(96, 4)
    TQ = [[V(148 + 12 * u + 4 * i, 4) for i in range(3)] for u in range(4)]
    T2 = [V(196 + 4 * i, 4) for i in range(3)]
    P2, Cn = V(208, 4), V(212, 4)
    vZs, x0, x1, vLl = V(216), V(217), V(218), V(219)
    SD = opt.get("sdbg", 0)
    mk = (lambda k: st.cyc(k)) if SD else (lambda k: None)
    mk(1)
    e.valu("v_lshlrev_b32", tC, 4, lane)
    e.valu("v_add_u32", tC, sLds, tC)
    post = []
    for kk in range(6):
        for q_ in range(2):
            for h in range(2):
                post.append(lambda kk=kk, q_=q_, h=h: e.valu("v_cvt_pk_bf16_f32", A0[kk][2 * q_ + h], acc[2 * kk + q_][2 * h], acc[2 * kk + q_][2 * h + 1]))
        post.append(lambda kk=kk: e.ds_write("ds_write_b128", tC, A0[kk], BULK + 1024 * kk))
    fill = [lambda: e.valu("v_add_f32", vL2[0], vL2[0], vL2[1]),
            lambda: e.valu("v_cmp_neq_f32", VCC, 0, vM),
            lambda: e.valu("v_mov_b32", tA, vL2[0]),
            lambda: e.valu("v_mov_b32", tB, vL2[0]),
            lambda: e.valu("v_mov_b32", vL2[1], 0),
            lambda: e.valu("v_permlane32_swap_b32", tA, tB),
            lambda: e.valu("v_add_f32", vL2[0], tA, tB),
            lambda: e.valu("v_mov_b32", tA, vL2[0]),
            lambda: e.valu("v_mov_b32", tB, vL2[0])]
    for cb in range(12):
        e.mfma(MF32, acc[cb], TH[cb], Pf, acc[cb])
        if cb < 3:
            for _ in range(3):
                fill.pop(0)()
        else:
            for _ in range(2 + (cb & 1 ^ 1)):
                post.pop(0)()
    while post:
        post.pop(0)()
    e.valu("v_permlane16_swap_b32", tA, tB)
    e.valu("v_and_b32", x0, 15, lane)
    e.valu("v_add_f32", vL2[0], tA, tB)
    e.valu("v_lshlrev_b32", tA, 4, vSy)
    e.valu("v_lshl_add_u32", tA, x0, 2, tA)
    e.salu("s_cmp_eq_u64", VCC, 0)
    e.salu("s_cselect_b32", sT, 1, 2)
    e.salu("s_cselect_b32", sBadS, 0, BAD)
    e.valu("v_mov_b32", tB, sT)
    e.ds_write("ds_write_b32", tA, vL2[0], HB)
    e.ds_write("ds_write_b32", tA, vM, HB + 256)
    e.ds_write("ds_write_b32", vSy, tB, S_BK)
    e.valu("v_mov_b32", vZs, 0)
    e.valu("v_mov_b32", vL2[0], 0)
    e.salu("s_cmp_lg_u32", sBadS, 0)
    e.salu("s_cbranch_scc1", "L_redo0")
    e.valu("v_lshrrev_b32", x1, 4, lane)
    e.valu("v_lshrrev_b32", tA, 2, x0)
    e.valu("v_lshl_add_u32", vLl, x0, 2, x1)
    e.valu("v_lshl_add_u32", x1, x1, 2, tA)
    e.valu("v_lshl_add_u32", vLl, vLl, 2, sL8)
    e.valu("v_and_b32", x0, 3, x0)
    e.valu("v_mul_u32_u24", tA, 384, x1)
    e.valu("v_lshl_add_u32", tA, x0, 3, tA)
    e.valu("v_and_b32", x1, 6, x1)
    e.valu("v_lshlrev_b32", vL16, 4, lane)
    for i in range(3):
        e.valu("v_xor_b32", x0, sXo[i], x1)
        e.valu("v_lshl_add_u32", x0, x0, 4, tA)
        e.valu("v_add_u32", vTx[0][i], sCo[i], x0)
        for u in range(1, 4):
            e.valu("v_add_u32", vTx[u][i], u * WAVE_RING, vTx[0][i])
    e.valu("v_add_u32", vP0, sP0, vL16)
    e.valu("v_add_u32", vP2, sP2, vL16)
    e.salu("s_mov_b32", sK1, 0)
    SLOT = [(4, 5), None, (1, 3)]

    def t_reads(k, u):
        out = []
        for i in range(3):
            for h in range(2):
                def f(i=i, h=h):
                    e.ds_read("ds_read_b64_tr_b16", TQ[u][i][2 * h:2 * h + 2], vTx[u][i], SLOT[k][h] * TILE)
                    lq.add(("u", u))
                out.append(f)
        return out

    def p_read(k, u):
        e.ds_read("ds_read_b128", Pq[u], vL16, pitem(k, u))
        lq.add(("u", u))

    def i1_reads(x):
        out = []
        for h in range(2):
            out.append(lambda h=h: e.ds_read("ds_read_b64", P2[2 * h:2 * h + 2], vL16, pitem(1, 2 * x + h)))
            for i in range(3):
                out.append(lambda i=i, h=h: e.ds_read("ds_read_b64_tr_b16", T2[i][2 * h:2 * h + 2], vTx[2 * x + h][i], 0))
        if x:
            for u in range(4):
                out.append(lambda u=u: e.ds_read("ds_read_b32", Cn[u], vL16, pitem(1, u) + 8))
        return out

    def i1_mfma(x):
        for i in range(3):
            e.mfma(MF32, a3[i], T2[i], P2, a3[i])
        if x:
            for i in range(3):
                e.mfma(MF32, a3[i], vOnes, Cn, a3[i])

    def flags_read():
        e.ds_read("ds_read_b128", fl4, vZs, S_PK)
        lq.add("f")

    def flags_eval(lo, hi, dst=None):
        e.valu("v_or3_b32", x0, fl4[0], fl4[1], fl4[2])
        if hi - lo == 2:
            e.valu("v_min_u32", x1, fl4[lo], fl4[lo + 1])
        else:
            e.valu("v_min3_u32", x1, fl4[0], fl4[1], fl4[2])
        e.valu("v_or_b32", x0, x0, fl4[3])
        if hi - lo == 4:
            e.valu("v_min_u32", x1, x1, fl4[3])
        e.valu("v_readfirstlane_b32", sT2, x0)
        e.valu("v_readfirstlane_b32", sT, x1)
        e.nop(1)
        e.salu("s_cmp_ge_u32", sT2, BAD)
        e.salu("s_cbranch_scc1", "L_redo")

    def publish_p(k):
        e.salu("s_or_b32", sT, sBadS, k + 1)
        e.valu("v_mov_b32", vFl, sT)
        e.ds_write("ds_write_b128", vP2 if k == 2 else vP0, Pf, pitem(k, 0))
        e.ds_write("ds_write_b32", vSy, vFl, S_PK)

    def i0_mfma():
        for u in range(4):
            for i in range(3):
                e.mfma(MF32, a3[i], TQ[u][i], Pq[u], a3[i] if u else 0)

    def must(bit, reads, lo, hi, need, mf):
        lb_ = newlabel("mu")
        e.salu("s_bitcmp1_b32", sK1, bit)
        e.salu("s_cbranch_scc1", lb_)
        e.begin_cond()
        e.label(lb_ + "s")
        flags_read()
        for f_ in reads():
            f_()
        e.waitcnt(lgkm=0)
        flags_eval(lo, hi)
        e.salu("s_cmp_ge_u32", sT, need)
        e.salu("s_cbranch_scc0", lb_ + "s")
        mf()
        e.end_cond()
        e.raw(f"{lb_}:")

    def maybe(bit, lo, hi, need, mf):
        lb_ = newlabel("my")
        flags_eval(lo, hi)
        e.salu("s_cmp_ge_u32", sT, need)
        e.salu("s_cbranch_scc0", lb_)
        e.begin_cond()
        mf()
        e.salu("s_bitset1_b32", sK1, bit)
        e.end_cond()
        e.raw(f"{lb_}:")

    i0_reads = lambda: sum(([lambda u=u: p_read(0, u)] + t_reads(0, u) for u in range(4)), [])
    lq.q = []
    mk(5)
    coarse_phase(False, split=True)
    mk(6)
    for t in range(3):
        begin_piece(A0)
        if opt.get("sgram", 0):
            tile_mfmas(A0, Ux, SSx, False, [flags_read] + i0_reads() if t == 2 else [], True, nxt=A0, force=True)
            if t == 2:
                maybe(0, 0, 4, 1, i0_mfma)
        else:
            tile_dots(A0, Ux, SSx, False, [flags_read] + i0_reads() if t == 2 else [], True, nxt=A0,
                      mid=(lambda: maybe(0, 0, 4, 1, i0_mfma)) if t == 2 else None)
        softmax(t, split=True)
        if t:
            publish_p(t - 1)
        lq.q = []
        mk((7, 8, 11)[t])
    must(0, i0_reads, 0, 4, 1, i0_mfma)
    mk(13)
    flags_read()
    for f_ in i1_reads(0):
        f_()
    e.waitcnt(lgkm=0)
    maybe(1, 0, 2, 2, lambda: i1_mfma(0))
    e.valu("v_min_u32", x1, fl4[2], fl4[3])
    e.valu("v_readfirstlane_b32", sT, x1)
    lb_ = newlabel("sk")
    e.nop(1)
    e.salu("s_bitcmp1_b32", sK1, 1)
    e.salu("s_cselect_b32", sT, sT, 0)
    e.salu("s_cmp_ge_u32", sT, 2)
    e.salu("s_cbranch_scc0", lb_)
    e.begin_cond()
    for f_ in i1_reads(1):
        f_()
    e.waitcnt(lgkm=0)
    i1_mfma(1)
    e.salu("s_bitset1_b32", sK1, 2)
    e.end_cond()
    e.raw(f"{lb_}:")
    st.cyc(9)
    if opt.get("lprio", 2):
        e.salu("s_setprio", opt.get("lprio", 2))
    if FINE:
        st.cyc(5)
    lq.q = []
    e.salu("s_cmp_lg_u32", sEa, 0)
    e.salu("s_cbranch_scc1", "L_sgot")
    e.label("L_sspin")
    e.ds_read("ds_read_b32", vPoll, vSy, S_LANDED)
    a_reads(A0)
    e.waitcnt(lgkm=6)
    e.valu("v_readfirstlane_b32", sLand, vPoll)
    e.nop(1)
    e.salu("s_cmp_ge_u32", sLand, 5 * NITER)
    e.salu("s_cbranch_scc0", "L_sspin")
    e.raw("L_sgot:")
    if FINE:
        st.cyc(7)
    ld4 = Pq[3]

    def landed_read():
        e.ds_read("ds_read_b128", ld4, vZs, S_LANDED)
        lq.add("l")
    tile_mfmas(A0, Ux, SSx, False, [landed_read] + sum((t_reads(2, u) for u in range(4)), []), True, rel=False)
    flags_read()
    for u in range(3):
        p_read(2, u)
    sV = [S(26 + u) for u in range(4)]
    for u in range(4):
        e.valu("v_readfirstlane_b32", sV[u], ld4[u])
    if FINE:
        st.cyc(8)
    softmax(3, True, split=True)
    st.mark(3)
    if FINE:
        st.cyc(11)
    e.waitcnt(lgkm=0)
    publish_p(2)
    e.valu("v_min3_u32", x1, fl4[0], fl4[1], fl4[2])
    e.valu("v_or3_b32", x0, fl4[0], fl4[1], fl4[2])
    flags_read()
    p_read(2, 3)
    e.valu("v_readfirstlane_b32", sT, x1)
    e.valu("v_readfirstlane_b32", sT2, x0)
    e.valu("v_add_f32", X[0], X[0], X[1])
    e.valu("v_add_f32", X[2], X[2], X[3])
    e.salu("s_min_u32", sTv, sV[0], sV[1])
    e.salu("s_min_u32", sTv, sTv, sV[2])
    e.salu("s_min_u32", sTv, sTv, sV[3])
    e.salu("s_cmp_ge_u32", sTv, 5 * NITER)
    e.salu("s_cselect_b32", sT, sT, 0)
    e.salu("s_bitcmp1_b32", sK1, 2)
    e.salu("s_cselect_b32", sT, sT, 0)
    e.salu("s_cmp_ge_u32", sT2, BAD)
    e.salu("s_cselect_b32", sT, 0, sT)
    e.salu("s_cmp_ge_u32", sT, 3)
    e.salu("s_cbranch_scc1", "L_srest")
    e.begin_cond()
    must(1, lambda: i1_reads(0), 0, 2, 2, lambda: i1_mfma(0))
    must(2, lambda: i1_reads(1), 0, 4, 2, lambda: i1_mfma(1))
    for u in range(4):
        lb_ = newlabel("sl")
        e.salu("s_cmp_ge_u32", sV[u], 5 * NITER)
        e.salu("s_cbranch_scc1", lb_)
        e.label(lb_ + "s")
        e.ds_read("ds_read_b32", x0, vZs, S_LANDED + 4 * u)
        for f_ in t_reads(2, u):
            f_()
        e.waitcnt(lgkm=6)
        e.valu("v_readfirstlane_b32", sT, x0)
        e.nop(1)
        e.salu("s_cmp_ge_u32", sT, 5 * NITER)
        e.salu("s_cbranch_scc0", lb_ + "s")
        e.raw(f"{lb_}:")
    lb_ = newlabel("sp")
    e.label(lb_)
    flags_read()
    for u in range(4):
        p_read(2, u)
    e.waitcnt(lgkm=0)
    flags_eval(0, 3)
    e.salu("s_cmp_ge_u32", sT, 3)
    e.salu("s_cbranch_scc0", lb_)
    e.end_cond()
    e.raw("L_srest:")
    vFw = [T2[0][i] for i in range(3)]
    fill = [lambda: e.valu("v_add_f32", vL2[0], vL2[0], vL2[1]),
            lambda: e.valu("v_add_f32", X[0], X[0], X[2]),
            lambda: e.valu("v_add_f32", vL2[0], vL2[0], X[0]),
            lambda: e.valu("v_mov_b32", vFl, 1)] + [lambda i=i: e.valu("v_add_u32", vFw[i], sFo[i], vL16) for i in range(3)]
    for u in range(3):
        for i in range(3):
            e.mfma(MF32, a3[i], TQ[u][i], Pq[u], a3[i])
            if fill:
                fill.pop(0)()
    e.label("L_s3", fence=False)
    e.waitcnt(lgkm=0)
    e.valu("v_or3_b32", x0, fl4[0], fl4[1], fl4[2])
    e.valu("v_readfirstlane_b32", sT, fl4[3])
    e.valu("v_readfirstlane_b32", sT2, x0)
    e.nop(1)
    e.salu("s_cmp_eq_u32", sT, 3)
    e.salu("s_cbranch_scc1", "L_s3k")
    e.salu("s_or_b32", sT2, sT2, sT)
    e.salu("s_cmp_ge_u32", sT2, BAD)
    e.salu("s_cbranch_scc1", "L_redo")
    flags_read()
    p_read(2, 3)
    e.salu("s_branch", "L_s3")
    e.raw("L_s3k:")
    for i in range(3):
        e.mfma(MF32, a3[i], TQ[3][i], Pq[3], a3[i])
    e.ds_write("ds_write_b32", vLl, vL2[0], FINL)
    for i in range(3):
        pk = Pq[0][2 * (i & 1):2 * (i & 1) + 2] if i < 2 else Pq[1][0:2]
        e.valu("v_cvt_pk_bf16_f32", pk[0], a3[i][0], a3[i][1])
        e.valu("v_cvt_pk_bf16_f32", pk[1], a3[i][2], a3[i][3])
        e.ds_write("ds_write_b64", vFw[i], pk, FIN)
    e.salu("s_mov_b64", EXEC, 1)
    e.mem(f"ds_add_u32 {vZs}, {vFl} offset:{S_FIN}", reads=[vZs, vFl])
    e.salu("s_mov_b64", EXEC, -1)
    e.salu("s_branch", "L_cdone")

    e.raw("L_redo0:")
    e.valu("v_mov_b32", tB, BAD)
    e.ds_write("ds_write_b32", vSy, tB, S_PK)
    e.raw("L_redo:")
    e.nop(16)
    e.waitcnt(lgkm=0)
    e.salu("s_sub_i32", sT, 3, sSl)
    e.salu("s_mul_i32", sDl, sT, TILE)
    for a_ in vA + vT:
        e.valu("v_add_u32", a_, sDl, a_)
    e.salu("s_mov_b32", sSl, 3)
    e.salu("s_mov_b32", sPc, 5 * (NITER - 1))
    e.salu("s_mov_b32", sEa, 0)
    for r_ in list(range(52, 100)) + list(range(148, 220)) + [14, 15, 244, 245, 246, 247, 252, 253]:
        e.valu("v_mov_b32", V(r_), 0)
    e.fence()
    e.salu("s_branch", "L_loop")

    e.drop.clear()
    e.raw("L_last:")
    lq.q = [None]
    for a_ in acc:
        for r_ in a_.regs():
            e.w[r_] = (e.pos - 1, "xdl4", (a_.f, a_.i, a_.n))
    st.cyc(9)
    fr = [T0[cb][0:2] for cb in range(12)]
    vFr, vSt = fr[0][0], fr[0][1]
    vOn1, vZ0 = fr[1][0], fr[1][1]
    if opt.get("lprio", 2):
        e.salu("s_setprio", opt.get("lprio", 2))
    e.valu("v_and_b32", tA, 15, lane)
    e.valu("v_lshrrev_b32", tB, 4, lane)
    e.valu("v_lshlrev_b32", vFr, 4, lane)
    e.valu("v_lshlrev_b32", tB, 2, tB)
    e.valu("v_add_u32", vFr, sLds, vFr)
    e.valu("v_lshl_add_u32", vSt, tA, 4, tB)
    e.valu("v_add_u32", vSt, sLds, vSt)
    FINE = 0
    lq.q = []
    if opt.get("spec", 1):
        e.salu("s_cmp_lg_u32", sEa, 0)
        e.salu("s_cbranch_scc1", "L_lgot")
        e.label("L_lspin")
        e.ds_read("ds_read_b32", vPoll, vSy, S_LANDED)
        a_reads(A0)
        e.waitcnt(lgkm=6)
        e.valu("v_readfirstlane_b32", sLand, vPoll)
        e.nop(1)
        e.salu("s_cmp_ge_u32", sLand, 5 * NITER)
        e.salu("s_cbranch_scc0", "L_lspin")
        e.raw("L_lgot:")
    else:
        begin_piece(A0, sleep=0)
    if FINE:
        st.cyc(7)
    tile_mfmas(A0, Ux, SSx, False, [lambda cb=cb: tr_read(T0[cb][2:4], cb) for cb in range(12)], True, rel=False)
    if FINE:
        st.cyc(8)
    softmax(3, True)
    st.mark(3)
    if FINE:
        st.cyc(11)

    def put(kk):
        pk = A1[kk]
        for q_ in range(2):
            e.valu("v_cvt_pk_bf16_f32", pk[2 * q_], acc[2 * kk + q_][0], acc[2 * kk + q_][1])
            e.valu("v_cvt_pk_bf16_f32", pk[2 * q_ + 1], acc[2 * kk + q_][2], acc[2 * kk + q_][3])
        e.ds_write("ds_write_b128", vFr, pk, FRAG + 1024 * kk)

    STEP = opt.get("pstep", 2)

    def flagval():
        e.salu("s_cmp_eq_u64", VCC, 0)
        e.salu("s_cselect_b32", sT, 16 + STEP, 32 + STEP)
        e.valu("v_mov_b32", vOn1, sT)
    fill = [lambda: e.valu("v_cmp_neq_f32", VCC, 0, vM),
            lambda: e.valu("v_add_f32", X[0], X[0], X[1]),
            lambda: e.valu("v_add_f32", X[2], X[2], X[3]),
            lambda: e.valu("v_add_f32", vL2[0], vL2[0], vL2[1]),
            lambda: e.valu("v_add_f32", X[0], X[0], X[2]),
            lambda: e.ds_write("ds_write_b32", vSt, vM, WST + 512),
            lambda: e.valu("v_add_f32", vL2[0], vL2[0], X[0]),
            flagval,
            lambda: e.ds_write("ds_write_b32", vSt, vL2[0], WST)]
    post = []
    for kk in range(6):
        pk = A1[kk]
        for q_ in range(2):
            for h in range(2):
                post.append(lambda kk=kk, q_=q_, h=h, pk=pk: e.valu("v_cvt_pk_bf16_f32", pk[2 * q_ + h], acc[2 * kk + q_][2 * h], acc[2 * kk + q_][2 * h + 1]))

        def wr(kk=kk, pk=pk):
            e.ds_write("ds_write_b128", vFr, pk, FRAG + 1024 * kk)
            if kk % STEP == STEP - 1 and kk < 5:
                e.ds_write("ds_write_b32", vSy, vOn1, S_FR)
                e.valu("v_add_u32", vOn1, STEP, vOn1)
        post.append(wr)
    for cb in range(12):
        e.mfma(MF32, acc[cb], TH[cb], Pf, acc[cb])
        if cb < 3:
            for _ in range(3):
                fill.pop(0)()
        else:
            for _ in range(2 + (cb & 1 ^ 1)):
                post.pop(0)()
    while post:
        post.pop(0)()
    e.ds_write("ds_write_b32", vSy, vOn1, S_FR)
    e.label("L_cdone", fence=False)
    st.mark(4)
    if opt.get("fine", 0):
        st.cyc(1)
    e.salu("s_setprio", 0)

    sId = S(53)
    e.salu("s_cmp_lt_u32", S(2), NWG - NCB)
    e.salu("s_cbranch_scc1", "L_r_end")
    e.salu("s_sub_u32", sId, S(2), NWG - NCB)
    e.salu("s_and_b32", sT, sId, 7)
    e.salu("s_lshr_b32", sT2, sId, 4)
    e.salu("s_lshl_b32", sT2, sT2, 3)
    e.salu("s_or_b32", sT, sT, sT2)
    e.salu("s_lshl_b32", sT, sT, 1)
    e.salu("s_bfe_u32", sT2, sId, 0x10003)
    e.salu("s_or_b32", sId, sT, sT2)
    sQ, sO = S(24, 4), S(28, 4)
    srd(e, sQ, pQ, 6144)
    srd(e, sO, S(18, 2), 6144)
    nq, wgp, vP, vO, c0, c1, vW, vR, c2, vAlt, tg = [V(28 + k) for k in range(11)]
    e.valu("v_and_b32", nq, 3, lane)
    e.valu("v_lshrrev_b32", wgp, 2, lane)
    e.valu("v_lshlrev_b32", vP, 15, wgp)
    e.valu("v_lshl_add_u32", vP, nq, 4, vP)
    e.valu("v_lshlrev_b32", c0, 2, nq)
    e.ds_read("ds_read_b32", tg, c0, TAGS)
    e.salu("s_lshl_b32", sT, sWave, 19)
    e.salu("s_lshl_b32", sT2, sId, 6)
    e.salu("s_add_u32", sT, sT, sT2)
    e.salu("s_add_u32", sT, sT, WS_P)
    sC = [S(4), S(5), S(6)]
    e.salu("s_and_b32", sT2, sId, 3)
    e.salu("s_mul_i32", sT2, sT2, 4 * 384)
    e.valu("v_mul_u32_u24", vO, 384, nq)
    e.valu("v_add_u32", vO, sT2, vO)
    e.salu("s_lshr_b32", sT2, sId, 5)
    e.salu("s_mul_i32", sC[2], sT2, 96)
    e.salu("s_bfe_u32", sT2, sId, 0x20002)
    e.salu("s_lshl_b32", sT2, sT2, 3)
    e.salu("s_add_u32", sC[2], sC[2], sT2)
    e.salu("s_bitcmp1_b32", sId, 4)
    e.salu("s_cselect_b32", sC[0], 36, 0)
    e.salu("s_cselect_b32", sC[1], 64, 4)
    e.salu("s_cselect_b32", sT2, 68, 32)
    e.salu("s_add_u32", sC[0], sC[0], sC[2])
    e.salu("s_add_u32", sC[1], sC[1], sC[2])
    e.salu("s_add_u32", sC[2], sC[2], sT2)
    qv = V(56, 3)
    for k in range(3):
        e.buf_load("buffer_load_dword", qv[k], vO, sQ, sC[k])
    e.valu("v_lshrrev_b32", c0, 4, lane)
    e.valu("v_lshlrev_b32", vW, 7, c0)
    e.valu("v_lshl_add_u32", vW, nq, 5, vW)
    e.salu("s_lshl_b32", sT2, sWave, 9)
    e.salu("s_add_u32", sT2, sT2, CEX)
    e.valu("v_add_u32", vW, sT2, vW)
    e.valu("v_and_b32", vR, 15, lane)
    e.valu("v_lshlrev_b32", vR, 5, vR)
    P = [V(40 + 4 * i, 4) for i in range(4)]
    R8 = V(60, 8)
    a6, L, M = R8[0:6], R8[6], R8[7]
    qf = V(120, 6)
    sBad = [S(44, 2), S(46, 2), S(58, 2), S(60, 2)]
    sLo1, sHi1 = S(38), S(39)
    e.valu("v_mov_b32", c0, 0)
    for k in range(8):
        e.valu("v_mov_b32", R8[k], 0)
    e.valu("v_mov_b32", vAlt, 0)
    for i in range(4):
        e.salu("s_mov_b64", sBad[i], -1)
    e.salu("s_mov_b32", sLo1, 0x00003F80)
    e.salu("s_mov_b32", sHi1, 0x3F800000)
    e.waitcnt(vm=0, lgkm=0)
    for k in range(3):
        e.valu("v_lshlrev_b32", qf[2 * k], 16, qv[k])
        e.valu("v_and_b32", qf[2 * k + 1], 0xFFFF0000, qv[k])
    if opt.get("gate", 1):
        lds_spin(e, c0, S_EMP, c1, sT2, 4)
    if opt.get("pre", 4):
        e.salu("s_mov_b64", EXEC, {1: 0x1, 2: 0x10001, 4: 0x1111, 8: 0x11111111, 5: 0x01010101}[opt.get("pre", 4)])
        e.label("L_tpre")
        e.buf_load("buffer_load_dword", c0, vP, sWS, sT, offset=12, flags=PFL)
        e.waitcnt(vm=0)
        e.valu("v_xor_b32", c0, c0, tg)
        e.valu("v_and_b32", c0, 0xFFFE, c0)
        e.valu("v_cmp_ne_u32", VCC, 0, c0)
        e.salu("s_cbranch_vccnz", "L_tpre")
        e.salu("s_mov_b64", EXEC, -1)
    e.label("L_tpoll")
    for i in range(4):
        lb_ = newlabel("tskip")
        e.salu("s_add_u32", sT2, sT, PSZ * i)
        e.salu("s_cmp_eq_u64", sBad[i], 0)
        e.salu("s_cbranch_scc1", lb_)
        e.begin_cond()
        e.salu("s_mov_b64", EXEC, sBad[i])
        e.buf_load("buffer_load_dwordx4", P[i], vP, sWS, sT2, flags=LFL)
        e.end_cond()
        e.raw(f"{lb_}:")
    e.waitcnt(vm=0)
    for i in range(4):
        lb_ = newlabel("tchk")
        e.salu("s_cmp_eq_u64", sBad[i], 0)
        e.salu("s_cbranch_scc1", lb_)
        e.begin_cond()
        e.salu("s_mov_b64", EXEC, sBad[i])
        e.valu("v_xor_b32", c2, P[i][3], tg)
        e.valu("v_and_b32", c0, 0xFFFE, c2)
        e.valu("v_and_b32", c1, 0xFFFF0000, P[i][3])
        e.valu("v_or_b32_dpp", c0, c0, c0, mods="quad_perm:[1,0,3,2] row_mask:0xf bank_mask:0xf")
        e.valu("v_or_b32_dpp", c0, c0, c0, mods="quad_perm:[2,3,0,1] row_mask:0xf bank_mask:0xf")
        e.valu("v_cmp_eq_u32", VCC, 0, c0)
        e.nop(1)
        e.salu("s_andn2_b64", sBad[i], sBad[i], VCC)
        e.salu("s_and_b64", EXEC, VCC, VCC)
        e.salu("s_cbranch_scc0", lb_)
        for k in range(6):
            e.valu("v_dot2_f32_bf16", a6[k], P[i][k >> 1], sHi1 if k & 1 else sLo1, a6[k])
        e.valu("v_add_f32", L, L, c1)
        e.valu("v_or_b32", vAlt, vAlt, c2)
        e.end_cond()
        e.raw(f"{lb_}:")
    e.salu("s_mov_b64", EXEC, -1)
    sCn, sPi, sMk = S(54), S(55), S(56, 2)
    e.salu("s_or_b64", sMk, sBad[0], sBad[1])
    e.salu("s_or_b64", VCC, sBad[2], sBad[3])
    e.salu("s_or_b64", sMk, sMk, VCC)
    e.salu("s_cbranch_scc0", "L_tfull")
    e.salu("s_mov_b32", sCn, 0)
    for i in (3, 2, 1, 0):
        e.salu("s_bcnt1_i32_b64", sT2, sBad[i])
        e.salu("s_cselect_b32", sPi, PSZ * i if i else 0, sPi)
        e.salu("s_cselect_b64", sMk, sBad[i], sMk)
        e.salu("s_add_u32", sCn, sCn, sT2)
    e.salu("s_cmp_le_u32", sCn, 4 * opt.get("tfew", 8))
    e.salu("s_cbranch_scc1", "L_tpoll")
    e.salu("s_ff1_i32_b64", sT2, sMk)
    e.salu("s_lshl_b64", EXEC, 1, sT2)
    e.salu("s_add_u32", sPi, sPi, sT)
    e.label("L_tprobe")
    e.buf_load("buffer_load_dword", c0, vP, sWS, sPi, offset=12, flags=PFL)
    e.waitcnt(vm=0)
    e.valu("v_xor_b32", c0, c0, tg)
    e.valu("v_and_b32", c0, 0xFFFE, c0)
    e.valu("v_cmp_ne_u32", VCC, 0, c0)
    e.salu("s_cbranch_vccnz", "L_tprobe")
    e.salu("s_mov_b64", EXEC, -1)
    e.salu("s_branch", "L_tpoll")
    e.label("L_tfull")
    st.mark(10)
    lk.at(6, c0, c1)
    e.valu("v_and_b32", c0, 1, vAlt)
    e.valu("v_cmp_ne_u32", VCC, 0, c0)
    e.salu("s_cbranch_vccnz", "L_tgen")
    e.label("L_trows")
    for k in (4, 8):
        for x in range(7):
            e.valu("v_add_f32_dpp", R8[x], R8[x], R8[x], mods=f"row_ror:{k} row_mask:0xf bank_mask:0xf")
    e.salu("s_mov_b32", S(46), 0x000F000F)
    e.salu("s_mov_b32", S(47), 0x000F000F)
    e.salu("s_mov_b64", EXEC, S(46, 2))
    e.ds_write("ds_write_b128", vW, R8[0:4], 0)
    e.ds_write("ds_write_b128", vW, R8[4:8], 16)
    e.salu("s_mov_b64", EXEC, -1)
    e.waitcnt(lgkm=0)
    e.barrier()
    e.salu("s_cmp_lg_u32", sWave, 0)
    e.salu("s_cbranch_scc1", "L_r_end")
    Xv = [V(80 + 8 * v, 8) for v in range(4)]
    for v in range(4):
        e.ds_read("ds_read_b128", Xv[v][4:8], vR, CEX + 512 * v + 16)
    for v in range(4):
        e.ds_read("ds_read_b128", Xv[v][0:4], vR, CEX + 512 * v)
    e.waitcnt(lgkm=4)
    e.valu("v_or3_b32", c0, Xv[0][7], Xv[1][7], Xv[2][7])
    e.valu("v_or_b32", c0, c0, Xv[3][7])
    e.valu("v_cmp_ne_u32", VCC, 0, c0)
    e.salu("s_cbranch_vccnz", "L_fgen")
    e.label("L_fsum")
    for h in (3, 2, 0, 1):
        sl = slice(2 * h, 2 * h + 2)
        if h == 0:
            e.waitcnt(lgkm=0)
        e.valu("v_pk_add_f32", R8[sl], Xv[0][sl], Xv[1][sl])
        e.valu("v_pk_add_f32", Xv[2][sl], Xv[2][sl], Xv[3][sl])
    for h in (3, 2, 0, 1):
        sl = slice(2 * h, 2 * h + 2)
        e.valu("v_pk_add_f32", R8[sl], R8[sl], Xv[2][sl])
    for k in (4, 8):
        for x in (6, 0, 1, 2, 3, 4, 5):
            e.valu("v_add_f32_dpp", R8[x], R8[x], R8[x], mods=f"row_ror:{k} row_mask:0xf bank_mask:0xf")
            if k == 8 and x == 1:
                e.valu("v_rcp_f32", L, L)
    for h in range(3):
        sl = slice(2 * h, 2 * h + 2)
        e.valu("v_pk_mul_f32", a6[sl], a6[sl], R8[6:8], mods="op_sel_hi:[1,0]")
    for h in range(3):
        e.valu("v_cvt_pk_bf16_f32", qv[h], a6[2 * h], a6[2 * h + 1])
    for h in range(3):
        e.valu("v_lshlrev_b32", a6[2 * h], 16, qv[h])
        e.valu("v_and_b32", a6[2 * h + 1], 0xFFFF0000, qv[h])
    for h in range(3):
        sl = slice(2 * h, 2 * h + 2)
        e.valu("v_pk_add_f32", a6[sl], a6[sl], qf[sl])
    e.salu("s_mov_b64", EXEC, 0xF)
    for h in range(3):
        e.valu("v_cvt_pk_bf16_f32", qv[h], a6[2 * h], a6[2 * h + 1])
        e.buf_store("buffer_store_dword", qv[h], vO, sO, sC[h])
    e.salu("s_mov_b64", EXEC, -1)
    st.mark(12)
    lk.at(7, c0, c1)
    lk.spend(c0, c1)
    e.label("L_r_end")
    st.dump(sWS, 14, [V(126), V(127)])
    e.salu("s_endpgm")

    e.raw("L_tgen:")
    e.nop(4)
    Fv = [V(112 + 2 * i, 2) for i in range(4)]
    tw, vE = V(70), V(71)
    e.valu("v_mov_b32", c0, 0)
    e.ds_read("ds_read_b64", V(72, 2), c0, TAGS)
    e.valu("v_lshlrev_b32", vE, 9, wgp)
    e.valu("v_lshl_add_u32", vE, nq, 3, vE)
    e.salu("s_and_b32", sT2, sId, 3)
    e.salu("s_lshl_b32", sT2, sT2, 5)
    e.salu("s_lshl_b32", sPi, sWave, 13)
    e.salu("s_add_u32", sPi, sPi, sT2)
    e.salu("s_add_u32", sPi, sPi, WS_E)
    e.waitcnt(lgkm=0)
    e.valu("v_lshl_or_b32", tw, V(73), 16, V(72))
    for i in range(4):
        e.valu("v_mov_b32", Fv[i][0], 0)
        e.valu("v_and_b32", c0, 1, P[i][3])
        e.valu("v_cmp_ne_u32", VCC, 0, c0)
        e.nop(1)
        e.salu("s_and_b64", EXEC, VCC, VCC)
        e.salu("s_cbranch_scc0", f"L_tg{i}e")
        e.label(f"L_tg{i}")
        e.buf_load("buffer_load_dwordx2", Fv[i], vE, sWS, sPi, offset=128 * i, flags="sc1")
        e.waitcnt(vm=0)
        e.valu("v_cmp_ne_u32", VCC, Fv[i][1], tw)
        e.salu("s_cbranch_vccnz", f"L_tg{i}")
        e.raw(f"L_tg{i}e:")
        e.salu("s_mov_b64", EXEC, -1)
    e.valu("v_max3_f32", M, Fv[0][0], Fv[1][0], Fv[2][0])
    e.valu("v_max_f32", M, M, Fv[3][0])
    for k in (4, 8):
        e.valu("v_max_f32_dpp", M, M, M, mods=f"row_ror:{k} row_mask:0xf bank_mask:0xf")
    xg_reduce(e, "v_max_f32", M, c0, c1)
    for k in range(7):
        e.valu("v_mov_b32", R8[k], 0)
    for i in range(4):
        e.valu("v_sub_f32", c2, Fv[i][0], M)
        e.valu("v_exp_f32", c2, c2)
        for k in range(7):
            if k & 1 or k == 6:
                e.valu("v_and_b32", c0, 0xFFFF0000, P[i][k >> 1])
            else:
                e.valu("v_lshlrev_b32", c0, 16, P[i][k >> 1])
            e.valu("v_fmac_f32", R8[k], c2, c0, rmw=True)
    e.fence()
    e.salu("s_branch", "L_trows")

    e.raw("L_fgen:")
    e.waitcnt(lgkm=0)
    e.valu("v_max3_f32", M, Xv[0][7], Xv[1][7], Xv[2][7])
    e.valu("v_max_f32", M, M, Xv[3][7])
    for v in range(4):
        e.valu("v_sub_f32", c0, Xv[v][7], M)
        e.valu("v_exp_f32", c0, c0)
        for k in range(7):
            e.valu("v_mul_f32", Xv[v][k], Xv[v][k], c0)
    e.fence()
    e.salu("s_branch", "L_fsum")

    e.w.clear(); e.cread.clear(); e.stread.clear()
    e.raw("L_qkprod:")
    pj, pg, pz, p0, p1 = V(28), V(29), V(30), V(31), V(32)
    vB = [V(34 + k) for k in range(4)]
    vTp = [V(38 + k) for k in range(3)]
    vTq = [V(41 + k) for k in range(3)]
    vXw = [V(44 + k) for k in range(3)]
    vL16 = V(47)
    qp = [V(52 + k) for k in range(24)]
    sCb = S(53)
    sCode = S(28, 4)
    e.salu("s_getpc_b64", sCode[0:2])
    e.salu("s_mov_b32", sCode[2], 4096)
    e.salu("s_mov_b32", sCode[3], 0x20000)
    e.valu("v_lshlrev_b32", p0, 6, lane)
    e.buf_load("buffer_load_dword", V(50), p0, sCode, 0)
    e.valu("v_and_b32", pj, 15, lane)
    e.valu("v_lshrrev_b32", pg, 4, lane)
    e.valu("v_mov_b32", pz, 0)
    e.valu("v_lshlrev_b32", vL16, 4, lane)
    e.valu("v_add_u32", vL16, QL, vL16)
    e.valu("v_mul_u32_u24", p0, 384, pj)
    e.valu("v_and_b32", p1, 1, pg)
    e.valu("v_lshl_add_u32", p0, p1, 3, p0)
    e.valu("v_add_u32", p0, STAGE, p0)
    e.valu("v_lshrrev_b32", p1, 1, pg)
    e.valu("v_and_b32", vB[3], 6, pj)
    e.valu("v_xor_b32", p1, p1, vB[3])
    for q in range(4):
        e.valu("v_xor_b32", vB[q], 2 * q, p1)
        e.valu("v_lshl_add_u32", vB[q], vB[q], 4, p0)
    e.valu("v_lshrrev_b32", p0, 2, pj)
    e.valu("v_lshl_add_u32", p0, pg, 2, p0)
    e.valu("v_and_b32", p1, 6, p0)
    e.valu("v_mul_u32_u24", p0, 384, p0)
    e.valu("v_and_b32", vTq[0], 3, pj)
    e.valu("v_lshl_add_u32", p0, vTq[0], 3, p0)
    for c in range(3):
        e.salu("s_mul_i32", sCb, sWave, 3)
        e.salu("s_add_u32", sCb, sCb, c)
        e.salu("s_and_b32", sT, sCb, 3)
        e.salu("s_lshl_b32", sT, sT, 1)
        e.valu("v_xor_b32", vTp[c], sT, p1)
        e.valu("v_lshl_add_u32", vTp[c], vTp[c], 4, p0)
        e.salu("s_lshr_b32", sT, sCb, 2)
        e.salu("s_lshl_b32", sT, sT, 7)
        e.salu("s_add_u32", sT, sT, RING0 + wslot(0) * TILE)
        e.valu("v_add_u32", vTp[c], sT, vTp[c])
        e.valu("v_add_u32", vTq[c], (wslot(8) - wslot(0)) * TILE, vTp[c])
        e.salu("s_lshr_b32", sT, sCb, 1)
        e.salu("s_lshl_b32", sT, sT, 10)
        e.salu("s_and_b32", sT2, sCb, 1)
        e.salu("s_lshl_b32", sT2, sT2, 3)
        e.salu("s_add_u32", sT, sT, sT2)
        e.valu("v_add_u32", vXw[c], sT, vL16)
    lds_spin(e, pz, S_WL, p0, sT, 1)
    st.mark(5)
    for kk in range(6):
        for hf in range(2):
            e.ds_read("ds_read_b64", V(52 + 4 * kk + 2 * hf, 2), vB[2 * (kk & 1) + hf], (kk >> 1) * 128)
    sm, one2 = V(76), V(77)
    mean, var = V(78, 2), V(80, 2)
    xs = [V(82, 2), V(84, 2)]
    e.valu("v_mov_b32", one2, 0x3F803F80)
    e.waitcnt(lgkm=0)
    if opt.get("lnfast", 1):
        for k in range(24):
            e.valu("v_dot2_f32_bf16", sm, qp[k], one2, sm if k else 0)
            e.valu("v_dot2_f32_bf16", var[0], qp[k], qp[k], var[0] if k else 0)
        for sw in ("v_permlane32_swap_b32", "v_permlane16_swap_b32"):
            e.valu("v_mov_b32", p0, sm)
            e.valu("v_mov_b32", p1, sm)
            e.valu("v_mov_b32", xs[0][0], var[0])
            e.valu("v_mov_b32", xs[0][1], var[0])
            e.valu(sw, p0, p1)
            e.valu(sw, xs[0][0], xs[0][1])
            e.valu("v_add_f32", sm, p0, p1)
            e.valu("v_add_f32", var[0], xs[0][0], xs[0][1])
        e.valu("v_mul_f32", mean[0], sInv, sm)
        e.valu("v_mul_f32", var[0], sInv, var[0])
        e.valu("v_fma_f32", var[0], Neg(mean[0]), mean[0], var[0])
        e.valu("v_max_f32", var[0], 0, var[0])
    else:
        for k in range(24):
            e.valu("v_dot2_f32_bf16", sm, qp[k], one2, sm if k else 0)
        xg_reduce(e, "v_add_f32", sm, p0, p1)
        e.valu("v_mul_f32", mean[0], sInv, sm)
        e.valu("v_mul_f32", mean[1], sInv, sm)
        for k in range(24):
            x = xs[k & 1]
            e.valu("v_lshlrev_b32", x[0], 16, qp[k])
            e.valu("v_and_b32", x[1], 0xFFFF0000, qp[k])
            e.valu("v_pk_add_f32", x, x, mean, mods="neg_lo:[0,1] neg_hi:[0,1]")
            if k == 0:
                e.valu("v_pk_mul_f32", var, x, x)
            else:
                e.valu("v_pk_fma_f32", var, x, x, var)
        e.valu("v_add_f32", var[0], var[0], var[1])
        xg_reduce(e, "v_add_f32", var[0], p0, p1)
        e.valu("v_mul_f32", var[0], sInv, var[0])
    bf16_round(e, mean[0])
    e.valu("v_mov_b32", mean[1], mean[0])
    bf16_round(e, var[0])
    e.valu("v_add_f32", var[0], 1.0e-5, var[0])
    bf16_round(e, var[0])
    e.valu("v_sqrt_f32", var[0], var[0])
    bf16_round(e, var[0])
    e.valu("v_rcp_f32", var[0], var[0])
    e.valu("v_mov_b32", var[1], var[0])
    for k in range(24):
        x = xs[k & 1]
        e.valu("v_lshlrev_b32", x[0], 16, qp[k])
        e.valu("v_and_b32", x[1], 0xFFFF0000, qp[k])
        e.valu("v_pk_add_f32", x, x, mean, mods="neg_lo:[0,1] neg_hi:[0,1]")
        e.valu("v_cvt_pk_bf16_f32", qp[k], x[0], x[1])
        e.valu("v_lshlrev_b32", x[0], 16, qp[k])
        e.valu("v_and_b32", x[1], 0xFFFF0000, qp[k])
        e.valu("v_pk_mul_f32", x, x, var)
        e.valu("v_cvt_pk_bf16_f32", qp[k], x[0], x[1])
    st.mark(10)
    lds_spin(e, pz, S_WL, p0, sT, 2)
    e.waitcnt(vm=0)
    if opt.get("pdbg"):
        st.mark(1)
    Fr = [[V(100 + 12 * kk + 4 * c, 4) for c in range(3)] for kk in range(6)]
    Dq = [V(88 + 4 * c, 4) for c in range(3)]
    for kk in range(6):
        for c in range(3):
            for hf in range(2):
                t = 2 * kk + hf
                base = vTp[c] if t < 8 else vTq[c]
                e.ds_read("ds_read_b64_tr_b16", Fr[kk][c][2 * hf:2 * hf + 2], base, (wslot(t) - wslot(0 if t < 8 else 8)) * TILE)
        if kk >= 2:
            e.waitcnt(lgkm=12)
            for c in range(3):
                e.mfma(MF32, Dq[c], Fr[kk - 2][c], V(52 + 4 * (kk - 2), 4), Dq[c] if kk - 2 else 0)
    for kk in (4, 5):
        e.waitcnt(lgkm=6 * (5 - kk))
        for c in range(3):
            e.mfma(MF32, Dq[c], Fr[kk][c], V(52 + 4 * kk, 4), Dq[c])
    for c in range(3):
        pk = V(76 + 2 * c, 2)
        e.valu("v_cvt_pk_bf16_f32", pk[0], Dq[c][0], Dq[c][1])
        e.valu("v_cvt_pk_bf16_f32", pk[1], Dq[c][2], Dq[c][3])
        e.ds_write("ds_write_b64", vXw[c], pk, 0)
    lds_inc(e, pz, p0, S_AUX)
    e.salu("s_cmp_ge_u32", sWave, 2)
    e.salu("s_cbranch_scc1", "L_qkp_done")
    if opt.get("pdbg"):
        st.mark(12)
    lds_spin(e, pz, S_WL, p0, sT, 3)
    if opt.get("pdbg"):
        st.mark(13)
    e.salu("s_mul_i32", sT, sWave, 2 * TILE)
    e.salu("s_add_u32", sT, sT, RING0 + wslot(12) * TILE - STAGE)
    for q in range(4):
        e.valu("v_add_u32", vB[q], sT, vB[q])
    for c in range(2):
        for kk in range(6):
            for hf in range(2):
                e.ds_read("ds_read_b64", V(100 + 24 * c + 4 * kk + 2 * hf, 2), vB[2 * (kk & 1) + hf], c * TILE + (kk >> 1) * 128)
    lds_spin(e, pz, S_AUX, p0, sT, 4)
    for kk in range(6):
        e.ds_read("ds_read_b128", V(52 + 4 * kk, 4), vL16, 1024 * kk)
    e.salu("s_lshl_b32", sT2, S(2), 1)
    e.salu("s_add_u32", sT2, sT2, sWave)
    e.salu("s_lshl_b32", sT2, sT2, 10)
    e.salu("s_add_u32", sT2, sT2, WS_QK)
    e.valu("v_lshlrev_b32", V(33), 4, lane)
    for kk in range(6):
        e.waitcnt(lgkm=5 - kk)
        for c in range(2):
            e.mfma(MF32, Dq[c], V(100 + 24 * c + 4 * kk, 4), V(52 + 4 * kk, 4), Dq[c] if kk else 0)
    lds_spin(e, pz, S_EMPT, p0, sT, 1)
    e.salu("s_mov_b32", sT, QSCALE)
    pk = V(76, 4)
    for c in range(2):
        for r in range(4):
            e.valu("v_mul_f32", Dq[c][r], sT, Dq[c][r])
        e.valu("v_cvt_pk_bf16_f32", pk[2 * c], Dq[c][0], Dq[c][1])
        e.valu("v_cvt_pk_bf16_f32", pk[2 * c + 1], Dq[c][2], Dq[c][3])
    for k in range(4):
        e.valu("v_min_u32", pk[k], -2, pk[k])
    e.buf_store("buffer_store_dwordx4", pk, V(33), sWS, sT2, flags="sc1")
    st.mark(11)
    e.label("L_qkp_done")
    lds_inc(e, pz, p0, S_ISS)
    e.waitcnt(lgkm=0)
    e.fence()
    e.salu("s_branch", "L_c_start")

    e.w.clear(); e.cread.clear(); e.stread.clear()
    e.raw("L_wvprod:")
    Bw = [V(28 + 4 * kd, 4) for kd in range(6)]
    Dv = [V(52 + 4 * t, 4) for t in range(12)]
    Av = [[V(100 + 24 * b_ + 4 * kd, 4) for kd in range(6)] for b_ in range(2)]
    w0, w1, wz, vTw = V(148), V(149), V(150), V(151)
    vAb = [[V(152), V(153)], [V(154), V(155)]]
    e.salu("s_getpc_b64", sCode[0:2])
    e.salu("s_mov_b32", sCode[2], 4096)
    e.salu("s_mov_b32", sCode[3], 0x20000)
    e.valu("v_lshlrev_b32", w0, 6, lane)
    e.buf_load("buffer_load_dword", V(156), w0, sCode, 0)
    e.valu("v_mov_b32", wz, 0)
    for b_ in range(2):
        for k in range(2):
            e.valu("v_add_u32", vAb[b_][k], RING0 + wslot(8 * b_) * TILE, vQa[k])
    e.valu("v_lshrrev_b32", w0, 4, lane)
    e.valu("v_bfe_u32", w1, lane, 2, 2)
    e.valu("v_lshl_add_u32", w0, w0, 3, w1)
    e.valu("v_and_b32", w1, 3, lane)
    e.valu("v_lshlrev_b32", w1, 3, w1)
    e.valu("v_lshl_add_u32", vTw, w0, 7, w1)
    e.salu("s_lshl_b32", sT, sWave, 5)
    e.salu("s_add_u32", sT, sT, WOB)
    e.valu("v_add_u32", vTw, sT, vTw)
    lds_spin(e, wz, S_WL, w0, sT, 1)
    for kd in range(6):
        for hf in range(2):
            e.ds_read("ds_read_b64_tr_b16", Bw[kd][2 * hf:2 * hf + 2], vTw, (32 * kd + 4 * hf) * 128)

    def wv_reads(t):
        return [lambda kd=kd: e.ds_read("ds_read_b128", Av[t & 1][kd], vAb[t >> 3][kd & 1], (wslot(t) - wslot(t & 8)) * TILE + (kd >> 1) * 128)
                for kd in range(6)]
    lds_spin(e, wz, S_WL, w0, sT, 2)
    e.waitcnt(vm=0)
    st.mark(5)
    for f_ in wv_reads(0):
        f_()
    for t in range(12):
        if t == 7:
            lds_spin(e, wz, S_WL, w0, sT, 3)
        nx = wv_reads(t + 1) if t < 11 else []
        for kd in range(6):
            e.waitcnt(lgkm=5)
            e.mfma(MF32, Dv[t], Av[t & 1][kd], Bw[kd], Dv[t] if kd else 0)
            if nx:
                nx.pop(0)()
            elif kd < 5:
                e.waitcnt(lgkm=4 - kd)
    lds_inc(e, wz, w0, S_ISS)
    m2 = V(158, 2)
    n2 = V(160, 2)
    for t in range(1, 12):
        e.valu("v_pk_add_f32", m2, Dv[0][0:2] if t == 1 else m2, Dv[t][0:2])
        e.valu("v_pk_add_f32", n2, Dv[0][2:4] if t == 1 else n2, Dv[t][2:4])
    e.valu("v_pk_add_f32", m2, m2, n2)
    e.valu("v_add_f32", m2[0], m2[0], m2[1])
    xg_reduce(e, "v_add_f32", m2[0], w0, w1)
    e.valu("v_mul_f32", m2[0], sInv, m2[0])
    e.salu("s_sub_u32", sT, S(2), NQP)
    e.salu("s_lshl_b32", sT, sT, 2)
    e.salu("s_add_u32", sT, sT, sWave)
    e.salu("s_mul_i32", sT, sT, 6144)
    e.salu("s_add_u32", sT, sT, WS_WVO)
    e.valu("v_lshlrev_b32", w0, 4, lane)
    for kk in range(6):
        pk = V(164 + 4 * kk, 4)
        for c in range(2):
            for h in range(2):
                x = Dv[2 * kk + c][2 * h:2 * h + 2]
                e.valu("v_pk_add_f32", x, x, m2, mods="op_sel_hi:[1,0] neg_lo:[0,1] neg_hi:[0,1]")
                e.valu("v_cvt_pk_bf16_f32", pk[2 * c + h], x[0], x[1])
        e.salu("s_add_u32", sT2, sT, 1024 * kk)
        e.buf_store("buffer_store_dwordx4", pk, w0, sWS, sT2, flags="sc1")
    st.mark(10)
    e.waitcnt(lgkm=0)
    e.nop(2)
    e.fence()
    e.salu("s_branch", "L_c_start")

    e.w.clear(); e.cread.clear(); e.stread.clear()
    e.raw("L_aux:")
    sA = S(36)
    sT, sT2, sT3 = S(37), S(38), S(39)
    sW0, sW1, sW2, sWS, sDbg = S(24, 4), S(28, 4), S(40, 4), S(32, 4), S(44, 4)
    sStg = S(48)
    j, g = V(1), V(2)
    vSl = V(3)
    vSt = V(4)
    vTr = [V(5 + k) for k in range(4)]
    vZ = V(11)
    vLn16 = V(12)
    vX = V(13)
    t0, t1 = V(14), V(15)
    e.salu("s_sub_u32", sA, sWave, 5)
    e.valu("v_mov_b32", vZ, 0)
    e.valu("v_and_b32", j, 15, lane)
    e.valu("v_lshrrev_b32", g, 4, lane)
    e.valu("v_lshlrev_b32", vLn16, 4, lane)
    for k in range(4):
        e.valu("v_mov_b32", V(16 + k), -1)
    e.waitcnt(lgkm=0)
    srd(e, sWS, pWS, 0x1000000)
    e.salu("s_cmp_ge_u32", S(2), NQP)
    e.salu("s_cbranch_scc1", "L_aux_noinv0")
    e.salu("s_cmp_lg_u32", sA, 1)
    e.salu("s_cbranch_scc1", "L_aux_noinv0")
    e.begin_cond()
    e.salu("s_lshl_b32", sT2, S(2), 11)
    e.salu("s_add_u32", sT2, sT2, WS_QK)
    for k in range(2):
        e.buf_store("buffer_store_dwordx4", V(16, 4), vLn16, sWS, sT2, offset=1024 * k, flags="sc1")
    e.smem("s_memrealtime s[52:53]", S(52, 2))
    e.waitcnt(lgkm=0)
    e.salu("s_mul_i32", S(54), S(52), 0x9E3779B1)
    e.salu("s_mov_b32", S(55), S(53))
    for r in range(3):
        e.salu("s_lshr_b64", S(56, 2), S(54, 2), 15 * r)
        e.salu("s_lshl_b32", sT3, S(56), 1)
        e.salu("s_and_b32", sT3, sT3, 0xFFFE)
        e.valu("v_mov_b32", V(20 + r), sT3)
    e.salu("s_mul_i32", sT3, S(54), 0x85EBCA6B)
    e.salu("s_lshr_b32", sT3, sT3, 16)
    e.salu("s_and_b32", sT3, sT3, 0xFFFE)
    e.valu("v_mov_b32", V(23), sT3)
    e.salu("s_lshl_b32", sT2, S(2), 7)
    e.salu("s_add_u32", sT2, sT2, WS_QK + 6144)
    e.salu("s_mov_b64", EXEC, 1)
    e.buf_store("buffer_store_dwordx4", V(20, 4), vZ, sWS, sT2, flags="sc1")
    e.salu("s_mov_b64", EXEC, -1)
    e.end_cond()
    e.raw("L_aux_noinv0:")
    e.barrier()
    srd(e, sDbg, pDbg, 256)
    e.salu("s_cmp_ge_u32", S(2), NQP)
    e.salu("s_cbranch_scc1", "L_aux_noinv")
    e.salu("s_cmp_lg_u32", sA, 1)
    e.salu("s_cbranch_scc1", "L_aux_noinv")
    e.begin_cond()
    e.valu("v_mov_b32", t0, 1)
    e.salu("s_lshl_b32", sT2, S(2), 5)
    e.waitcnt(vm=0)
    e.ds_write("ds_write_b32", vZ, t0, S_EMPT)
    e.salu("s_mov_b64", EXEC, 1)
    e.buf_store("buffer_store_dword", t0, vZ, sDbg, sT2, flags="sc1")
    e.salu("s_mov_b64", EXEC, -1)
    st.mark(8)
    e.end_cond()
    e.label("L_aux_noinv")

    e.salu("s_cmp_lt_u32", S(2), NQP)
    e.salu("s_cselect_b32", sT3, S_ISS - S_LANDED, 0)
    e.valu("v_mov_b32", t1, sT3)

    e.salu("s_cmp_lg_u32", sA, 0)
    e.salu("s_cbranch_scc1", "L_aux_w")
    vQw = [V(232 + k) for k in range(4)]
    QR = 208
    e.valu("v_mul_u32_u24", t0, 384, j)
    e.valu("v_and_b32", V(16), 1, g)
    e.valu("v_lshl_add_u32", t0, V(16), 3, t0)
    e.valu("v_lshrrev_b32", V(16), 1, g)
    e.valu("v_and_b32", vX, 6, j)
    e.valu("v_xor_b32", V(16), V(16), vX)
    for q in range(4):
        e.valu("v_xor_b32", vX, 2 * q, V(16))
        e.valu("v_lshl_add_u32", vQw[q], vX, 4, t0)
    e.valu("v_lshlrev_b32", vX, 5, lane)
    e.salu("s_cmp_lt_u32", S(2), NPR)
    e.salu("s_cselect_b32", sT2, 1, opt.get("fstart", 3))
    lds_spin(e, t1, S_LANDED, t0, sT, sT2, sleep=4)
    e.salu("s_mov_b64", EXEC, (1 << NQP) - 1)
    e.label("L_qpoll")
    e.buf_load("buffer_load_dword", t0, vX, sDbg, 0, flags="sc1")
    e.waitcnt(vm=0)
    e.valu("v_cmp_eq_u32", VCC, 0, t0)
    e.salu("s_cbranch_vccz", "L_qpolled")
    e.salu("s_sleep", 8)
    e.salu("s_branch", "L_qpoll")
    e.raw("L_qpolled:")
    e.salu("s_mov_b64", EXEC, -1)
    st.mark(7)
    e.salu("s_cmp_lt_u32", S(2), NPR)
    e.salu("s_cselect_b32", sT2, opt.get("wqstart", 3), opt.get("qstart", 6))
    e.salu("s_cmp_lt_u32", S(2), NQP)
    e.salu("s_cselect_b32", sT2, 4, sT2)
    lds_spin(e, t1, S_LANDED, t0, sT, sT2, sleep=2)
    st.mark(5)
    e.salu("s_mov_b32", sT2, WS_QK + 6144)
    e.buf_load("buffer_load_dwordx4", V(236, 4), vZ, sWS, sT2, flags="sc1")
    e.label("L_qdata")
    for k in range(6):
        e.salu("s_mov_b32", sT2, WS_QK + 1024 * k)
        e.buf_load("buffer_load_dwordx4", V(QR + 4 * k, 4), vLn16, sWS, sT2, flags="sc1")
    e.waitcnt(vm=0)
    e.valu("v_max3_u32", t0, V(QR), V(QR + 1), V(QR + 2))
    for k in range(3, 23, 2):
        e.valu("v_max3_u32", t0, t0, V(QR + k), V(QR + k + 1))
    e.valu("v_max_u32", t0, t0, V(QR + 23))
    e.valu("v_cmp_eq_u32", VCC, -1, t0)
    e.salu("s_cbranch_vccnz", "L_qdata")
    st.mark(6)
    e.ds_write("ds_write_b128", vZ, V(236, 4), TAGS)
    for ct in range(12):
        e.ds_write("ds_write_b64", vQw[ct & 3], V(QR + 2 * ct, 2), QK + (ct >> 2) * 128)
    e.valu("v_mov_b32", t0, 1)
    e.ds_write("ds_write_b32", vZ, t0, S_QKRDY)
    st.mark(1)

    e.label("L_aux_w")
    e.salu("s_cmp_lg_u32", sA, 2)
    e.salu("s_cbranch_scc1", "L_aux_wf2")
    e.valu("v_lshlrev_b32", vX, 2, lane)
    lds_spin(e, vZ, S_LANDED, t0, sT, opt.get("wstart", 8), sleep=8)
    lds_spin(e, vZ, S_QKRDY, t0, sT, 1, sleep=8)
    e.salu("s_mov_b64", EXEC, 0xFFF)
    e.label("L_wpoll")
    e.buf_load("buffer_load_dword", t0, vX, sDbg, 0, offset=DBG_WVO, flags="sc1")
    e.waitcnt(vm=0)
    e.valu("v_cmp_eq_u32", VCC, 0, t0)
    e.salu("s_cbranch_vccz", "L_wpolled")
    e.salu("s_sleep", opt.get("wsleep", 16))
    e.salu("s_branch", "L_wpoll")
    e.raw("L_wpolled:")
    e.salu("s_mov_b64", EXEC, -1)
    e.valu("v_mov_b32", t0, 1)
    e.ds_write("ds_write_b32", vZ, t0, S_WVL)
    e.label("L_aux_wf2")
    lds_spin(e, vZ, S_WVL, t0, sT, 1, sleep=8)
    st.mark(9)
    lk.at(8, t0, t1)
    e.salu("s_mul_i32", sT, sA, 3 * 6144)
    e.salu("s_add_u32", sT, sT, WS_WVO)
    WB = opt.get("wfb", 4)
    W4 = [V(208 + 4 * kk, 4) for kk in range(6)]
    e.salu("s_mul_i32", sT3, sA, 6144)
    e.salu("s_add_u32", sT3, sT3, WS_WVO + 9 * 6144)
    n = 0
    for t3 in range(4):
        for kk in range(6):
            e.salu("s_add_u32", sT2, sT if t3 < 3 else sT3, ((t3 % 3) * 6 + kk) * 1024)
            e.buf_load("buffer_load_dwordx4", WVO[kk][t3] if t3 < 3 else W4[kk], vLn16, sWS, sT2, flags=WFL)
            n += 1
            if n % WB == 0:
                e.waitcnt(vm=0)
    st.mark(2)
    lk.at(4, t0, t1)
    D = [V(16 + 4 * t3, 4) for t3 in range(3)]
    D4 = V(28, 4)
    Bb = [V(48 + 4 * kk, 4) for kk in range(6)]
    e.salu("s_mov_b32", S(50), 0)
    for t3 in range(4):
        for r in range(4):
            e.valu("v_mov_b32", V(16 + 4 * t3 + r), 0)
    e.label("L_bulk")
    e.salu("s_lshl_b32", sT2, S(50), 2)
    e.valu("v_mov_b32", vX, sT2)
    lds_spin(e, vX, S_BK, t0, sT, 1, sleep=4)
    e.salu("s_mul_i32", sT2, S(50), WAVE_RING)
    e.salu("s_add_u32", sT2, sT2, RING0 + BULK)
    e.valu("v_add_u32", vX, sT2, vLn16)
    for kk in range(6):
        e.ds_read("ds_read_b128", Bb[kk], vX, 1024 * kk)
    e.waitcnt(lgkm=0)
    for kk in range(6):
        for t3 in range(4):
            d = D[t3] if t3 < 3 else D4
            e.mfma(MF32, d, WVO[kk][t3] if t3 < 3 else W4[kk], Bb[kk], d)
            if opt.get("bgap", 12):
                e.nop(opt.get("bgap", 12))
    e.salu("s_add_u32", S(50), S(50), 1)
    e.salu("s_cmp_lt_u32", S(50), 4)
    e.fence()
    e.salu("s_cbranch_scc1", "L_bulk")
    e.salu("s_lshl_b32", sT2, sA, 10)
    e.salu("s_add_u32", sT2, sT2, DH)
    e.valu("v_add_u32", vX, sT2, vLn16)
    e.ds_write("ds_write_b128", vX, D4, 0)
    lds_inc(e, vZ, t0, S_DH)
    st.mark(8)

    e.label("L_tail")
    Dw2 = [V(32 + 4 * t3, 4) for t3 in range(3)]
    B = [V(48 + 4 * kk, 4) for kk in range(6)]
    l4 = [V(72 + 4 * u, 4) for u in range(4)]
    lbk = [V(88 + u) for u in range(4)]
    f4 = V(92, 4)
    G2 = [V(192, 4), V(196, 4)]
    vTg = V(200)
    vF, vN4, vS = V(2), V(4), V(6)
    lt, lr = V(7), V(8)
    e.valu("v_lshlrev_b32", vS, 4, j)
    e.valu("v_lshlrev_b32", vN4, 2, j)
    e.valu("v_and_b32", lr, 3, j)
    e.valu("v_lshlrev_b32", lr, 2, lr)
    e.ds_read("ds_read_b32", vTg, lr, TAGS)
    for u in range(4):
        e.ds_read("ds_read_b32", lbk[u], vN4, HB + 64 * u)
    sP = S(49)
    e.salu("s_lshl_b32", sP, S(2), 13)
    e.salu("s_lshl_b32", sT2, sA, 11)
    e.salu("s_add_u32", sP, sP, sT2)
    e.salu("s_add_u32", sP, sP, WS_P)
    sHi = S(51)
    e.salu("s_mov_b32", sHi, 40.0)
    e.waitcnt(lgkm=0)
    e.valu("v_add_f32", lbk[0], lbk[0], lbk[1])
    e.valu("v_add_f32", lbk[2], lbk[2], lbk[3])
    e.valu("v_add_f32", lt, lbk[0], lbk[2])
    e.label("L_fspin")
    e.ds_read("ds_read_b32", t1, vZ, S_FIN)
    e.ds_read("ds_read_b128", f4, vZ, S_PK)
    e.waitcnt(lgkm=0)
    e.valu("v_or3_b32", f4[0], f4[0], f4[1], f4[2])
    e.valu("v_readfirstlane_b32", sT, t1)
    e.valu("v_or_b32", f4[0], f4[0], f4[3])
    e.nop(1)
    e.salu("s_cmp_ge_u32", sT, 4)
    e.salu("s_cbranch_scc1", "L_fspun")
    e.valu("v_readfirstlane_b32", sT2, f4[0])
    e.nop(1)
    e.salu("s_cmp_ge_u32", sT2, BAD)
    e.salu("s_cbranch_scc1", "L_agen")
    if opt.get("fsleep", 1):
        e.salu("s_cmp_lg_u32", sT, 0)
        e.salu("s_cbranch_scc1", "L_fspin")
        e.salu("s_sleep", opt.get("fsleep", 1))
    e.salu("s_branch", "L_fspin")
    e.raw("L_fspun:")
    if opt.get("fine"):
        st.cyc(10)
    else:
        st.mark(10)

    def meta():
        return [lambda: e.valu("v_cvt_pk_bf16_f32", lr, 0, lt),
                lambda: e.valu("v_or_b32", G2[0][3], lr, vTg),
                lambda: e.valu("v_or_b32", G2[1][3], lr, vTg)]

    def cv(g_, k, t3, r):
        return lambda: e.valu("v_cvt_pk_bf16_f32", G2[g_][k], D[t3][r], D[t3][r + 1])

    def stg(g_):
        return lambda: e.buf_store("buffer_store_dwordx4", G2[g_], vLn16, sWS, sP, offset=1024 * g_, flags=SFL)
    fin0 = [cv(0, 0, 0, 0), cv(0, 1, 0, 2), cv(0, 2, 1, 0), stg(0), cv(1, 0, 1, 2)]
    fin1 = [cv(1, 1, 2, 0), cv(1, 2, 2, 2), stg(1)]

    for kk in range(6):
        e.ds_read("ds_read_b128", B[kk], vLn16, FIN + 1024 * kk)
    for u in range(4):
        e.ds_read("ds_read_b128", l4[u], vS, FINL + 256 * u)
    e.waitcnt(vm=0)
    fill = [lambda: e.waitcnt(lgkm=0)]
    for u in range(4):
        fill += [lambda u=u: e.valu("v_add_f32", l4[u][0], l4[u][0], l4[u][1]),
                 lambda u=u: e.valu("v_add_f32", l4[u][2], l4[u][2], l4[u][3]),
                 lambda u=u: e.valu("v_add_f32", lt, lt, l4[u][0]),
                 lambda u=u: e.valu("v_add_f32", lt, lt, l4[u][2])]
    fill += meta()
    n = 0
    for kk in range(6):
        if kk < 3:
            e.waitcnt(lgkm=9 - kk)
        for t3 in range(2):
            e.mfma(MF32, D[t3], WVO[kk][t3], B[kk], D[t3])
            n += 1
            if n >= 5:
                for _ in range(2):
                    fill.pop(0)()
    for kk in range(6):
        e.mfma(MF32, D[2], WVO[kk][2], B[kk], D[2])
        if kk == 2:
            fill += list(fin0)
        for _ in range(2):
            if fill:
                fill.pop(0)()
    if opt.get("fine"):
        st.cyc(1)
    for f_ in fill + fin1:
        f_()
    e.label("L_aend", fence=False)
    lds_inc(e, vZ, t1, S_EMP)
    if not opt.get("pdbg"):
        st.mark(4)
    lk.at(5, V(14), V(15))
    if opt.get("fine"):
        st.cyc(11)
    st.dump(sWS, 12, [V(14), V(15)])
    e.salu("s_endpgm")

    e.raw("L_agen:")
    e.waitcnt(vm=0)
    sAlt, sW_, sOff = S(56, 2), S(58), S(59)
    Mx, ref, be, c0, c1, mw = V(9), V(10), V(13), V(14), V(204), V(205)
    vFa, vSa = V(2), V(3)
    lw = l4[0]
    for w in range(4):
        lb_ = newlabel("agw")
        e.label(lb_)
        e.ds_read("ds_read_b32", t1, vZ, S_FR + 4 * w)
        e.waitcnt(lgkm=0)
        e.valu("v_readfirstlane_b32", sT, t1)
        e.nop(1)
        e.salu("s_and_b32", sT, sT, 15)
        e.salu("s_cmp_eq_u32", sT, 6)
        e.salu("s_cbranch_scc0", lb_)
        e.valu("v_add_u32", vSa, RING0 + WST + w * WAVE_RING, vS)
        e.ds_read("ds_read_b32", mw, vSa, 512)
        e.ds_read("ds_read_b32", c1, vN4, HB + 256 + 64 * w)
        e.waitcnt(lgkm=0)
        if w == 0:
            e.valu("v_max_f32", Mx, mw, c1)
        else:
            e.valu("v_max3_f32", Mx, Mx, mw, c1)
    e.valu("v_cmp_nlt_f32_e64", sAlt, "|%s|" % Mx, sHi)
    e.valu("v_cndmask_b32", ref, 0, Mx, sAlt)
    e.valu("v_mov_b32", lt, 0)
    for t3 in range(3):
        for r in range(4):
            e.valu("v_mov_b32", D[t3][r], 0)
    e.salu("s_mov_b32", sW_, 0)
    e.label("L_agen_w")
    e.salu("s_lshr_b32", sT, sW_, 1)
    e.salu("s_mul_i32", sOff, sT, WAVE_RING)
    e.salu("s_add_u32", sOff, sOff, RING0)
    e.valu("v_add_u32", vSa, sOff, vS)
    e.salu("s_lshl_b32", sT, sT, 6)
    e.valu("v_add_u32", c0, sT, vN4)
    e.salu("s_bitcmp1_b32", sW_, 0)
    e.salu("s_cselect_b32", sT, FRAG, BULK)
    e.salu("s_add_u32", sOff, sOff, sT)
    e.valu("v_add_u32", vFa, sOff, vLn16)
    for kk in range(6):
        e.ds_read("ds_read_b128", B[kk], vFa, 1024 * kk)
    e.ds_read("ds_read_b32", mw, vSa, WST + 512)
    e.ds_read("ds_read_b128", lw, vSa, WST)
    e.ds_read("ds_read_b32", c1, c0, HB + 256)
    e.ds_read("ds_read_b32", be, c0, HB)
    e.waitcnt(lgkm=0)
    for kk in range(6):
        for t3 in range(3):
            e.mfma(MF32, Dw2[t3], WVO[kk][t3], B[kk], Dw2[t3] if kk else 0)
    e.valu("v_add_f32", lw[0], lw[0], lw[1])
    e.valu("v_add_f32", lw[2], lw[2], lw[3])
    e.valu("v_add_f32", lw[0], lw[0], lw[2])
    e.salu("s_bitcmp1_b32", sW_, 0)
    e.salu("s_cselect_b64", VCC, -1, 0)
    e.valu("v_cndmask_b32", mw, c1, mw, VCC)
    e.valu("v_cndmask_b32", lw[0], be, lw[0], VCC)
    e.valu("v_sub_f32", c0, mw, ref)
    e.valu("v_exp_f32", be, c0)
    e.valu("v_fmac_f32", lt, be, lw[0], rmw=True)
    for t3 in range(3):
        for r in range(4):
            e.valu("v_fmac_f32", D[t3][r], be, Dw2[t3][r], rmw=True)
    e.salu("s_add_u32", sW_, sW_, 1)
    e.salu("s_cmp_lt_u32", sW_, 8)
    e.fence()
    e.salu("s_cbranch_scc1", "L_agen_w")
    e.valu("v_cndmask_b32", c0, 0, 1, sAlt)
    e.valu("v_or_b32", vTg, vTg, c0)
    e.ds_read("ds_read_b64", lw[2:4], vZ, TAGS)
    e.valu("v_mov_b32", lw[0], ref)
    e.valu("v_lshrrev_b32", c0, 1, vS)
    e.salu("s_lshl_b32", sT2, S(2), 7)
    e.salu("s_add_u32", sT2, sT2, WS_E)
    e.waitcnt(lgkm=0)
    e.valu("v_lshl_or_b32", lw[1], lw[3], 16, lw[2])
    e.salu("s_mov_b64", EXEC, 0xFFFF)
    e.buf_store("buffer_store_dwordx2", lw[0:2], c0, sWS, sT2, flags="sc1")
    e.salu("s_mov_b64", EXEC, -1)
    for f_ in meta() + fin0 + fin1:
        f_()
    e.fence()
    e.salu("s_branch", "L_aend")
    e.raw("L_exit:")
    e.salu("s_endpgm")
    return e


def build(stamps=False, opt=None):
    m = gen_main(stamps, opt)
    return header(0) + m.text() + "L_code_end:\n" + kd(MAIN, 256, 96)


if __name__ == "__main__":
    import argparse
    ap = argparse.ArgumentParser()
    ap.add_argument("-o", default=os.path.join(os.path.dirname(os.path.abspath(__file__)), "..", NAME + ".s"))
    ap.add_argument("--stamps", action="store_true")
    ap.add_argument("--opt", default="")
    a = ap.parse_args()
    opt = {}
    for kv in a.opt.split(","):
        if kv:
            k, _, v = kv.partition("=")
            opt[k] = int(v) if v else 1
    open(a.o, "w").write(build(a.stamps, opt))
```

```python
import sys
import os
sys.path.insert(0, os.path.dirname(os.path.abspath(__file__)))
from emit import Em, R, V, S, Neg, VCC, EXEC, M0

NAME = "standalone__detection_seg_dino__vision"
MAIN = NAME + "_kernel"

TILE = 6144
NSLOT = 6
WAVE_RING = NSLOT * TILE
QK = 0
SYNC = 6912
TAGS = SYNC + 128
STAGE = 7168
RING0 = 13312
LDS_BYTES = RING0 + 4 * WAVE_RING
STEPST = 6144
QL = QK
FRAG = 0
WST = 2 * TILE
CEX = RING0 + 4 * TILE


def wslot(t):
    return 6 * (t // 4) + 2 + t % 4


(S_LANDED, S_CONS, S_QKRDY, S_AUX, S_ISS, S_WL, S_EMPT, S_EMP, S_CNT, S_FRC, S_WVL, S_FR) = [
    SYNC + 4 * k for k in (0, 4, 8, 9, 10, 11, 12, 13, 14, 15, 16, 20)]
ONES = SYNC + 144
THR = 32.0

WS_P = 0x80000
PSZ = 8192
NCB = 128
WS_E = 0x30000
WS_QK = 0
WS_WVO = 0x10000
WS_STAMP = 0x800000
DBG_WVO = 128

NWG = 256
NITER = 4
NQP = 3
NPR = 6
WOB = RING0 + 20 * TILE

QSCALE = (192 ** -0.5) * 1.4426950408889634
MF32, MF16, MFF = "v_mfma_f32_16x16x32_bf16", "v_mfma_f32_16x16x16_bf16", "v_mfma_f32_16x16x4_f32"
NEG1 = "neg_lo:[1,0,0] neg_hi:[1,0,0]"


def header(extra_lds=0):
    launch = f"; @launch grid=({NWG},1,1) block=(512,1,1) lds={LDS_BYTES + extra_lds}"
    return f"""; Kernarg layout for this problem (80 bytes, ptrs only, base s[0:1]):
{launch}
.amdgcn_target "amdgcn-amd-amdhsa--gfx950"
.text
"""


def kd(name, vgpr, sgpr):
    return f""".section .rodata,"a"
.p2align 6
.amdhsa_kernel {name}
  .amdhsa_next_free_vgpr {vgpr}
  .amdhsa_next_free_sgpr {sgpr}
  .amdhsa_accum_offset {(vgpr + 3) // 4 * 4}
  .amdhsa_group_segment_fixed_size 0
  .amdhsa_kernarg_size 80
  .amdhsa_user_sgpr_count 2
  .amdhsa_user_sgpr_kernarg_segment_ptr 1
  .amdhsa_system_sgpr_workgroup_id_x 1
  .amdhsa_float_denorm_mode_32 3
.end_amdhsa_kernel
"""


def srd(e, q, ptr, nbytes):
    e.salu("s_mov_b32", q[0], ptr[0])
    e.salu("s_mov_b32", q[1], ptr[1])
    e.salu("s_mov_b32", q[2], nbytes)
    e.salu("s_mov_b32", q[3], 0x20000)


def xg_reduce(e, op, x, t0, t1):
    for sw in ("v_permlane32_swap_b32", "v_permlane16_swap_b32"):
        e.valu("v_mov_b32", t0, x)
        e.valu("v_mov_b32", t1, x)
        e.valu(sw, t0, t1)
        e.valu(op, x, t0, t1)


def bf16_round(e, x):
    e.valu("v_cvt_pk_bf16_f32", x, x, x)
    e.valu("v_and_b32", x, 0xFFFF0000, x)


def tile_lane_offsets(e, lane, vDc, vDf, t0, t1):
    for i in range(3):
        e.valu("v_add_u32", t0, 64 * i, lane)
        e.valu("v_mul_u32_u24", t0, 0xAAB, t0)
        e.valu("v_lshrrev_b32", t0, 16, t0)
        e.valu("v_and_b32", t1, 6, t0)
        e.valu("v_xor_b32", t1, t1, lane)
        e.valu("v_lshlrev_b32", vDc[i], 4, t1)
        if vDf is not None:
            e.valu("v_mul_u32_u24", t0, 384, t0)
            e.valu("v_add_u32", vDf[i], t0, vDc[i])


def afrag_addrs(e, j, g, base, out, t0, t1):
    e.valu("v_and_b32", t0, 6, j)
    e.valu("v_xor_b32", t0, t0, g)
    e.valu("v_mul_u32_u24", t1, 384, j)
    if base is not None:
        e.valu("v_add_u32", t1, base, t1)
    e.valu("v_lshl_add_u32", out[0], t0, 4, t1)
    e.valu("v_xor_b32", t0, 4, t0)
    e.valu("v_lshl_add_u32", out[1], t0, 4, t1)


class Stamps:
    def __init__(self, e, on):
        self.e, self.on = e, on

    def mark(self, k):
        if self.on:
            self.e.smem(f"s_memrealtime s[{64 + 2 * k}:{65 + 2 * k}]", S(64 + 2 * k, 2))

    def cyc(self, k):
        if self.on:
            self.e.smem(f"s_memtime s[{64 + 2 * k}:{65 + 2 * k}]", S(64 + 2 * k, 2))

    def dump(self, sWS, nst, vt):
        if not self.on:
            return
        e = self.e
        e.waitcnt(lgkm=0)
        e.salu("s_lshl_b32", S(62), S(2), 3)
        e.salu("s_add_u32", S(62), S(62), S(3))
        e.salu("s_lshl_b32", S(62), S(62), 6)
        e.salu("s_add_u32", S(62), S(62), WS_STAMP)
        for k in range(nst):
            e.raw(f"    v_writelane_b32 {vt[0]}, s{64 + 2 * k}, {k}")
        e.valu("v_lshlrev_b32", vt[1], 2, V(0))
        e.salu("s_mov_b64", EXEC, 0xFFFF)
        e.buf_store("buffer_store_dword", vt[0], vt[1], sWS, S(62))
        e.salu("s_mov_b64", EXEC, -1)


class Leak:
    def __init__(self, e, which):
        self.e, self.which = e, which

    def start(self):
        if self.which:
            self.e.smem("s_memrealtime s[92:93]" if self.which != 10 else "s_memtime s[92:93]", S(92, 2))

    def at(self, k, vt0, vt1):
        if self.which == k:
            e = self.e
            e.smem("s_memrealtime s[90:91]", S(90, 2))
            e.waitcnt(lgkm=0)
            e.valu("v_mov_b32", vt0, S(90))
            e.valu("v_mov_b32", vt1, 0)
            e.ds_write("ds_write_b32", vt1, vt0, STEPST)
            e.waitcnt(lgkm=0)

    def spend(self, vt0, vt1):
        if not self.which:
            return
        e = self.e
        e.salu("s_cmp_lg_u32", S(2), 201)
        e.salu("s_cbranch_scc1", "L_leak_end")
        e.valu("v_mov_b32", vt1, 0)
        e.ds_read("ds_read_b32", vt0, vt1, STEPST)
        e.smem("s_memrealtime s[88:89]", S(88, 2))
        e.waitcnt(lgkm=0)
        e.valu("v_readfirstlane_b32", S(90), vt0)
        e.nop(3)
        if self.which == 10:
            e.smem("s_memtime s[90:91]", S(90, 2))
            e.waitcnt(lgkm=0)
        e.salu("s_sub_u32", S(90), S(90), S(92))
        e.salu("s_lshl_b32" if self.which != 10 else "s_lshr_b32", S(90), S(90), 3 if self.which != 10 else 2)
        e.salu("s_min_u32", S(90), S(90), 40000)
        e.label("L_leak")
        e.smem("s_memrealtime s[86:87]", S(86, 2))
        e.waitcnt(lgkm=0)
        e.salu("s_sub_u32", S(91), S(86), S(88))
        e.salu("s_cmp_lt_u32", S(91), S(90))
        e.salu("s_cbranch_scc1", "L_leak")
        e.raw("L_leak_end:")


class LQ:
    def __init__(self, e):
        self.e, self.q = e, []

    def add(self, tag=None):
        self.q.append(tag)

    def wait(self, tag):
        idx = max(i for i, t in enumerate(self.q) if t == tag)
        n = len(self.q) - 1 - idx
        self.e.waitcnt(lgkm=min(n, 15))
        self.q = self.q[idx + 1:]

    def drain(self):
        self.e.waitcnt(lgkm=0)
        self.q = []


LBL = [0]


def newlabel(p):
    LBL[0] += 1
    return f"L_{p}{LBL[0]}"


def lds_spin(e, vaddr, off, vt, sdst, need, sleep=1):
    top, done = newlabel("spin"), newlabel("spun")
    e.label(top)
    e.ds_read("ds_read_b32", vt, vaddr, off)
    e.waitcnt(lgkm=0)
    e.valu("v_readfirstlane_b32", sdst, vt)
    e.nop(1)
    e.salu("s_cmp_ge_u32", sdst, need)
    if sleep:
        e.salu("s_cbranch_scc1", done)
        e.salu("s_sleep", sleep)
        e.salu("s_branch", top)
        e.raw(f"{done}:")
    else:
        e.salu("s_cbranch_scc0", top)


def lds_inc(e, vz, vt, off):
    e.valu("v_mov_b32", vt, 1)
    e.salu("s_mov_b64", EXEC, 1)
    e.mem(f"ds_add_u32 {vz}, {vt} offset:{off}", reads=[vz, vt])
    e.salu("s_mov_b64", EXEC, -1)


def gen_main(stamps=False, opt=None):
    opt = opt or {}
    e = Em()
    st = Stamps(e, stamps)
    lk = Leak(e, opt.get("leak", 0))
    e.raw(f".globl {MAIN}")
    e.raw(".p2align 8")
    e.raw(f".type {MAIN},@function")
    e.raw(f"{MAIN}:")
    sWave = S(3)
    lane = V(0)
    e.salu("s_cmp_ge_u32", S(2), NWG)
    e.salu("s_cbranch_scc1", "L_exit")
    st.mark(0)
    lk.start()
    e.smem("s_load_dwordx16 s[4:19], s[0:1], 0", S(4, 16))
    e.smem("s_load_dwordx4 s[20:23], s[0:1], 64", S(20, 4))
    pQ, pF0, pF1, pWq, pWk, pWv, pWo = [S(4 + 2 * k, 2) for k in range(7)]
    pDbg, pWS = S(20, 2), S(22, 2)
    e.valu("v_lshrrev_b32", V(1), 6, V(0))
    e.valu("v_and_b32", V(0), 63, V(0))
    e.valu("v_readfirstlane_b32", sWave, V(1))
    e.nop(3)
    e.salu("s_cmp_lt_u32", sWave, 4)
    e.salu("s_cbranch_scc1", "L_compute")
    e.salu("s_cmp_gt_u32", sWave, 4)
    e.salu("s_cbranch_scc1", "L_aux0")

    vDc = [V(1), V(2), V(3)]
    vDf = [V(4), V(5), V(6)]
    vD = [V(7), V(8), V(9)]
    vZ, vt, vt2 = V(10), V(11), V(12)
    vLane4 = V(13)
    sSrc = S(24, 4)
    sWS = S(32, 4)
    sStep, sK, sH, sO1, sO0, sBase, sWst, sHalf, sLk = [S(36 + k) for k in range(9)]
    sT, sT2, sVal, sNeed = S(45), S(46), S(47), S(48)
    sCons = [S(50 + k) for k in range(4)]
    sRet = S(54, 2)
    sW = S(56)
    sSlot = S(57)
    e.salu("s_setprio", 3)
    for i in range(3):
        e.valu("v_add_u32", vDf[i], 64 * i, lane)
        e.valu("v_mul_u32_u24", vDf[i], 0xAAB, vDf[i])
        e.valu("v_lshrrev_b32", vDf[i], 16, vDf[i])
        e.valu("v_and_b32", vt, 6, vDf[i])
        e.valu("v_xor_b32", vt, vt, lane)
        e.valu("v_lshlrev_b32", vDc[i], 4, vt)
    e.salu("s_and_b32", sH, S(2), 7)
    e.salu("s_lshl_b32", sH, sH, 5)
    e.salu("s_lshr_b32", sT, S(2), 3)
    e.salu("s_or_b32", sH, sH, sT)
    e.salu("s_lshl_b32", sH, sH, 2)
    e.salu("s_mov_b32", sSrc[3], 0x20000)
    e.salu("s_mov_b32", sSrc[2], 25165824)
    e.salu("s_mul_i32", sO1, sH, 6144)
    e.salu("s_mov_b32", sLk, RING0)
    e.salu("s_cmp_lt_u32", S(2), NPR)
    e.salu("s_cbranch_scc1", "L_ld_prod")
    e.waitcnt(lgkm=0)
    st.mark(1)
    e.salu("s_mov_b32", sSrc[0], pF1[0])
    e.salu("s_mov_b32", sSrc[1], pF1[1])
    e.raw("L_ld_first:")
    for h in range(2):
        e.salu("s_mov_b32" if h == 0 else "s_add_u32", M0, *([sLk] if h == 0 else [sLk, 3072]))
        e.salu("s_add_u32", sLk if h else sT2, sLk if h else sO1, WAVE_RING if h else 3072)
        for i in range(3):
            e.buf_load_lds(vDc[i], sSrc, sT2 if h else sO1, offset=1024 * i, flags="nt")
    e.salu("s_add_u32", sO1, sO1, 6144)
    e.salu("s_cmp_lt_u32", sLk, RING0 + 4 * WAVE_RING)
    e.salu("s_cbranch_scc1", "L_ld_first")
    st.mark(5)
    e.salu("s_branch", "L_ld_norm")

    e.raw("L_aux0:")
    aC, aW1, aW2 = S(24, 4), S(28, 4), S(40, 4)
    e.salu("s_getpc_b64", aC[0:2])
    e.raw("L_aux_pc:")
    e.raw(f"    s_sub_u32 {aC[0]}, {aC[0]}, L_aux_pc-{MAIN}")
    e.raw(f"    s_subb_u32 {aC[1]}, {aC[1]}, 0")
    e.raw(f"    s_mov_b32 {aC[2]}, L_code_end-{MAIN}")
    e.salu("s_mov_b32", aC[3], 0x20000)
    e.salu("s_lshr_b32", S(39), S(2), 3)
    e.salu("s_mul_i32", S(38), S(39), 3)
    e.salu("s_add_u32", S(38), S(38), sWave)
    e.salu("s_mul_i32", S(38), S(38), 320)
    e.salu("s_sub_u32", S(38), S(38), 5 * 320)
    e.valu("v_lshlrev_b32", V(14), 6, lane)
    e.salu("s_mov_b64", EXEC, 0x1F)
    e.buf_load("buffer_load_dword", V(253), V(14), aC, S(38))
    e.salu("s_mov_b64", EXEC, -1)
    e.salu("s_and_b32", S(38), S(2), 7)
    e.salu("s_mul_i32", S(37), sWave, 3)
    e.salu("s_add_u32", S(38), S(38), 18)
    e.salu("s_sub_u32", S(38), S(38), S(37))
    e.salu("s_cmp_ge_u32", S(38), 3)
    e.salu("s_cbranch_scc1", "L_aux")
    e.salu("s_mul_i32", S(37), S(39), 2304)
    e.valu("v_mul_u32_u24", V(13), 36, lane)
    e.salu("s_mov_b32", aW1[2], 73728)
    e.salu("s_mov_b32", aW2[2], 73728)
    e.salu("s_mov_b32", aW1[3], aC[3])
    e.salu("s_mov_b32", aW2[3], aC[3])
    e.salu("s_cmp_eq_u32", sWave, 6)
    e.waitcnt(lgkm=0)
    e.salu("s_cselect_b64", aW1[0:2], pWq, pWo)
    e.salu("s_cselect_b64", aW2[0:2], pWk, pWv)
    e.buf_load("buffer_load_dword", V(254), V(13), aW1, S(37))
    e.buf_load("buffer_load_dword", V(255), V(13), aW2, S(37))
    e.salu("s_branch", "L_aux")

    def publish(off, val):
        e.valu("v_mov_b32", vt, val)
        e.salu("s_mov_b64", EXEC, 1)
        e.mem(f"ds_max_u32 {vZ}, {vt} offset:{off}", reads=[vZ, vt])
        e.salu("s_mov_b64", EXEC, -1)

    def init(first):
        for i in range(3):
            e.valu("v_mul_u32_u24", vDf[i], 384, vDf[i])
            e.valu("v_add_u32", vDf[i], vDf[i], vDc[i])
        e.valu("v_mov_b32", vZ, 0)
        e.valu("v_lshlrev_b32", vLane4, 2, lane)
        e.salu("s_mov_b64", EXEC, 0xFFFFFFFF)
        e.ds_write("ds_write_b32", vLane4, vZ, SYNC)
        e.valu("v_mov_b32", vt, 0x3F803F80)
        e.salu("s_mov_b64", EXEC, 3)
        e.ds_write("ds_write_b32", vLane4, vt, ONES)
        e.salu("s_mov_b64", EXEC, -1)
        for k in range(4):
            e.salu("s_mov_b32", sCons[k], 0)
        if stamps:
            e.salu("s_mov_b32", S(76), 0)
            e.salu("s_mov_b32", S(78), 0)
        for r_ in (sStep, sK, sSlot):
            e.salu("s_mov_b32", r_, first)
        if first:
            e.salu("s_lshr_b32", sT, sH, 4)
            e.salu("s_mul_i32", sO0, sT, 393216)
            e.salu("s_and_b32", sT, sH, 15)
            e.salu("s_mul_i32", sT, sT, 12288)
            e.salu("s_add_u32", sO0, sO0, sT)
            e.salu("s_add_u32", sH, sH, 1024)
        e.waitcnt(lgkm=0)
        e.barrier()

    sCnt = sNeed
    e.raw("L_ld_prod:")
    e.salu("s_mov_b32", sO1, 0)
    e.salu("s_cmp_lt_u32", S(2), NQP)
    e.salu("s_cbranch_scc0", "L_ld_wo0")
    e.salu("s_mov_b32", sSrc[2], 6144)
    e.salu("s_mov_b32", sLk, STAGE)
    e.salu("s_mov_b32", sCnt, 1)
    e.waitcnt(lgkm=0)
    st.mark(4)
    e.salu("s_mov_b64", sSrc[0:2], pQ)
    e.salu("s_call_b64", sRet, "L_ld_tiles")
    e.salu("s_branch", "L_ld_wq")
    e.raw("L_ld_tiles:")
    for h in range(2):
        e.salu("s_mov_b32" if h == 0 else "s_add_u32", M0, *([sLk] if h == 0 else [sLk, 3072]))
        e.salu("s_add_u32", sLk if h else sT2, sLk if h else sO1, TILE if h else 3072)
        for i in range(3):
            e.buf_load_lds(vDc[i], sSrc, sT2 if h else sO1, offset=1024 * i)
    e.salu("s_add_u32", sO1, sO1, TILE)
    e.salu("s_sub_u32", sCnt, sCnt, 1)
    e.salu("s_and_b32", sT, sCnt, 3)
    e.salu("s_cselect_b32", sT, 0, 2 * TILE)
    e.salu("s_add_u32", sLk, sLk, sT)
    e.salu("s_cmp_lg_u32", sCnt, 0)
    e.salu("s_cbranch_scc1", "L_ld_tiles")
    e.salu("s_setpc_b64", sRet)
    e.raw("L_ld_wq:")
    if opt.get("pdbg"):
        st.mark(6)
    e.salu("s_mov_b64", sSrc[0:2], pWq)
    e.salu("s_mov_b32", sSrc[2], 73728)
    e.raw("L_ld_w12:")
    e.salu("s_mov_b32", sO1, 0)
    e.salu("s_mov_b32", sLk, RING0 + wslot(0) * TILE)
    e.salu("s_mov_b32", sCnt, 4)
    e.salu("s_call_b64", sRet, "L_ld_tiles")
    if opt.get("pdbg"):
        st.mark(7)
    init(0)
    if opt.get("pdbg"):
        st.mark(9)
    e.waitcnt(vm=24)
    publish(S_WL, 1)
    st.mark(5)
    e.salu("s_mov_b32", sCnt, 8)
    e.salu("s_call_b64", sRet, "L_ld_tiles")
    if opt.get("pdbg"):
        st.mark(11)
    e.salu("s_cmp_ge_u32", S(2), NQP)
    e.salu("s_cbranch_scc1", "L_ld_w3")
    e.salu("s_mov_b64", sSrc[0:2], pWk)
    e.salu("s_mul_i32", sO1, S(2), 4 * TILE)
    e.salu("s_mov_b32", sCnt, 4)
    e.salu("s_call_b64", sRet, "L_ld_tiles")
    e.raw("L_ld_w3:")
    e.waitcnt(vm=24)
    publish(S_WL, 2)
    st.mark(1)
    e.salu("s_branch", "L_ld_stepp")
    e.raw("L_ld_wo0:")
    e.salu("s_mov_b32", sSrc[2], 73728)
    e.valu("v_lshrrev_b32", vt, 3, lane)
    e.valu("v_mul_u32_u24", vt, 384, vt)
    e.valu("v_and_b32", vt2, 7, lane)
    e.valu("v_lshl_add_u32", vt, vt2, 4, vt)
    e.salu("s_sub_u32", sT2, S(2), NQP)
    e.salu("s_lshl_b32", sT2, sT2, 7)
    e.salu("s_mov_b32", sT, WOB)
    e.waitcnt(lgkm=0)
    st.mark(4)
    e.salu("s_mov_b64", sSrc[0:2], pWo)
    e.label("L_ld_wo")
    e.salu("s_mov_b32", M0, sT)
    e.salu("s_add_u32", sT, sT, 1024)
    e.buf_load_lds(vt, sSrc, sT2)
    e.salu("s_add_u32", sT2, sT2, 3072)
    e.salu("s_cmp_lt_u32", sT, WOB + 24576)
    e.salu("s_cbranch_scc1", "L_ld_wo")
    e.salu("s_mov_b64", sSrc[0:2], pWv)
    e.salu("s_branch", "L_ld_w12")
    e.raw("L_ld_norm:")
    init(1)
    lk.at(1, vt, vt2)

    PD = opt.get("pd", 6)
    FLG = {0: "", 1: "sc1", 2: "sc0 sc1", 3: "sc1 nt", 4: "sc0 sc1 nt", 5: "nt"}
    LFL, PFL, SFL = FLG[opt.get("lfl", 1)], FLG[opt.get("pfl", 1)], FLG[opt.get("sfl", 1)]
    WFL = {0: "", 1: "sc1", 2: "sc0", 3: "nt"}[opt.get("wfl", 1)]
    WVO = [[V(112 + 12 * kk + 4 * t3, 4) for t3 in range(3)] for kk in range(6)]

    def stream(D, tag):
        e.label(f"L_ld_step{tag}")
        e.salu("s_cmp_lg_u32", sK, 0)
        e.salu("s_cbranch_scc1", f"L_ld_fine{tag}")
        e.salu("s_mul_i32", sO1, sH, 6144)
        e.salu("s_lshr_b32", sT, sH, 4)
        e.salu("s_mul_i32", sO0, sT, 393216)
        e.salu("s_and_b32", sT, sH, 15)
        e.salu("s_mul_i32", sT, sT, 12288)
        e.salu("s_add_u32", sO0, sO0, sT)
        e.salu("s_add_u32", sH, sH, 1024)
        e.salu("s_mov_b32", sSrc[0], pF1[0])
        e.salu("s_mov_b32", sSrc[1], pF1[1])
        e.salu("s_mov_b32", sSrc[2], 25165824)
        e.salu("s_mov_b32", sBase, sO1)
        e.salu("s_mov_b32", sWst, 6144)
        e.salu("s_mov_b32", sHalf, 3072)
        for i in range(3):
            e.valu("v_mov_b32", vD[i], vDc[i])
        e.salu("s_branch", f"L_ld_issue{tag}")
        e.raw(f"L_ld_fine{tag}:")
        e.salu("s_mov_b32", sSrc[0], pF0[0])
        e.salu("s_mov_b32", sSrc[1], pF0[1])
        e.salu("s_mov_b32", sSrc[2], 100663296)
        e.salu("s_sub_u32", sT, sK, 1)
        e.salu("s_lshr_b32", sT2, sT, 1)
        e.salu("s_mul_i32", sT2, sT2, 196608)
        e.salu("s_and_b32", sT, sT, 1)
        e.salu("s_mul_i32", sT, sT, 384)
        e.salu("s_add_u32", sBase, sO0, sT2)
        e.salu("s_add_u32", sBase, sBase, sT)
        e.salu("s_mov_b32", sWst, 12288)
        e.salu("s_mov_b32", sHalf, 6144)
        for i in range(3):
            e.valu("v_mov_b32", vD[i], vDf[i])
        e.raw(f"L_ld_issue{tag}:")
        e.salu("s_mul_i32", sLk, sSlot, TILE)
        e.salu("s_add_u32", sLk, sLk, RING0)
        e.salu("s_sub_i32", sNeed, sStep, NSLOT - 1)
        for w in range(4):
            ok = newlabel("free")
            e.salu("s_cmp_ge_i32", sCons[w], sNeed)
            e.salu("s_cbranch_scc1", ok)
            e.begin_cond()
            e.salu("s_mov_b32", sW, w)
            e.salu("s_call_b64", sRet, "L_ld_wait")
            e.salu("s_mov_b32", sCons[w], sT)
            e.end_cond()
            e.raw(f"{ok}:")
            for h in range(2):
                e.salu("s_add_u32", M0, sLk, w * WAVE_RING + 3072 * h)
                if h == 0:
                    e.salu("s_mov_b32", sT2, sBase)
                else:
                    e.salu("s_add_u32", sT2, sBase, sHalf)
                for i in range(3):
                    e.buf_load_lds(vD[i], sSrc, sT2, offset=1024 * i, flags="nt")
            e.salu("s_add_u32", sBase, sBase, sWst)
            e.salu("s_add_i32", sVal, sStep, ((w - D) >> 2) + 1)
            e.salu("s_max_i32", sVal, sVal, 0)
            e.waitcnt(vm=6 * D)
            publish(S_LANDED + 4 * ((w - D) & 3), sVal)
            if tag == "p" and w == opt.get("w3at", 1):
                lb_ = newlabel("w3")
                e.salu("s_cmp_lg_u32", sStep, 0)
                e.salu("s_cbranch_scc1", lb_)
                e.waitcnt(vm=6 * (w + 1))
                publish(S_WL, 3)
                e.raw(f"{lb_}:")
        e.salu("s_add_u32", sK, sK, 1)
        e.salu("s_cmp_eq_u32", sK, 5)
        e.salu("s_cselect_b32", sK, 0, sK)
        e.salu("s_add_u32", sSlot, sSlot, 1)
        e.salu("s_cmp_eq_u32", sSlot, NSLOT)
        e.salu("s_cselect_b32", sSlot, 0, sSlot)
        if tag == "p":
            e.salu("s_cmp_lg_u32", sStep, 1)
            e.salu("s_cbranch_scc1", "L_ld_noiss")
            e.begin_cond()
            lds_spin(e, vZ, S_ISS, vt, sT, 4)
            e.end_cond()
            e.raw("L_ld_noiss:")
        if stamps and opt.get("stepst", 0):
            e.smem("s_memrealtime s[90:91]", S(90, 2))
            e.salu("s_lshl_b32", sT, sStep, 2)
            e.salu("s_add_u32", sT, sT, STEPST)
            e.valu("v_mov_b32", vt2, sT)
            e.waitcnt(lgkm=0)
            e.valu("v_mov_b32", vt, S(90))
            e.ds_write("ds_write_b32", vt2, vt, 0)
        e.salu("s_add_u32", sStep, sStep, 1)
        e.salu("s_cmp_lt_u32", sStep, 5 * NITER)
        e.fence()
        e.salu("s_cbranch_scc1", f"L_ld_step{tag}")
        st.mark(2)
        srd(e, sWS, pWS, 0x1000000)
        e.valu("v_lshlrev_b32", vt2, 4, lane)
        lds_spin(e, vZ, S_WVL, vt, sT, 1)
        NL = 0 if opt.get("nolf") else 18
        for t3 in range(3):
            for kk in range(6):
                if NL:
                    e.salu("s_mov_b32", sT2, WS_WVO + ((9 + t3) * 6 + kk) * 1024)
                    e.buf_load("buffer_load_dwordx4", WVO[kk][t3], vt2, sWS, sT2, flags=WFL)
        e.valu("v_mov_b32", vt, 5 * NITER)
        e.valu("v_mov_b32", V(16), 5 * NITER - 1)
        e.salu("s_mov_b64", EXEC, 1)
        for i in range(80 - D, 80):
            e.waitcnt(vm=6 * (79 - i) + NL)
            e.ds_write("ds_write_b32", vZ, vt if i >= 76 else V(16), S_LANDED + 4 * (i & 3))
        e.salu("s_mov_b64", EXEC, -1)
        st.mark(3)
        lk.at(3, V(14), V(15))
        if stamps:
            e.salu("s_getreg_b32", S(80), "hwreg(HW_REG_XCC_ID)")
            if opt.get("stepst", 0):
                e.valu("v_add_u32", V(14), STEPST, vLane4)
                e.ds_read("ds_read_b32", vt, V(14), 0)
                e.salu("s_lshl_b32", sT, S(2), 8)
                e.salu("s_add_u32", sT, sT, WS_STAMP + 0x40000)
                e.waitcnt(lgkm=0)
                e.buf_store("buffer_store_dword", vt, vLane4, sWS, sT)
        e.salu("s_setprio", 0)
        e.salu("s_mov_b32", S(36), 3)
        e.valu("v_mov_b32", V(11), 0)
        e.valu("v_and_b32", V(1), 15, lane)
        e.fence()
        e.salu("s_branch", "L_tail")

    stream(opt.get("depth", 4), "")

    stream(PD, "p")

    e.raw("L_ld_wait:")
    e.salu("s_lshl_b32", sT, sW, 2)
    e.valu("v_mov_b32", vt2, sT)
    e.ds_read("ds_read_b32", vt, vt2, S_CONS)
    e.waitcnt(lgkm=0)
    e.valu("v_readfirstlane_b32", sT, vt)
    e.nop(1)
    e.salu("s_cmp_ge_i32", sT, sNeed)
    e.salu("s_cbranch_scc1", "L_ld_wait_ret")
    if stamps:
        e.salu("s_add_u32", S(76), S(76), 1)
        e.salu("s_mov_b32", S(78), sStep)
    lds_spin(e, vt2, S_CONS, vt, sT, sNeed)
    e.raw("L_ld_wait_ret:")
    e.fence()
    e.salu("s_setpc_b64", sRet)

    e.w.clear(); e.cread.clear(); e.stread.clear()
    e.raw("L_compute:")
    vSy = V(1)
    vPc = V(2)
    vPoll = V(3)
    Gx = V(4, 4)
    vA = [V(8), V(9)]
    vT = [V(10 + k) for k in range(4)]
    vL2 = V(14, 2)
    vCs2 = V(16, 2)
    vNm2 = V(18, 2)
    vOne = V(20)
    tC = V(21)
    tA, tB = V(22), V(23)
    vOnes = V(24, 4)
    Qk = [V(28 + 4 * k, 4) for k in range(6)]
    acc = [V(52 + 4 * k, 4) for k in range(12)]
    A1 = [V(100 + 4 * k, 4) for k in range(6)]
    A0 = [V(124 + 4 * k, 4) for k in range(6)]
    T0 = [V(148 + 6 * k, 4) for k in range(12)]
    T1 = [V(152 + 6 * k, 2) for k in range(12)]
    TH = [V(150 + 6 * k, 4) for k in range(12)]
    Sc, Uc = V(220, 4), V(224, 4)
    Sx, Ux, SSx = V(228, 4), V(232, 4), V(236, 4)
    pc = V(240, 4)
    Pf = V(244, 4)
    pp = V(248, 4)
    mu2 = V(252, 2)
    vM = V(254)
    ss1 = V(255)
    X = Gx
    sWS = S(32, 4)
    sLds = S(36)
    sT, sT2 = S(40), S(42)
    sIt = S(41)
    sInv2, sEps2 = S(44, 2), S(46, 2)
    sInv, sEps = sInv2[0], sEps2[0]
    sRet = S(48, 2)
    sThr = S(50)
    sPc, sLand = S(51), S(52)
    sSl, sDl, sTile = S(54), S(55), S(56)
    sM1, sM2, sMd = S(58, 2), S(60, 2), S(38, 2)
    tmp = [V(228 + k) for k in range(12)]
    lq = LQ(e)
    EARLY = opt.get("early", 2)
    GRAM = opt.get("gram", 2)
    sEa = S(57)

    e.salu("s_mul_i32", sLds, sWave, WAVE_RING)
    e.salu("s_add_u32", sLds, sLds, RING0)
    if opt.get("cprio", 1):
        e.salu("s_setprio", opt.get("cprio", 1))
    e.barrier()
    j, g = tmp[0], tmp[1]
    e.valu("v_and_b32", j, 15, lane)
    e.valu("v_lshrrev_b32", g, 4, lane)
    afrag_addrs(e, j, g, sLds, vA, tmp[2], tmp[3])
    rp, c4, p_ = tmp[2], tmp[3], tmp[4]
    e.valu("v_lshrrev_b32", rp, 2, j)
    e.valu("v_and_b32", c4, 3, j)
    e.valu("v_lshl_add_u32", p_, g, 2, rp)
    e.valu("v_mul_u32_u24", tmp[5], 384, p_)
    e.valu("v_lshl_add_u32", tmp[5], c4, 3, tmp[5])
    e.valu("v_add_u32", tmp[5], sLds, tmp[5])
    e.valu("v_and_b32", tmp[6], 6, p_)
    for q in range(4):
        e.valu("v_xor_b32", tmp[7], 2 * q, tmp[6])
        e.valu("v_lshl_add_u32", vT[q], tmp[7], 4, tmp[5])
    vQa = [Pf[0], Pf[1]]
    e.valu("v_subrev_u32", vQa[0], sLds, vA[0])
    e.valu("v_subrev_u32", vQa[1], sLds, vA[1])
    for k in range(4):
        e.valu("v_mov_b32", vOnes[k], 0x3F803F80)
        e.valu("v_mov_b32", pc[k], 0)
        e.valu("v_mov_b32", pp[k], 0)
    e.valu("v_mov_b32", vOne, 1.0)
    for k in range(2):
        e.salu("s_mov_b32", sInv2[k], 1.0 / 192.0)
        e.salu("s_mov_b32", sEps2[k], 1.0e-5)
        e.salu("s_mov_b32", sM1[k], 0xAAAAAAAA)
        e.salu("s_mov_b32", sM2[k], 0xCCCCCCCC)
    e.salu("s_mov_b32", sMd[0], 0x00F0000F)
    e.salu("s_mov_b32", sMd[1], 0xF0000F00)
    e.salu("s_mov_b32", sThr, THR)
    e.salu("s_mov_b32", sIt, 0)
    e.salu("s_mov_b32", sPc, 0)
    e.salu("s_mov_b32", sLand, 0)
    e.salu("s_mov_b32", sSl, 0)
    e.salu("s_mov_b32", sTile, TILE)
    e.salu("s_lshl_b32", sT, sWave, 2)
    e.valu("v_mov_b32", vSy, sT)
    e.waitcnt(lgkm=0)
    srd(e, sWS, pWS, 0x1000000)
    e.salu("s_cmp_lt_u32", S(2), NQP)
    e.salu("s_cbranch_scc1", "L_qkprod")
    e.salu("s_cmp_lt_u32", S(2), NPR)
    e.salu("s_cbranch_scc1", "L_wvprod")
    e.label("L_c_start")

    def wait_piece(sleep=1):
        e.salu("s_add_u32", sPc, sPc, 1)
        have = newlabel("have")
        e.salu("s_cmp_ge_u32", sLand, sPc)
        e.salu("s_cbranch_scc1", have)
        e.begin_cond()
        lds_spin(e, vSy, S_LANDED, vPoll, sLand, sPc, sleep=sleep)
        e.end_cond()
        e.raw(f"{have}:")

    def rot_ops():
        def sc():
            e.salu("s_add_u32", sSl, sSl, 1)
            e.salu("s_cmp_eq_u32", sSl, NSLOT)
            e.salu("s_cselect_b32", sDl, -(NSLOT - 1) * TILE, sTile)
            e.salu("s_cselect_b32", sSl, 0, sSl)
        return (sc, [lambda a_=a_: e.valu("v_add_u32", a_, sDl, a_) for a_ in vA] + [lambda: e.valu("v_mov_b32", vPc, sPc)],
                [lambda a_=a_: e.valu("v_add_u32", a_, sDl, a_) for a_ in vT])

    def poll_ahead():
        if EARLY:
            e.ds_read("ds_read_b32", vPoll, vSy, S_LANDED)
            lq.add("p")

    def release(done=False):
        if not done:
            poll_ahead()
            sc, fa, ft = rot_ops()
            sc()
            for f_ in fa + ft:
                f_()
        lq.drain()
        e.ds_write("ds_write_b32", vSy, vPc, S_CONS)
        lq.add()

    def early(AF, again=False):
        if not EARLY:
            return
        lb_ = newlabel("early")
        e.valu("v_readfirstlane_b32", sLand, vPoll)
        e.salu("s_mov_b32", sEa, 0)
        e.nop(1)
        e.salu("s_cmp_gt_u32", sLand, sPc)
        e.salu("s_cbranch_scc0", lb_)
        e.begin_cond()
        e.salu("s_mov_b32", sEa, 1)
        a_reads(AF)
        e.end_cond()
        e.raw(f"{lb_}:")
        lq.q = []
        if again:
            e.ds_read("ds_read_b32", vPoll, vSy, S_LANDED)

    def early2(AF):
        lb_ = newlabel("early")
        e.waitcnt(lgkm=0)
        e.valu("v_readfirstlane_b32", sLand, vPoll)
        e.salu("s_cmp_lg_u32", sEa, 0)
        e.salu("s_cbranch_scc1", lb_)
        e.salu("s_cmp_gt_u32", sLand, sPc)
        e.salu("s_cbranch_scc0", lb_)
        e.begin_cond()
        e.salu("s_mov_b32", sEa, 1)
        a_reads(AF)
        e.end_cond()
        e.raw(f"{lb_}:")
        lq.q = []

    def begin_piece(AF, sleep=1):
        if not EARLY:
            wait_piece(sleep)
            a_reads(AF)
            return
        lb_ = newlabel("begun")
        e.salu("s_add_u32", sPc, sPc, 1)
        e.salu("s_cmp_lg_u32", sEa, 0)
        e.salu("s_cbranch_scc1", lb_)
        e.begin_cond()
        lds_spin(e, vSy, S_LANDED, vPoll, sLand, sPc, sleep=sleep)
        a_reads(AF)
        e.end_cond()
        e.raw(f"{lb_}:")

    def a_reads(AF):
        for kk in range(6):
            e.ds_read("ds_read_b128", AF[kk], vA[kk & 1], (kk >> 1) * 128)
            lq.add(("a", kk))

    def tr_read(dst, cb):
        e.ds_read("ds_read_b64_tr_b16", dst, vT[cb & 3], (cb >> 2) * 128)
        lq.add(("t", cb))

    def ones_read(dst):
        e.ds_read("ds_read_b64", dst, tC, ONES)
        lq.add()

    def diag(G, out):
        e.valu("v_cndmask_b32", tA, G[0], G[1], sM1)
        e.valu("v_cndmask_b32", tB, G[2], G[3], sM1)
        e.valu("v_cndmask_b32", out, tA, tB, sM2)

    def sumsq_ops(SS):
        return [lambda: e.valu("v_cndmask_b32", tA, SS[0], SS[1], sM1),
                lambda: e.valu("v_cndmask_b32", tB, SS[2], SS[3], sM1),
                lambda: e.valu("v_cndmask_b32", Gx[0], Gx[0], Gx[1], sM1),
                lambda: e.valu("v_cndmask_b32", Gx[2], Gx[2], Gx[3], sM1),
                lambda: e.valu("v_cndmask_b32", tA, tA, tB, sM2),
                lambda: e.valu("v_cndmask_b32", Gx[0], Gx[0], Gx[2], sM2),
                ] + ([lambda: e.valu("v_add_f32", tA, tA, ss1),
                      lambda: e.valu("v_fma_f32", tA, Gx[0], 2.0, tA),
                      lambda: e.valu("v_cndmask_b32", tA, 0, tA, sMd)] if GRAM == 1 else
                     [lambda: e.valu("v_fma_f32", tA, Gx[0], 2.0, tA),
                      lambda: e.valu("v_cndmask_b32", tA, 0, tA, sMd),
                      lambda: e.valu("v_add_f32", tA, tA, ss1)])

    def stats_ops(U_, SS_, packed=True):
        fl = []
        if packed:
            for h in range(2):
                sl = slice(2 * h, 2 * h + 2)
                fl.append(lambda sl=sl: e.valu("v_pk_mul_f32", U_[sl], U_[sl], sInv2))
            for h in range(2):
                sl = slice(2 * h, 2 * h + 2)
                fl.append(lambda sl=sl: e.valu("v_pk_fma_f32", Gx[sl], U_[sl], U_[sl], sEps2, mods=NEG1))
            for h in range(2):
                sl = slice(2 * h, 2 * h + 2)
                fl.append(lambda sl=sl: e.valu("v_pk_fma_f32", SS_[sl], SS_[sl], sInv2, Gx[sl]))
        else:
            for r in range(4):
                fl.append(lambda r=r: e.valu("v_mul_f32", U_[r], sInv, U_[r]))
            for r in range(4):
                fl.append(lambda r=r: e.valu("v_fma_f32", Gx[r], Neg(U_[r]), U_[r], sEps))
            for h in range(2):
                sl = slice(2 * h, 2 * h + 2)
                fl.append(lambda sl=sl: e.valu("v_pk_fma_f32", SS_[sl], SS_[sl], sInv2, Gx[sl]))
        for r in range(4):
            fl.append(lambda r=r: e.valu("v_max_f32", SS_[r], sEps, SS_[r]))
        for r in range(4):
            fl.append(lambda r=r: e.valu("v_rsq_f32", SS_[r], SS_[r]))
        return fl

    def coarse_phase(first):
        if first:
            wait_piece()
            a_reads(A1)
        else:
            begin_piece(A1)
        if first:
            for cb in range(6):
                tr_read(T1[cb], cb)
        else:
            for cb in range(12):
                e.mfma(MF32, acc[cb], TH[cb], Pf, acc[cb])
                tr_read(T1[cb], cb)
        for kk in range(6):
            if first or kk == 0:
                lq.wait(("a", kk if first else 5))
            if GRAM == 1:
                e.mfma(MF32, SSx, A1[kk], A1[kk], SSx if kk else 0)
            e.mfma(MF32, Uc, A1[kk], vOnes, Uc if kk else 0)
            if first:
                tr_read(T1[6 + kk], 6 + kk)
        if not first:
            sc, fa, ft = rot_ops()
            sc()
            fl = fa + ft
            for kk in range(6):
                e.mfma(MF32, Sc, A1[kk], Qk[kk], Sc if kk else 0)
                for _ in range(2):
                    if fl:
                        fl.pop(0)()
                if kk == 3:
                    poll_ahead()
        release(done=not first)
        if not first:
            early(A0)
        if GRAM == 1:
            diag(SSx, ss1)
        else:
            for n in range(24):
                r = A1[n >> 2][n & 3]
                d = tA if n & 1 == 0 else tB
                e.valu("v_dot2_f32_bf16", d, r, r, d if n >= 2 else 0)
            e.valu("v_add_f32", ss1, tA, tB)

    def tile_dots(AF, U, SS, first, trs, waits, rel=True, nxt=None):
        trs = list(trs)
        hide = rel and not first
        if hide:
            sc, fa, ft = rot_ops()
        for kk in range(6):
            if waits:
                lq.wait(("a", kk))
            e.mfma(MF32, U, AF[kk], vOnes, U if kk else Uc)
            for _ in range(2 if kk in (1, 2) else 1):
                if trs:
                    tr_read(*trs.pop(0))
            if hide and kk == 0:
                sc()
            if hide and kk == 5:
                ft.pop(0)()
                ft.pop(0)()
            if not first:
                e.mfma(MF32, Sx, AF[kk], Qk[kk], Sx if kk else Sc)
            if trs:
                tr_read(*trs.pop(0))
            if hide and kk < 3:
                fa.pop(0)()
            if hide and kk == 4:
                poll_ahead()
            if hide and kk == 5:
                ft.pop(0)()
                ft.pop(0)()
        assert not trs
        if rel:
            release(done=hide)
        else:
            lq.drain()
        for n in range(24):
            r, r1 = AF[n >> 2][n & 3], A1[n >> 2][n & 3]
            e.valu("v_dot2_f32_bf16", tA, r, r, tA if n else ss1)
            e.valu("v_dot2_f32_bf16", tB, r, r1, tB if n else 0)
        e.valu("v_fma_f32", tA, tB, 2.0, tA)
        e.mfma(MFF, SS, tA, vOne, 0)
        if first:
            return
        if nxt is not None:
            early(nxt, again=not waits and EARLY > 1)
        for f_ in stats_ops(U, SS):
            f_()

    def tile_mfmas(AF, U, SS, first, trs, waits, rel=True, nxt=None):
        if GRAM == 0 or (GRAM == 2 and rel):
            return tile_dots(AF, U, SS, first, trs, waits, rel, nxt)
        trs = list(trs)
        for kk in range(6):
            if waits:
                lq.wait(("a", kk))
            e.mfma(MF32, SS, AF[kk], AF[kk], SS if kk else 0)
            if trs and kk >= 2:
                tr_read(*trs.pop(0))
            e.mfma(MF32, Gx, AF[kk], A1[kk], Gx if kk else 0)
            if trs:
                tr_read(*trs.pop(0))
        fl = sumsq_ops(SS)
        hide = rel and not first
        if hide:
            sc, fa, ft = rot_ops()
        for kk in range(6):
            e.mfma(MF32, U, AF[kk], vOnes, U if kk else Uc)
            if kk < 2:
                if trs:
                    tr_read(*trs.pop(0))
                if hide and kk == 0:
                    sc()
                    fa.pop(0)()
                elif hide:
                    fa.pop(0)()
                    fa.pop(0)()
                elif kk == 1:
                    e.nop(8 - 3 - (2 if waits else 0))
            else:
                for _ in range(2):
                    fl.pop(0)()
        assert not trs
        if first:
            while fl:
                fl.pop(0)()
            e.mfma(MFF, SS, tA, vOne, 0)
            release()
            return
        fl.pop(0)()
        e.mfma(MF32, Sx, AF[0], Qk[0], Sc)
        if hide:
            ft.pop(0)()
            ft.pop(0)()
        else:
            e.nop(1)
        e.mfma(MFF, SS, tA, vOne, 0)
        fl = stats_ops(U, SS, packed=False)
        for kk in range(1, 6):
            e.mfma(MF32, Sx, AF[kk], Qk[kk], Sx)
            if kk >= 2:
                for _ in range(2):
                    fl.pop(0)()
            elif hide:
                ft.pop(0)()
                ft.pop(0)()
            if hide and kk == 3:
                poll_ahead()
        if rel:
            release(done=True)
        else:
            lq.drain()
        if nxt is not None:
            early(nxt, again=not waits and EARLY > 1)
        while fl:
            fl.pop(0)()

    def tile_phase(t, first, AF=None, U=None, SS=None):
        AF = AF or A0
        U = U or Ux
        SS = SS or SSx
        half = t & 1
        if first:
            wait_piece()
            a_reads(AF)
        else:
            begin_piece(AF)
        nxt = None if first else (A1 if t == 3 else A0)
        if t == 2:
            e.valu("v_mov_b32", tC, 0)
            for cb in range(12):
                e.mfma(MF32, acc[cb], T0[cb], Pf, acc[cb])
                tr_read(T0[cb][0:2], cb)
                ones_read(T0[cb][2:4])
            e.label("L_tile2b")
            lq.wait(("a", 5))
            tile_mfmas(AF, U, SS, first, [], False, nxt=nxt)
        else:
            tile_mfmas(AF, U, SS, first, [(T0[cb][2 * half:2 * half + 2], cb) for cb in range(12)], True, nxt=nxt)

    def softmax(t, last=False):
        half = t & 1
        for h in range(2):
            sl = slice(2 * h, 2 * h + 2)
            e.valu("v_pk_fma_f32", Sx[sl], Ux[sl], vCs2, Sx[sl], mods=NEG1)
        for h in range(2):
            e.valu("v_pk_fma_f32", X[2 * h:2 * h + 2], Sx[2 * h:2 * h + 2], SSx[2 * h:2 * h + 2], vNm2)
        e.valu("v_max3_f32", tC, X[0], X[1], X[2])
        e.valu("v_max_f32", tC, tC, X[3])
        e.valu("v_cmp_lt_f32", VCC, sThr, tC)
        for r in range(4):
            e.valu("v_exp_f32", X[r], X[r])
        lbl = newlabel("sm")
        e.salu("s_cbranch_vccz", lbl)
        e.begin_cond()
        e.salu("s_call_b64", sRet, "L_rescale")
        e.end_cond()
        e.raw(f"{lbl}:")
        dst = pp if half == 0 else Sx
        for h in range(2):
            e.valu("v_pk_mul_f32", dst[2 * h:2 * h + 2], X[2 * h:2 * h + 2], SSx[2 * h:2 * h + 2])
            if not last:
                e.valu("v_pk_add_f32", vL2, vL2, X[2 * h:2 * h + 2])
        for h in range(2):
            if t == 0:
                e.valu("v_mov_b32", pc[2 * h], dst[2 * h])
                e.valu("v_mov_b32", pc[2 * h + 1], dst[2 * h + 1])
            else:
                e.valu("v_pk_add_f32", pc[2 * h:2 * h + 2], pc[2 * h:2 * h + 2], dst[2 * h:2 * h + 2])
        if not last:
            for h in range(2):
                sl = slice(2 * h, 2 * h + 2)
                if t == 3 and h == 0:
                    e.valu("v_pk_mul_f32", mu2, dst[sl], Ux[sl])
                else:
                    e.valu("v_pk_fma_f32", mu2, dst[sl], Ux[sl], mu2)
        if t == 1:
            e.valu("v_cvt_pk_bf16_f32", Pf[0], pp[0], pp[1])
            e.valu("v_cvt_pk_bf16_f32", Pf[1], pp[2], pp[3])
            e.valu("v_cvt_pk_bf16_f32", Pf[2], Sx[0], Sx[1])
            e.valu("v_cvt_pk_bf16_f32", Pf[3], Sx[2], Sx[3])
        if t == 2:
            e.valu("v_cvt_pk_bf16_f32", Pf[0], pp[0], pp[1])
            e.valu("v_cvt_pk_bf16_f32", Pf[1], pp[2], pp[3])
            e.valu("v_cvt_pk_bf16_f32", Pf[2], Neg(mu2[0]), Neg(mu2[1]))
            e.valu("v_mov_b32", Pf[3], 0)
            if EARLY > 1:
                early2(A0)
            for cb in range(12):
                e.mfma(MF32, acc[cb], T0[cb], Pf, acc[cb])
        if t == 3:
            e.valu("v_cvt_pk_bf16_f32", Pf[0], Sx[0], Sx[1])
            e.valu("v_cvt_pk_bf16_f32", Pf[1], Sx[2], Sx[3])
            e.valu("v_cvt_pk_bf16_f32", Pf[2], pc[0], pc[1])
            e.valu("v_cvt_pk_bf16_f32", Pf[3], pc[2], pc[3])

    U1, SS1, S1 = acc[6], acc[7], acc[8]
    coarse_phase(True)
    tile_phase(0, True)
    e.salu("s_sub_u32", sT, S(2), NQP)
    e.salu("s_cmp_ge_u32", sT, NPR - NQP)
    e.salu("s_cbranch_scc1", "L_nowf")
    e.begin_cond()
    srd(e, S(24, 4), pDbg, 256)
    e.salu("s_lshl_b32", sT, sT, 4)
    e.valu("v_mov_b32", tA, 1)
    e.waitcnt(vm=0)
    e.salu("s_mov_b64", EXEC, 1)
    e.buf_store("buffer_store_dword", tA, vSy, S(24, 4), sT, offset=DBG_WVO, flags="sc1")
    e.salu("s_mov_b64", EXEC, -1)
    st.mark(11)
    e.end_cond()
    e.raw("L_nowf:")
    tile_phase(1, True, AF=acc[:6], U=U1, SS=SS1)
    for f_ in stats_ops(Ux, SSx) + stats_ops(U1, SS1):
        f_()
    wait_piece()
    st.mark(6)
    lk.at(9, tA, tB)
    e.valu("v_mov_b32", tC, 0)
    lds_spin(e, tC, S_QKRDY, vPoll, sT, 1, sleep=1)
    lq.q = []
    st.mark(2)
    lk.at(2, tA, tB)
    st.cyc(8)
    for kk in range(6):
        e.ds_read("ds_read_b128", Qk[kk], vQa[kk & 1], QK + (kk >> 1) * 128)
    for kk in range(6):
        e.waitcnt(lgkm=5 - kk)
        e.mfma(MF32, Sc, A1[kk], Qk[kk], Sc if kk else 0)
        e.mfma(MF32, acc[9], vOnes, Qk[kk], acc[9] if kk else 0)
    for kk in range(6):
        e.mfma(MF32, Sx, A0[kk], Qk[kk], Sx if kk else Sc)
        e.mfma(MF32, S1, acc[kk], Qk[kk], S1 if kk else Sc)
    a_reads(A0)
    e.valu("v_mov_b32", vCs2[0], acc[9][0])
    e.valu("v_mov_b32", vCs2[1], acc[9][0])
    for (U_, SS_, S_) in ((Ux, SSx, Sx), (U1, SS1, S1)):
        for h in range(2):
            sl = slice(2 * h, 2 * h + 2)
            e.valu("v_pk_fma_f32", S_[sl], U_[sl], vCs2, S_[sl], mods=NEG1)
            e.valu("v_pk_mul_f32", S_[sl], S_[sl], SS_[sl])
    e.valu("v_max3_f32", vM, Sx[0], Sx[1], Sx[2])
    e.valu("v_max3_f32", tC, Sx[3], S1[0], S1[1])
    e.valu("v_max3_f32", vM, vM, S1[2], S1[3])
    e.valu("v_max_f32", vM, vM, tC)
    xg_reduce(e, "v_max_f32", vM, tA, tB)
    e.valu("v_cmp_le_f32_e64", VCC, "|%s|" % vM, sThr)
    e.valu("v_cndmask_b32_e64", vM, vM, 0, VCC)
    e.valu("v_sub_f32", vNm2[0], 0, vM)
    e.valu("v_sub_f32", vNm2[1], 0, vM)
    for S_ in (Sx, S1):
        for h in range(2):
            sl = slice(2 * h, 2 * h + 2)
            e.valu("v_pk_add_f32", S_[sl], S_[sl], vNm2)
        for r in range(4):
            e.valu("v_exp_f32", S_[r], S_[r])
    e.valu("v_pk_add_f32", vL2, Sx[0:2], Sx[2:4])
    e.valu("v_pk_add_f32", vL2, vL2, S1[0:2])
    e.valu("v_pk_add_f32", vL2, vL2, S1[2:4])
    for (SS_, S_) in ((SSx, Sx), (SS1, S1)):
        for h in range(2):
            sl = slice(2 * h, 2 * h + 2)
            e.valu("v_pk_mul_f32", S_[sl], S_[sl], SS_[sl])
    e.valu("v_cvt_pk_bf16_f32", Pf[0], Sx[0], Sx[1])
    e.valu("v_cvt_pk_bf16_f32", Pf[1], Sx[2], Sx[3])
    e.valu("v_cvt_pk_bf16_f32", Pf[2], S1[0], S1[1])
    e.valu("v_cvt_pk_bf16_f32", Pf[3], S1[2], S1[3])
    for h in range(2):
        sl = slice(2 * h, 2 * h + 2)
        e.valu("v_pk_add_f32", pc[sl], Sx[sl], S1[sl])
    e.valu("v_pk_mul_f32", mu2, Sx[0:2], Ux[0:2])
    e.valu("v_pk_fma_f32", mu2, Sx[2:4], Ux[2:4], mu2)
    e.valu("v_pk_fma_f32", mu2, S1[0:2], U1[0:2], mu2)
    e.valu("v_pk_fma_f32", mu2, S1[2:4], U1[2:4], mu2)
    e.valu("v_mov_b32", tC, 0)
    for cb in range(12):
        e.mfma(MF32, acc[cb], T0[cb], Pf, 0)
        tr_read(T0[cb][0:2], cb)
        ones_read(T0[cb][2:4])
    e.fence()
    e.salu("s_branch", "L_tile2b")
    lq.q = []

    e.raw("L_rescale:")
    e.nop(16)
    for r in range(4):
        e.valu("v_mul_f32", X[r], Sx[r], SSx[r])
    e.valu("v_max3_f32", tC, X[0], X[1], X[2])
    e.valu("v_max3_f32", tC, tC, X[3], vM)
    xg_reduce(e, "v_max_f32", tC, tA, tB)
    al = V(22, 2)
    e.valu("v_sub_f32", al[0], vM, tC)
    e.valu("v_exp_f32", al[0], al[0])
    e.valu("v_mov_b32", vM, tC)
    e.valu("v_sub_f32", vNm2[0], 0, tC)
    e.valu("v_sub_f32", vNm2[1], 0, tC)
    e.valu("v_mov_b32", al[1], al[0])
    for r in range(4):
        e.valu("v_sub_f32", X[r], X[r], tC)
    for r in range(4):
        e.valu("v_exp_f32", X[r], X[r])
    for q_ in [vL2, mu2, pc[0:2], pc[2:4], pp[0:2], pp[2:4]] + [a_[2 * h:2 * h + 2] for a_ in acc for h in range(2)]:
        e.valu("v_pk_mul_f32", q_, q_, al)
    e.fence()
    e.salu("s_setpc_b64", sRet)

    e.label("L_loop")
    if opt.get("nocmp"):
        e.drop.update((MF32, MFF, "ds_read_b128", "ds_read_b64_tr_b16", "ds_read_b64"))
    st.cyc(7)
    coarse_phase(False)
    tile_phase(0, False)
    softmax(0)
    tile_phase(1, False)
    softmax(1)
    tile_phase(2, False)
    softmax(2)
    e.salu("s_cmp_eq_u32", sIt, NITER - 1)
    e.salu("s_cbranch_scc1", "L_last")
    tile_phase(3, False)
    softmax(3)
    e.salu("s_add_u32", sIt, sIt, 1)
    e.fence()
    e.salu("s_branch", "L_loop")

    e.drop.clear()
    e.raw("L_last:")
    lq.q = [None]
    for a_ in acc:
        for r_ in a_.regs():
            e.w[r_] = (e.pos - 1, "xdl4", (a_.f, a_.i, a_.n))
    st.cyc(9)
    fr = [T0[cb][0:2] for cb in range(12)]
    vFr, vSt = fr[0][0], fr[0][1]
    vOn1, vZ0 = fr[1][0], fr[1][1]
    if opt.get("lprio", 2):
        e.salu("s_setprio", opt.get("lprio", 2))
    e.valu("v_and_b32", tA, 15, lane)
    e.valu("v_lshrrev_b32", tB, 4, lane)
    e.valu("v_lshlrev_b32", vFr, 4, lane)
    e.valu("v_lshlrev_b32", tB, 2, tB)
    e.valu("v_add_u32", vFr, sLds, vFr)
    e.valu("v_lshl_add_u32", vSt, tA, 4, tB)
    e.valu("v_add_u32", vSt, sLds, vSt)
    FINE = opt.get("fine", 0)
    if FINE:
        st.cyc(5)
    lq.q = []
    if opt.get("spec", 1):
        e.salu("s_cmp_lg_u32", sEa, 0)
        e.salu("s_cbranch_scc1", "L_lgot")
        e.label("L_lspin")
        e.ds_read("ds_read_b32", vPoll, vSy, S_LANDED)
        a_reads(A0)
        e.waitcnt(lgkm=6)
        e.valu("v_readfirstlane_b32", sLand, vPoll)
        e.nop(1)
        e.salu("s_cmp_ge_u32", sLand, 5 * NITER)
        e.salu("s_cbranch_scc0", "L_lspin")
        e.raw("L_lgot:")
    else:
        begin_piece(A0, sleep=0)
    if FINE:
        st.cyc(7)
    tile_mfmas(A0, Ux, SSx, False, [(T0[cb][2:4], cb) for cb in range(12)], True, rel=False)
    if FINE:
        st.cyc(8)
    softmax(3, True)
    st.mark(3)
    if FINE:
        st.cyc(11)

    def put(kk):
        pk = A1[kk]
        for q_ in range(2):
            e.valu("v_cvt_pk_bf16_f32", pk[2 * q_], acc[2 * kk + q_][0], acc[2 * kk + q_][1])
            e.valu("v_cvt_pk_bf16_f32", pk[2 * q_ + 1], acc[2 * kk + q_][2], acc[2 * kk + q_][3])
        e.ds_write("ds_write_b128", vFr, pk, FRAG + 1024 * kk)

    STEP = opt.get("pstep", 2)

    def flagval():
        e.salu("s_cmp_eq_u64", VCC, 0)
        e.salu("s_cselect_b32", sT, 16 + STEP, 32 + STEP)
        e.valu("v_mov_b32", vOn1, sT)
    fill = [lambda: e.valu("v_cmp_neq_f32", VCC, 0, vM),
            lambda: e.valu("v_add_f32", X[0], X[0], X[1]),
            lambda: e.valu("v_add_f32", X[2], X[2], X[3]),
            lambda: e.valu("v_add_f32", vL2[0], vL2[0], vL2[1]),
            lambda: e.valu("v_add_f32", X[0], X[0], X[2]),
            lambda: e.ds_write("ds_write_b32", vSt, vM, WST + 512),
            lambda: e.valu("v_add_f32", vL2[0], vL2[0], X[0]),
            flagval,
            lambda: e.ds_write("ds_write_b32", vSt, vL2[0], WST)]
    post = []
    for kk in range(6):
        pk = A1[kk]
        for q_ in range(2):
            for h in range(2):
                post.append(lambda kk=kk, q_=q_, h=h, pk=pk: e.valu("v_cvt_pk_bf16_f32", pk[2 * q_ + h], acc[2 * kk + q_][2 * h], acc[2 * kk + q_][2 * h + 1]))

        def wr(kk=kk, pk=pk):
            e.ds_write("ds_write_b128", vFr, pk, FRAG + 1024 * kk)
            if kk % STEP == STEP - 1 and kk < 5:
                e.ds_write("ds_write_b32", vSy, vOn1, S_FR)
                e.valu("v_add_u32", vOn1, STEP, vOn1)
        post.append(wr)
    for cb in range(12):
        e.mfma(MF32, acc[cb], TH[cb], Pf, acc[cb])
        if cb < 3:
            for _ in range(3):
                fill.pop(0)()
        else:
            for _ in range(2 + (cb & 1 ^ 1)):
                post.pop(0)()
    while post:
        post.pop(0)()
    e.ds_write("ds_write_b32", vSy, vOn1, S_FR)
    st.mark(4)
    if FINE:
        st.cyc(1)
    e.salu("s_setprio", 0)

    sId = S(53)
    e.salu("s_cmp_lt_u32", S(2), NWG - NCB)
    e.salu("s_cbranch_scc1", "L_r_end")
    e.salu("s_sub_u32", sId, S(2), NWG - NCB)
    e.salu("s_and_b32", sT, sId, 7)
    e.salu("s_lshr_b32", sT2, sId, 4)
    e.salu("s_lshl_b32", sT2, sT2, 3)
    e.salu("s_or_b32", sT, sT, sT2)
    e.salu("s_lshl_b32", sT, sT, 1)
    e.salu("s_bfe_u32", sT2, sId, 0x10003)
    e.salu("s_or_b32", sId, sT, sT2)
    sQ, sO = S(24, 4), S(28, 4)
    srd(e, sQ, pQ, 6144)
    srd(e, sO, S(18, 2), 6144)
    nq, wgp, vP, vO, c0, c1, vW, vR, c2, vAlt, tg = [V(28 + k) for k in range(11)]
    e.valu("v_and_b32", nq, 3, lane)
    e.valu("v_lshrrev_b32", wgp, 2, lane)
    e.valu("v_lshlrev_b32", vP, 15, wgp)
    e.valu("v_lshl_add_u32", vP, nq, 4, vP)
    e.valu("v_lshlrev_b32", c0, 2, nq)
    e.ds_read("ds_read_b32", tg, c0, TAGS)
    e.salu("s_lshl_b32", sT, sWave, 19)
    e.salu("s_lshl_b32", sT2, sId, 6)
    e.salu("s_add_u32", sT, sT, sT2)
    e.salu("s_add_u32", sT, sT, WS_P)
    sC = [S(4), S(5), S(6)]
    e.salu("s_and_b32", sT2, sId, 3)
    e.salu("s_mul_i32", sT2, sT2, 4 * 384)
    e.valu("v_mul_u32_u24", vO, 384, nq)
    e.valu("v_add_u32", vO, sT2, vO)
    e.salu("s_lshr_b32", sT2, sId, 5)
    e.salu("s_mul_i32", sC[2], sT2, 96)
    e.salu("s_bfe_u32", sT2, sId, 0x20002)
    e.salu("s_lshl_b32", sT2, sT2, 3)
    e.salu("s_add_u32", sC[2], sC[2], sT2)
    e.salu("s_bitcmp1_b32", sId, 4)
    e.salu("s_cselect_b32", sC[0], 36, 0)
    e.salu("s_cselect_b32", sC[1], 64, 4)
    e.salu("s_cselect_b32", sT2, 68, 32)
    e.salu("s_add_u32", sC[0], sC[0], sC[2])
    e.salu("s_add_u32", sC[1], sC[1], sC[2])
    e.salu("s_add_u32", sC[2], sC[2], sT2)
    qv = V(56, 3)
    for k in range(3):
        e.buf_load("buffer_load_dword", qv[k], vO, sQ, sC[k])
    e.valu("v_lshrrev_b32", c0, 4, lane)
    e.valu("v_lshlrev_b32", vW, 7, c0)
    e.valu("v_lshl_add_u32", vW, nq, 5, vW)
    e.salu("s_lshl_b32", sT2, sWave, 9)
    e.salu("s_add_u32", sT2, sT2, CEX)
    e.valu("v_add_u32", vW, sT2, vW)
    e.valu("v_and_b32", vR, 15, lane)
    e.valu("v_lshlrev_b32", vR, 5, vR)
    P = [V(40 + 4 * i, 4) for i in range(4)]
    R8 = V(60, 8)
    a6, L, M = R8[0:6], R8[6], R8[7]
    qf = V(120, 6)
    sBad = [S(44, 2), S(46, 2), S(58, 2), S(60, 2)]
    sLo1, sHi1 = S(38), S(39)
    e.valu("v_mov_b32", c0, 0)
    for k in range(8):
        e.valu("v_mov_b32", R8[k], 0)
    e.valu("v_mov_b32", vAlt, 0)
    for i in range(4):
        e.salu("s_mov_b64", sBad[i], -1)
    e.salu("s_mov_b32", sLo1, 0x00003F80)
    e.salu("s_mov_b32", sHi1, 0x3F800000)
    e.waitcnt(vm=0, lgkm=0)
    for k in range(3):
        e.valu("v_lshlrev_b32", qf[2 * k], 16, qv[k])
        e.valu("v_and_b32", qf[2 * k + 1], 0xFFFF0000, qv[k])
    if opt.get("gate", 1):
        lds_spin(e, c0, S_EMP, c1, sT2, 4)
    if opt.get("pre", 4):
        e.salu("s_mov_b64", EXEC, {1: 0x1, 2: 0x10001, 4: 0x1111, 8: 0x11111111, 5: 0x01010101}[opt.get("pre", 4)])
        e.label("L_tpre")
        e.buf_load("buffer_load_dword", c0, vP, sWS, sT, offset=12, flags=PFL)
        e.waitcnt(vm=0)
        e.valu("v_xor_b32", c0, c0, tg)
        e.valu("v_and_b32", c0, 0xFFFE, c0)
        e.valu("v_cmp_ne_u32", VCC, 0, c0)
        e.salu("s_cbranch_vccnz", "L_tpre")
        e.salu("s_mov_b64", EXEC, -1)
    e.label("L_tpoll")
    for i in range(4):
        lb_ = newlabel("tskip")
        e.salu("s_add_u32", sT2, sT, PSZ * i)
        e.salu("s_cmp_eq_u64", sBad[i], 0)
        e.salu("s_cbranch_scc1", lb_)
        e.begin_cond()
        e.salu("s_mov_b64", EXEC, sBad[i])
        e.buf_load("buffer_load_dwordx4", P[i], vP, sWS, sT2, flags=LFL)
        e.end_cond()
        e.raw(f"{lb_}:")
    e.waitcnt(vm=0)
    for i in range(4):
        lb_ = newlabel("tchk")
        e.salu("s_cmp_eq_u64", sBad[i], 0)
        e.salu("s_cbranch_scc1", lb_)
        e.begin_cond()
        e.salu("s_mov_b64", EXEC, sBad[i])
        e.valu("v_xor_b32", c2, P[i][3], tg)
        e.valu("v_and_b32", c0, 0xFFFE, c2)
        e.valu("v_and_b32", c1, 0xFFFF0000, P[i][3])
        e.valu("v_or_b32_dpp", c0, c0, c0, mods="quad_perm:[1,0,3,2] row_mask:0xf bank_mask:0xf")
        e.valu("v_or_b32_dpp", c0, c0, c0, mods="quad_perm:[2,3,0,1] row_mask:0xf bank_mask:0xf")
        e.valu("v_cmp_eq_u32", VCC, 0, c0)
        e.nop(1)
        e.salu("s_andn2_b64", sBad[i], sBad[i], VCC)
        e.salu("s_and_b64", EXEC, VCC, VCC)
        e.salu("s_cbranch_scc0", lb_)
        for k in range(6):
            e.valu("v_dot2_f32_bf16", a6[k], P[i][k >> 1], sHi1 if k & 1 else sLo1, a6[k])
        e.valu("v_add_f32", L, L, c1)
        e.valu("v_or_b32", vAlt, vAlt, c2)
        e.end_cond()
        e.raw(f"{lb_}:")
    e.salu("s_mov_b64", EXEC, -1)
    sCn, sPi, sMk = S(54), S(55), S(56, 2)
    e.salu("s_or_b64", sMk, sBad[0], sBad[1])
    e.salu("s_or_b64", VCC, sBad[2], sBad[3])
    e.salu("s_or_b64", sMk, sMk, VCC)
    e.salu("s_cbranch_scc0", "L_tfull")
    e.salu("s_mov_b32", sCn, 0)
    for i in (3, 2, 1, 0):
        e.salu("s_bcnt1_i32_b64", sT2, sBad[i])
        e.salu("s_cselect_b32", sPi, PSZ * i if i else 0, sPi)
        e.salu("s_cselect_b64", sMk, sBad[i], sMk)
        e.salu("s_add_u32", sCn, sCn, sT2)
    e.salu("s_cmp_le_u32", sCn, 4 * opt.get("tfew", 8))
    e.salu("s_cbranch_scc1", "L_tpoll")
    e.salu("s_ff1_i32_b64", sT2, sMk)
    e.salu("s_lshl_b64", EXEC, 1, sT2)
    e.salu("s_add_u32", sPi, sPi, sT)
    e.label("L_tprobe")
    e.buf_load("buffer_load_dword", c0, vP, sWS, sPi, offset=12, flags=PFL)
    e.waitcnt(vm=0)
    e.valu("v_xor_b32", c0, c0, tg)
    e.valu("v_and_b32", c0, 0xFFFE, c0)
    e.valu("v_cmp_ne_u32", VCC, 0, c0)
    e.salu("s_cbranch_vccnz", "L_tprobe")
    e.salu("s_mov_b64", EXEC, -1)
    e.salu("s_branch", "L_tpoll")
    e.label("L_tfull")
    st.mark(10)
    lk.at(6, c0, c1)
    e.valu("v_and_b32", c0, 1, vAlt)
    e.valu("v_cmp_ne_u32", VCC, 0, c0)
    e.salu("s_cbranch_vccnz", "L_tgen")
    e.label("L_trows")
    for k in (4, 8):
        for x in range(7):
            e.valu("v_add_f32_dpp", R8[x], R8[x], R8[x], mods=f"row_ror:{k} row_mask:0xf bank_mask:0xf")
    e.salu("s_mov_b32", S(46), 0x000F000F)
    e.salu("s_mov_b32", S(47), 0x000F000F)
    e.salu("s_mov_b64", EXEC, S(46, 2))
    e.ds_write("ds_write_b128", vW, R8[0:4], 0)
    e.ds_write("ds_write_b128", vW, R8[4:8], 16)
    e.salu("s_mov_b64", EXEC, -1)
    e.waitcnt(lgkm=0)
    e.barrier()
    e.salu("s_cmp_lg_u32", sWave, 0)
    e.salu("s_cbranch_scc1", "L_r_end")
    Xv = [V(80 + 8 * v, 8) for v in range(4)]
    for v in range(4):
        e.ds_read("ds_read_b128", Xv[v][4:8], vR, CEX + 512 * v + 16)
    for v in range(4):
        e.ds_read("ds_read_b128", Xv[v][0:4], vR, CEX + 512 * v)
    e.waitcnt(lgkm=4)
    e.valu("v_or3_b32", c0, Xv[0][7], Xv[1][7], Xv[2][7])
    e.valu("v_or_b32", c0, c0, Xv[3][7])
    e.valu("v_cmp_ne_u32", VCC, 0, c0)
    e.salu("s_cbranch_vccnz", "L_fgen")
    e.label("L_fsum")
    for h in (3, 2, 0, 1):
        sl = slice(2 * h, 2 * h + 2)
        if h == 0:
            e.waitcnt(lgkm=0)
        e.valu("v_pk_add_f32", R8[sl], Xv[0][sl], Xv[1][sl])
        e.valu("v_pk_add_f32", Xv[2][sl], Xv[2][sl], Xv[3][sl])
    for h in (3, 2, 0, 1):
        sl = slice(2 * h, 2 * h + 2)
        e.valu("v_pk_add_f32", R8[sl], R8[sl], Xv[2][sl])
    for k in (4, 8):
        for x in (6, 0, 1, 2, 3, 4, 5):
            e.valu("v_add_f32_dpp", R8[x], R8[x], R8[x], mods=f"row_ror:{k} row_mask:0xf bank_mask:0xf")
            if k == 8 and x == 1:
                e.valu("v_rcp_f32", L, L)
    for h in range(3):
        sl = slice(2 * h, 2 * h + 2)
        e.valu("v_pk_mul_f32", a6[sl], a6[sl], R8[6:8], mods="op_sel_hi:[1,0]")
    for h in range(3):
        e.valu("v_cvt_pk_bf16_f32", qv[h], a6[2 * h], a6[2 * h + 1])
    for h in range(3):
        e.valu("v_lshlrev_b32", a6[2 * h], 16, qv[h])
        e.valu("v_and_b32", a6[2 * h + 1], 0xFFFF0000, qv[h])
    for h in range(3):
        sl = slice(2 * h, 2 * h + 2)
        e.valu("v_pk_add_f32", a6[sl], a6[sl], qf[sl])
    e.salu("s_mov_b64", EXEC, 0xF)
    for h in range(3):
        e.valu("v_cvt_pk_bf16_f32", qv[h], a6[2 * h], a6[2 * h + 1])
        e.buf_store("buffer_store_dword", qv[h], vO, sO, sC[h])
    e.salu("s_mov_b64", EXEC, -1)
    st.mark(12)
    lk.at(7, c0, c1)
    lk.spend(c0, c1)
    e.label("L_r_end")
    st.dump(sWS, 14, [V(126), V(127)])
    e.salu("s_endpgm")

    e.raw("L_tgen:")
    e.nop(4)
    Fv = [V(112 + 2 * i, 2) for i in range(4)]
    tw, vE = V(70), V(71)
    e.valu("v_mov_b32", c0, 0)
    e.ds_read("ds_read_b64", V(72, 2), c0, TAGS)
    e.valu("v_lshlrev_b32", vE, 9, wgp)
    e.valu("v_lshl_add_u32", vE, nq, 3, vE)
    e.salu("s_and_b32", sT2, sId, 3)
    e.salu("s_lshl_b32", sT2, sT2, 5)
    e.salu("s_lshl_b32", sPi, sWave, 13)
    e.salu("s_add_u32", sPi, sPi, sT2)
    e.salu("s_add_u32", sPi, sPi, WS_E)
    e.waitcnt(lgkm=0)
    e.valu("v_lshl_or_b32", tw, V(73), 16, V(72))
    for i in range(4):
        e.valu("v_mov_b32", Fv[i][0], 0)
        e.valu("v_and_b32", c0, 1, P[i][3])
        e.valu("v_cmp_ne_u32", VCC, 0, c0)
        e.nop(1)
        e.salu("s_and_b64", EXEC, VCC, VCC)
        e.salu("s_cbranch_scc0", f"L_tg{i}e")
        e.label(f"L_tg{i}")
        e.buf_load("buffer_load_dwordx2", Fv[i], vE, sWS, sPi, offset=128 * i, flags="sc1")
        e.waitcnt(vm=0)
        e.valu("v_cmp_ne_u32", VCC, Fv[i][1], tw)
        e.salu("s_cbranch_vccnz", f"L_tg{i}")
        e.raw(f"L_tg{i}e:")
        e.salu("s_mov_b64", EXEC, -1)
    e.valu("v_max3_f32", M, Fv[0][0], Fv[1][0], Fv[2][0])
    e.valu("v_max_f32", M, M, Fv[3][0])
    for k in (4, 8):
        e.valu("v_max_f32_dpp", M, M, M, mods=f"row_ror:{k} row_mask:0xf bank_mask:0xf")
    xg_reduce(e, "v_max_f32", M, c0, c1)
    for k in range(7):
        e.valu("v_mov_b32", R8[k], 0)
    for i in range(4):
        e.valu("v_sub_f32", c2, Fv[i][0], M)
        e.valu("v_exp_f32", c2, c2)
        for k in range(7):
            if k & 1 or k == 6:
                e.valu("v_and_b32", c0, 0xFFFF0000, P[i][k >> 1])
            else:
                e.valu("v_lshlrev_b32", c0, 16, P[i][k >> 1])
            e.valu("v_fmac_f32", R8[k], c2, c0, rmw=True)
    e.fence()
    e.salu("s_branch", "L_trows")

    e.raw("L_fgen:")
    e.waitcnt(lgkm=0)
    e.valu("v_max3_f32", M, Xv[0][7], Xv[1][7], Xv[2][7])
    e.valu("v_max_f32", M, M, Xv[3][7])
    for v in range(4):
        e.valu("v_sub_f32", c0, Xv[v][7], M)
        e.valu("v_exp_f32", c0, c0)
        for k in range(7):
            e.valu("v_mul_f32", Xv[v][k], Xv[v][k], c0)
    e.fence()
    e.salu("s_branch", "L_fsum")

    e.w.clear(); e.cread.clear(); e.stread.clear()
    e.raw("L_qkprod:")
    pj, pg, pz, p0, p1 = V(28), V(29), V(30), V(31), V(32)
    vB = [V(34 + k) for k in range(4)]
    vTp = [V(38 + k) for k in range(3)]
    vTq = [V(41 + k) for k in range(3)]
    vXw = [V(44 + k) for k in range(3)]
    vL16 = V(47)
    qp = [V(52 + k) for k in range(24)]
    sCb = S(53)
    sCode = S(28, 4)
    e.salu("s_getpc_b64", sCode[0:2])
    e.salu("s_mov_b32", sCode[2], 4096)
    e.salu("s_mov_b32", sCode[3], 0x20000)
    e.valu("v_lshlrev_b32", p0, 6, lane)
    e.buf_load("buffer_load_dword", V(50), p0, sCode, 0)
    e.valu("v_and_b32", pj, 15, lane)
    e.valu("v_lshrrev_b32", pg, 4, lane)
    e.valu("v_mov_b32", pz, 0)
    e.valu("v_lshlrev_b32", vL16, 4, lane)
    e.valu("v_add_u32", vL16, QL, vL16)
    e.valu("v_mul_u32_u24", p0, 384, pj)
    e.valu("v_and_b32", p1, 1, pg)
    e.valu("v_lshl_add_u32", p0, p1, 3, p0)
    e.valu("v_add_u32", p0, STAGE, p0)
    e.valu("v_lshrrev_b32", p1, 1, pg)
    e.valu("v_and_b32", vB[3], 6, pj)
    e.valu("v_xor_b32", p1, p1, vB[3])
    for q in range(4):
        e.valu("v_xor_b32", vB[q], 2 * q, p1)
        e.valu("v_lshl_add_u32", vB[q], vB[q], 4, p0)
    e.valu("v_lshrrev_b32", p0, 2, pj)
    e.valu("v_lshl_add_u32", p0, pg, 2, p0)
    e.valu("v_and_b32", p1, 6, p0)
    e.valu("v_mul_u32_u24", p0, 384, p0)
    e.valu("v_and_b32", vTq[0], 3, pj)
    e.valu("v_lshl_add_u32", p0, vTq[0], 3, p0)
    for c in range(3):
        e.salu("s_mul_i32", sCb, sWave, 3)
        e.salu("s_add_u32", sCb, sCb, c)
        e.salu("s_and_b32", sT, sCb, 3)
        e.salu("s_lshl_b32", sT, sT, 1)
        e.valu("v_xor_b32", vTp[c], sT, p1)
        e.valu("v_lshl_add_u32", vTp[c], vTp[c], 4, p0)
        e.salu("s_lshr_b32", sT, sCb, 2)
        e.salu("s_lshl_b32", sT, sT, 7)
        e.salu("s_add_u32", sT, sT, RING0 + wslot(0) * TILE)
        e.valu("v_add_u32", vTp[c], sT, vTp[c])
        e.valu("v_add_u32", vTq[c], (wslot(8) - wslot(0)) * TILE, vTp[c])
        e.salu("s_lshr_b32", sT, sCb, 1)
        e.salu("s_lshl_b32", sT, sT, 10)
        e.salu("s_and_b32", sT2, sCb, 1)
        e.salu("s_lshl_b32", sT2, sT2, 3)
        e.salu("s_add_u32", sT, sT, sT2)
        e.valu("v_add_u32", vXw[c], sT, vL16)
    lds_spin(e, pz, S_WL, p0, sT, 1)
    st.mark(5)
    for kk in range(6):
        for hf in range(2):
            e.ds_read("ds_read_b64", V(52 + 4 * kk + 2 * hf, 2), vB[2 * (kk & 1) + hf], (kk >> 1) * 128)
    sm, one2 = V(76), V(77)
    mean, var = V(78, 2), V(80, 2)
    xs = [V(82, 2), V(84, 2)]
    e.valu("v_mov_b32", one2, 0x3F803F80)
    e.waitcnt(lgkm=0)
    if opt.get("lnfast", 1):
        for k in range(24):
            e.valu("v_dot2_f32_bf16", sm, qp[k], one2, sm if k else 0)
            e.valu("v_dot2_f32_bf16", var[0], qp[k], qp[k], var[0] if k else 0)
        for sw in ("v_permlane32_swap_b32", "v_permlane16_swap_b32"):
            e.valu("v_mov_b32", p0, sm)
            e.valu("v_mov_b32", p1, sm)
            e.valu("v_mov_b32", xs[0][0], var[0])
            e.valu("v_mov_b32", xs[0][1], var[0])
            e.valu(sw, p0, p1)
            e.valu(sw, xs[0][0], xs[0][1])
            e.valu("v_add_f32", sm, p0, p1)
            e.valu("v_add_f32", var[0], xs[0][0], xs[0][1])
        e.valu("v_mul_f32", mean[0], sInv, sm)
        e.valu("v_mul_f32", var[0], sInv, var[0])
        e.valu("v_fma_f32", var[0], Neg(mean[0]), mean[0], var[0])
        e.valu("v_max_f32", var[0], 0, var[0])
    else:
        for k in range(24):
            e.valu("v_dot2_f32_bf16", sm, qp[k], one2, sm if k else 0)
        xg_reduce(e, "v_add_f32", sm, p0, p1)
        e.valu("v_mul_f32", mean[0], sInv, sm)
        e.valu("v_mul_f32", mean[1], sInv, sm)
        for k in range(24):
            x = xs[k & 1]
            e.valu("v_lshlrev_b32", x[0], 16, qp[k])
            e.valu("v_and_b32", x[1], 0xFFFF0000, qp[k])
            e.valu("v_pk_add_f32", x, x, mean, mods="neg_lo:[0,1] neg_hi:[0,1]")
            if k == 0:
                e.valu("v_pk_mul_f32", var, x, x)
            else:
                e.valu("v_pk_fma_f32", var, x, x, var)
        e.valu("v_add_f32", var[0], var[0], var[1])
        xg_reduce(e, "v_add_f32", var[0], p0, p1)
        e.valu("v_mul_f32", var[0], sInv, var[0])
    bf16_round(e, mean[0])
    e.valu("v_mov_b32", mean[1], mean[0])
    bf16_round(e, var[0])
    e.valu("v_add_f32", var[0], 1.0e-5, var[0])
    bf16_round(e, var[0])
    e.valu("v_sqrt_f32", var[0], var[0])
    bf16_round(e, var[0])
    e.valu("v_rcp_f32", var[0], var[0])
    e.valu("v_mov_b32", var[1], var[0])
    for k in range(24):
        x = xs[k & 1]
        e.valu("v_lshlrev_b32", x[0], 16, qp[k])
        e.valu("v_and_b32", x[1], 0xFFFF0000, qp[k])
        e.valu("v_pk_add_f32", x, x, mean, mods="neg_lo:[0,1] neg_hi:[0,1]")
        e.valu("v_cvt_pk_bf16_f32", qp[k], x[0], x[1])
        e.valu("v_lshlrev_b32", x[0], 16, qp[k])
        e.valu("v_and_b32", x[1], 0xFFFF0000, qp[k])
        e.valu("v_pk_mul_f32", x, x, var)
        e.valu("v_cvt_pk_bf16_f32", qp[k], x[0], x[1])
    st.mark(10)
    lds_spin(e, pz, S_WL, p0, sT, 2)
    e.waitcnt(vm=0)
    if opt.get("pdbg"):
        st.mark(1)
    Fr = [[V(100 + 12 * kk + 4 * c, 4) for c in range(3)] for kk in range(6)]
    Dq = [V(88 + 4 * c, 4) for c in range(3)]
    for kk in range(6):
        for c in range(3):
            for hf in range(2):
                t = 2 * kk + hf
                base = vTp[c] if t < 8 else vTq[c]
                e.ds_read("ds_read_b64_tr_b16", Fr[kk][c][2 * hf:2 * hf + 2], base, (wslot(t) - wslot(0 if t < 8 else 8)) * TILE)
        if kk >= 2:
            e.waitcnt(lgkm=12)
            for c in range(3):
                e.mfma(MF32, Dq[c], Fr[kk - 2][c], V(52 + 4 * (kk - 2), 4), Dq[c] if kk - 2 else 0)
    for kk in (4, 5):
        e.waitcnt(lgkm=6 * (5 - kk))
        for c in range(3):
            e.mfma(MF32, Dq[c], Fr[kk][c], V(52 + 4 * kk, 4), Dq[c])
    for c in range(3):
        pk = V(76 + 2 * c, 2)
        e.valu("v_cvt_pk_bf16_f32", pk[0], Dq[c][0], Dq[c][1])
        e.valu("v_cvt_pk_bf16_f32", pk[1], Dq[c][2], Dq[c][3])
        e.ds_write("ds_write_b64", vXw[c], pk, 0)
    lds_inc(e, pz, p0, S_AUX)
    e.salu("s_cmp_ge_u32", sWave, 2)
    e.salu("s_cbranch_scc1", "L_qkp_done")
    if opt.get("pdbg"):
        st.mark(12)
    lds_spin(e, pz, S_WL, p0, sT, 3)
    if opt.get("pdbg"):
        st.mark(13)
    e.salu("s_mul_i32", sT, sWave, 2 * TILE)
    e.salu("s_add_u32", sT, sT, RING0 + wslot(12) * TILE - STAGE)
    for q in range(4):
        e.valu("v_add_u32", vB[q], sT, vB[q])
    for c in range(2):
        for kk in range(6):
            for hf in range(2):
                e.ds_read("ds_read_b64", V(100 + 24 * c + 4 * kk + 2 * hf, 2), vB[2 * (kk & 1) + hf], c * TILE + (kk >> 1) * 128)
    lds_spin(e, pz, S_AUX, p0, sT, 4)
    for kk in range(6):
        e.ds_read("ds_read_b128", V(52 + 4 * kk, 4), vL16, 1024 * kk)
    e.salu("s_lshl_b32", sT2, S(2), 1)
    e.salu("s_add_u32", sT2, sT2, sWave)
    e.salu("s_lshl_b32", sT2, sT2, 10)
    e.salu("s_add_u32", sT2, sT2, WS_QK)
    e.valu("v_lshlrev_b32", V(33), 4, lane)
    for kk in range(6):
        e.waitcnt(lgkm=5 - kk)
        for c in range(2):
            e.mfma(MF32, Dq[c], V(100 + 24 * c + 4 * kk, 4), V(52 + 4 * kk, 4), Dq[c] if kk else 0)
    lds_spin(e, pz, S_EMPT, p0, sT, 1)
    e.salu("s_mov_b32", sT, QSCALE)
    pk = V(76, 4)
    for c in range(2):
        for r in range(4):
            e.valu("v_mul_f32", Dq[c][r], sT, Dq[c][r])
        e.valu("v_cvt_pk_bf16_f32", pk[2 * c], Dq[c][0], Dq[c][1])
        e.valu("v_cvt_pk_bf16_f32", pk[2 * c + 1], Dq[c][2], Dq[c][3])
    for k in range(4):
        e.valu("v_min_u32", pk[k], -2, pk[k])
    e.buf_store("buffer_store_dwordx4", pk, V(33), sWS, sT2, flags="sc1")
    st.mark(11)
    e.label("L_qkp_done")
    lds_inc(e, pz, p0, S_ISS)
    e.waitcnt(lgkm=0)
    e.fence()
    e.salu("s_branch", "L_c_start")

    e.w.clear(); e.cread.clear(); e.stread.clear()
    e.raw("L_wvprod:")
    Bw = [V(28 + 4 * kd, 4) for kd in range(6)]
    Dv = [V(52 + 4 * t, 4) for t in range(12)]
    Av = [[V(100 + 24 * b_ + 4 * kd, 4) for kd in range(6)] for b_ in range(2)]
    w0, w1, wz, vTw = V(148), V(149), V(150), V(151)
    vAb = [[V(152), V(153)], [V(154), V(155)]]
    e.salu("s_getpc_b64", sCode[0:2])
    e.salu("s_mov_b32", sCode[2], 4096)
    e.salu("s_mov_b32", sCode[3], 0x20000)
    e.valu("v_lshlrev_b32", w0, 6, lane)
    e.buf_load("buffer_load_dword", V(156), w0, sCode, 0)
    e.valu("v_mov_b32", wz, 0)
    for b_ in range(2):
        for k in range(2):
            e.valu("v_add_u32", vAb[b_][k], RING0 + wslot(8 * b_) * TILE, vQa[k])
    e.valu("v_lshrrev_b32", w0, 4, lane)
    e.valu("v_bfe_u32", w1, lane, 2, 2)
    e.valu("v_lshl_add_u32", w0, w0, 3, w1)
    e.valu("v_and_b32", w1, 3, lane)
    e.valu("v_lshlrev_b32", w1, 3, w1)
    e.valu("v_lshl_add_u32", vTw, w0, 7, w1)
    e.salu("s_lshl_b32", sT, sWave, 5)
    e.salu("s_add_u32", sT, sT, WOB)
    e.valu("v_add_u32", vTw, sT, vTw)
    lds_spin(e, wz, S_WL, w0, sT, 1)
    for kd in range(6):
        for hf in range(2):
            e.ds_read("ds_read_b64_tr_b16", Bw[kd][2 * hf:2 * hf + 2], vTw, (32 * kd + 4 * hf) * 128)

    def wv_reads(t):
        return [lambda kd=kd: e.ds_read("ds_read_b128", Av[t & 1][kd], vAb[t >> 3][kd & 1], (wslot(t) - wslot(t & 8)) * TILE + (kd >> 1) * 128)
                for kd in range(6)]
    lds_spin(e, wz, S_WL, w0, sT, 2)
    e.waitcnt(vm=0)
    st.mark(5)
    for f_ in wv_reads(0):
        f_()
    for t in range(12):
        if t == 7:
            lds_spin(e, wz, S_WL, w0, sT, 3)
        nx = wv_reads(t + 1) if t < 11 else []
        for kd in range(6):
            e.waitcnt(lgkm=5)
            e.mfma(MF32, Dv[t], Av[t & 1][kd], Bw[kd], Dv[t] if kd else 0)
            if nx:
                nx.pop(0)()
            elif kd < 5:
                e.waitcnt(lgkm=4 - kd)
    lds_inc(e, wz, w0, S_ISS)
    m2 = V(158, 2)
    n2 = V(160, 2)
    for t in range(1, 12):
        e.valu("v_pk_add_f32", m2, Dv[0][0:2] if t == 1 else m2, Dv[t][0:2])
        e.valu("v_pk_add_f32", n2, Dv[0][2:4] if t == 1 else n2, Dv[t][2:4])
    e.valu("v_pk_add_f32", m2, m2, n2)
    e.valu("v_add_f32", m2[0], m2[0], m2[1])
    xg_reduce(e, "v_add_f32", m2[0], w0, w1)
    e.valu("v_mul_f32", m2[0], sInv, m2[0])
    e.salu("s_sub_u32", sT, S(2), NQP)
    e.salu("s_lshl_b32", sT, sT, 2)
    e.salu("s_add_u32", sT, sT, sWave)
    e.salu("s_mul_i32", sT, sT, 6144)
    e.salu("s_add_u32", sT, sT, WS_WVO)
    e.valu("v_lshlrev_b32", w0, 4, lane)
    for kk in range(6):
        pk = V(164 + 4 * kk, 4)
        for c in range(2):
            for h in range(2):
                x = Dv[2 * kk + c][2 * h:2 * h + 2]
                e.valu("v_pk_add_f32", x, x, m2, mods="op_sel_hi:[1,0] neg_lo:[0,1] neg_hi:[0,1]")
                e.valu("v_cvt_pk_bf16_f32", pk[2 * c + h], x[0], x[1])
        e.salu("s_add_u32", sT2, sT, 1024 * kk)
        e.buf_store("buffer_store_dwordx4", pk, w0, sWS, sT2, flags="sc1")
    st.mark(10)
    e.waitcnt(lgkm=0)
    e.nop(2)
    e.fence()
    e.salu("s_branch", "L_c_start")

    e.w.clear(); e.cread.clear(); e.stread.clear()
    e.raw("L_aux:")
    sA = S(36)
    sT, sT2, sT3 = S(37), S(38), S(39)
    sW0, sW1, sW2, sWS, sDbg = S(24, 4), S(28, 4), S(40, 4), S(32, 4), S(44, 4)
    sStg = S(48)
    j, g = V(1), V(2)
    vSl = V(3)
    vSt = V(4)
    vTr = [V(5 + k) for k in range(4)]
    vZ = V(11)
    vLn16 = V(12)
    vX = V(13)
    t0, t1 = V(14), V(15)
    e.salu("s_sub_u32", sA, sWave, 5)
    e.valu("v_mov_b32", vZ, 0)
    e.valu("v_and_b32", j, 15, lane)
    e.valu("v_lshrrev_b32", g, 4, lane)
    e.valu("v_lshlrev_b32", vLn16, 4, lane)
    for k in range(4):
        e.valu("v_mov_b32", V(16 + k), -1)
    e.waitcnt(lgkm=0)
    srd(e, sWS, pWS, 0x1000000)
    e.salu("s_cmp_ge_u32", S(2), NQP)
    e.salu("s_cbranch_scc1", "L_aux_noinv0")
    e.salu("s_cmp_lg_u32", sA, 1)
    e.salu("s_cbranch_scc1", "L_aux_noinv0")
    e.begin_cond()
    e.salu("s_lshl_b32", sT2, S(2), 11)
    e.salu("s_add_u32", sT2, sT2, WS_QK)
    for k in range(2):
        e.buf_store("buffer_store_dwordx4", V(16, 4), vLn16, sWS, sT2, offset=1024 * k, flags="sc1")
    e.smem("s_memrealtime s[52:53]", S(52, 2))
    e.waitcnt(lgkm=0)
    e.salu("s_mul_i32", S(54), S(52), 0x9E3779B1)
    e.salu("s_mov_b32", S(55), S(53))
    for r in range(3):
        e.salu("s_lshr_b64", S(56, 2), S(54, 2), 15 * r)
        e.salu("s_lshl_b32", sT3, S(56), 1)
        e.salu("s_and_b32", sT3, sT3, 0xFFFE)
        e.valu("v_mov_b32", V(20 + r), sT3)
    e.salu("s_mul_i32", sT3, S(54), 0x85EBCA6B)
    e.salu("s_lshr_b32", sT3, sT3, 16)
    e.salu("s_and_b32", sT3, sT3, 0xFFFE)
    e.valu("v_mov_b32", V(23), sT3)
    e.salu("s_lshl_b32", sT2, S(2), 7)
    e.salu("s_add_u32", sT2, sT2, WS_QK + 6144)
    e.salu("s_mov_b64", EXEC, 1)
    e.buf_store("buffer_store_dwordx4", V(20, 4), vZ, sWS, sT2, flags="sc1")
    e.salu("s_mov_b64", EXEC, -1)
    e.end_cond()
    e.raw("L_aux_noinv0:")
    e.barrier()
    srd(e, sDbg, pDbg, 256)
    e.salu("s_cmp_ge_u32", S(2), NQP)
    e.salu("s_cbranch_scc1", "L_aux_noinv")
    e.salu("s_cmp_lg_u32", sA, 1)
    e.salu("s_cbranch_scc1", "L_aux_noinv")
    e.begin_cond()
    e.valu("v_mov_b32", t0, 1)
    e.salu("s_lshl_b32", sT2, S(2), 5)
    e.waitcnt(vm=0)
    e.ds_write("ds_write_b32", vZ, t0, S_EMPT)
    e.salu("s_mov_b64", EXEC, 1)
    e.buf_store("buffer_store_dword", t0, vZ, sDbg, sT2, flags="sc1")
    e.salu("s_mov_b64", EXEC, -1)
    st.mark(8)
    e.end_cond()
    e.label("L_aux_noinv")

    e.salu("s_cmp_lt_u32", S(2), NQP)
    e.salu("s_cselect_b32", sT3, S_ISS - S_LANDED, 0)
    e.valu("v_mov_b32", t1, sT3)

    e.salu("s_cmp_lg_u32", sA, 0)
    e.salu("s_cbranch_scc1", "L_aux_w")
    vQw = [V(232 + k) for k in range(4)]
    QR = 208
    e.valu("v_mul_u32_u24", t0, 384, j)
    e.valu("v_and_b32", V(16), 1, g)
    e.valu("v_lshl_add_u32", t0, V(16), 3, t0)
    e.valu("v_lshrrev_b32", V(16), 1, g)
    e.valu("v_and_b32", vX, 6, j)
    e.valu("v_xor_b32", V(16), V(16), vX)
    for q in range(4):
        e.valu("v_xor_b32", vX, 2 * q, V(16))
        e.valu("v_lshl_add_u32", vQw[q], vX, 4, t0)
    e.valu("v_lshlrev_b32", vX, 5, lane)
    e.salu("s_cmp_lt_u32", S(2), NPR)
    e.salu("s_cselect_b32", sT2, 1, opt.get("fstart", 3))
    lds_spin(e, t1, S_LANDED, t0, sT, sT2, sleep=4)
    e.salu("s_mov_b64", EXEC, (1 << NQP) - 1)
    e.label("L_qpoll")
    e.buf_load("buffer_load_dword", t0, vX, sDbg, 0, flags="sc1")
    e.waitcnt(vm=0)
    e.valu("v_cmp_eq_u32", VCC, 0, t0)
    e.salu("s_cbranch_vccz", "L_qpolled")
    e.salu("s_sleep", 8)
    e.salu("s_branch", "L_qpoll")
    e.raw("L_qpolled:")
    e.salu("s_mov_b64", EXEC, -1)
    st.mark(7)
    e.salu("s_cmp_lt_u32", S(2), NPR)
    e.salu("s_cselect_b32", sT2, opt.get("wqstart", 3), opt.get("qstart", 6))
    e.salu("s_cmp_lt_u32", S(2), NQP)
    e.salu("s_cselect_b32", sT2, 4, sT2)
    lds_spin(e, t1, S_LANDED, t0, sT, sT2, sleep=2)
    st.mark(5)
    e.salu("s_mov_b32", sT2, WS_QK + 6144)
    e.buf_load("buffer_load_dwordx4", V(236, 4), vZ, sWS, sT2, flags="sc1")
    e.label("L_qdata")
    for k in range(6):
        e.salu("s_mov_b32", sT2, WS_QK + 1024 * k)
        e.buf_load("buffer_load_dwordx4", V(QR + 4 * k, 4), vLn16, sWS, sT2, flags="sc1")
    e.waitcnt(vm=0)
    e.valu("v_max3_u32", t0, V(QR), V(QR + 1), V(QR + 2))
    for k in range(3, 23, 2):
        e.valu("v_max3_u32", t0, t0, V(QR + k), V(QR + k + 1))
    e.valu("v_max_u32", t0, t0, V(QR + 23))
    e.valu("v_cmp_eq_u32", VCC, -1, t0)
    e.salu("s_cbranch_vccnz", "L_qdata")
    st.mark(6)
    e.ds_write("ds_write_b128", vZ, V(236, 4), TAGS)
    for ct in range(12):
        e.ds_write("ds_write_b64", vQw[ct & 3], V(QR + 2 * ct, 2), QK + (ct >> 2) * 128)
    e.valu("v_mov_b32", t0, 1)
    e.ds_write("ds_write_b32", vZ, t0, S_QKRDY)
    st.mark(1)

    e.label("L_aux_w")
    e.salu("s_cmp_lg_u32", sA, 2)
    e.salu("s_cbranch_scc1", "L_aux_wf2")
    e.valu("v_lshlrev_b32", vX, 2, lane)
    lds_spin(e, vZ, S_LANDED, t0, sT, opt.get("wstart", 10), sleep=8)
    lds_spin(e, vZ, S_QKRDY, t0, sT, 1, sleep=8)
    e.salu("s_mov_b64", EXEC, 0xFFF)
    e.label("L_wpoll")
    e.buf_load("buffer_load_dword", t0, vX, sDbg, 0, offset=DBG_WVO, flags="sc1")
    e.waitcnt(vm=0)
    e.valu("v_cmp_eq_u32", VCC, 0, t0)
    e.salu("s_cbranch_vccz", "L_wpolled")
    e.salu("s_sleep", opt.get("wsleep", 16))
    e.salu("s_branch", "L_wpoll")
    e.raw("L_wpolled:")
    e.salu("s_mov_b64", EXEC, -1)
    e.valu("v_mov_b32", t0, 1)
    e.ds_write("ds_write_b32", vZ, t0, S_WVL)
    e.label("L_aux_wf2")
    lds_spin(e, vZ, S_WVL, t0, sT, 1, sleep=8)
    st.mark(9)
    lk.at(8, t0, t1)
    e.salu("s_mul_i32", sT, sA, 3 * 6144)
    e.salu("s_add_u32", sT, sT, WS_WVO)
    WB = opt.get("wfb", 3)
    n = 0
    for t3 in range(3):
        for kk in range(6):
            if opt.get("noaf"):
                continue
            e.salu("s_add_u32", sT2, sT, (t3 * 6 + kk) * 1024)
            e.buf_load("buffer_load_dwordx4", WVO[kk][t3], vLn16, sWS, sT2, flags=WFL)
            n += 1
            if n % WB == 0:
                e.waitcnt(vm=0)
    st.mark(2)
    lk.at(4, t0, t1)

    e.label("L_tail")
    D = [V(16 + 4 * t3, 4) for t3 in range(3)]
    Dw2 = [V(32 + 4 * t3, 4) for t3 in range(3)]
    Bf = [[V(48 + 32 * b_ + 4 * kk, 4) for kk in range(6)] for b_ in range(2)]
    l4 = [V(72, 4), V(104, 4)]
    fl_ = [V(76), V(108)]
    G2 = [V(192, 4), V(196, 4)]
    vTg = V(200)
    vF0, vF2, vS0, vS2, vS = V(2), V(3), V(4), V(5), V(6)
    lt, lr = V(7), V(8)
    e.valu("v_lshlrev_b32", vS, 4, j)
    e.valu("v_add_u32", vF0, RING0, vLn16)
    e.valu("v_add_u32", vF2, RING0 + 2 * WAVE_RING, vLn16)
    e.valu("v_add_u32", vS0, RING0 + WST, vS)
    e.valu("v_add_u32", vS2, RING0 + WST + 2 * WAVE_RING, vS)
    sP = S(49)
    e.salu("s_lshl_b32", sP, S(2), 13)
    e.salu("s_lshl_b32", sT2, sA, 11)
    e.salu("s_add_u32", sP, sP, sT2)
    e.salu("s_add_u32", sP, sP, WS_P)
    sHi = S(51)
    e.salu("s_mov_b32", sHi, 40.0)
    e.valu("v_and_b32", lr, 3, j)
    e.valu("v_lshlrev_b32", lr, 2, lr)
    e.ds_read("ds_read_b32", vTg, lr, TAGS)
    STEP = opt.get("pstep", 2)
    DONE = 16 + 6
    lds_spin(e, vZ, S_FR, t1, sT, DONE, sleep=opt.get("fsleep", 1))
    if opt.get("fine"):
        st.cyc(5)

    def batch(w):
        fb, sb = (vF0, vS0) if w < 2 else (vF2, vS2)
        o = (w & 1) * WAVE_RING
        ops = [lambda: e.ds_read("ds_read_b32", fl_[w & 1], vZ, S_FR + 4 * w)]
        for kk in range(6):
            ops.append(lambda kk=kk: e.ds_read("ds_read_b128", Bf[w & 1][kk], fb, FRAG + o + 1024 * kk))
        ops.append(lambda: e.ds_read("ds_read_b128", l4[w & 1], sb, o))
        return ops

    def peek(w):
        e.waitcnt(lgkm=0)
        e.valu("v_readfirstlane_b32", sT, fl_[w & 1])

    def arrived(w, peeked=False):
        top, ok = newlabel("bt"), newlabel("bo")
        if peeked:
            e.salu("s_cbranch_scc1", ok)
            e.salu("s_branch", top + "x")
        e.label(top, fence=False)
        peek(w)
        e.nop(1)
        e.salu("s_cmp_eq_u32", sT, DONE)
        e.salu("s_cbranch_scc1", ok)
        e.raw(f"{top}x:")
        e.salu("s_cmp_ge_u32", sT, 32)
        e.salu("s_cbranch_scc1", "L_agen")
        e.begin_cond()
        for f_ in batch(w):
            f_()
        e.end_cond()
        e.salu("s_branch", top)
        e.raw(f"{ok}:")

    def meta():
        return [lambda: e.valu("v_cvt_pk_bf16_f32", lr, 0, lt),
                lambda: e.valu("v_or_b32", G2[0][3], lr, vTg),
                lambda: e.valu("v_or_b32", G2[1][3], lr, vTg)]

    def cv(g_, k, t3, r):
        return lambda: e.valu("v_cvt_pk_bf16_f32", G2[g_][k], D[t3][r], D[t3][r + 1])

    def stg(g_):
        return lambda: e.buf_store("buffer_store_dwordx4", G2[g_], vLn16, sWS, sP, offset=1024 * g_, flags=SFL)
    fin0 = [cv(0, 0, 0, 0), cv(0, 1, 0, 2), cv(0, 2, 1, 0), stg(0), cv(1, 0, 1, 2)]
    fin1 = [cv(1, 1, 2, 0), cv(1, 2, 2, 2), stg(1)]

    for f_ in batch(0)[1:]:
        f_()
    e.salu("s_cmp_ge_u32", sT, 32)
    e.salu("s_cbranch_scc1", "L_agen")
    e.waitcnt(vm=0)
    for w in range(4):
        B, lw = Bf[w & 1], l4[w & 1]
        fill = [lambda lw=lw: e.valu("v_add_f32", lw[0], lw[0], lw[1]),
                lambda lw=lw: e.valu("v_add_f32", lw[2], lw[2], lw[3])]
        if w == 0:
            fill.append(lambda lw=lw: e.valu("v_add_f32", lt, lw[0], lw[2]))
        else:
            fill.append(lambda lw=lw: e.valu("v_add_f32", lw[0], lw[0], lw[2]))
            fill.append(lambda lw=lw: e.valu("v_add_f32", lt, lt, lw[0]))
        if w < 3:
            fill = batch(w + 1) + fill
            while len(fill) < 14:
                fill.append(lambda: None)
            fill += [lambda w=w: peek(w + 1), lambda: None, lambda: e.salu("s_cmp_eq_u32", sT, DONE)]
            n = 0
            for kk in range(6):
                if w == 0 and kk < 3:
                    e.waitcnt(lgkm=6 - kk + n if kk < 2 else n)
                for t3 in range(3):
                    e.mfma(MF32, D[t3], WVO[kk][t3], B[kk], D[t3] if kk or w else 0)
                    n += 1
                    if fill:
                        fill.pop(0)()
            assert not fill
            if w == 2 and opt.get("prog", 1):
                e.salu("s_cbranch_scc0", "L_prog")
            else:
                arrived(w + 1, peeked=True)
            if opt.get("fine"):
                st.cyc((6, 7, 10)[w])
            elif w == 2:
                st.mark(10)
        else:
            fill += meta()
            for kk in range(6):
                for t3 in range(2):
                    e.mfma(MF32, D[t3], WVO[kk][t3], B[kk], D[t3])
                    if fill:
                        fill.pop(0)()
            while fill:
                fill.pop(0)()
            fill = list(fin0)
            for kk in range(6):
                e.mfma(MF32, D[2], WVO[kk][2], B[kk], D[2])
                if kk == 2:
                    e.nop(3)
                if kk >= 2:
                    for _ in range(2):
                        if fill:
                            fill.pop(0)()
            if opt.get("fine"):
                st.cyc(1)
            for f_ in fill + fin1:
                f_()
    e.label("L_aend", fence=False)
    lds_inc(e, vZ, t1, S_EMP)
    if not opt.get("pdbg"):
        st.mark(4)
    lk.at(5, V(14), V(15))
    if opt.get("fine"):
        st.cyc(11)
    st.dump(sWS, 12, [V(14), V(15)])
    e.salu("s_endpgm")

    if opt.get("prog", 1):
        e.w.clear(); e.cread.clear(); e.stread.clear()
        e.raw("L_prog:")
        B, lw = Bf[1], l4[1]
        full = batch(3)

        def part(st_):
            return [full[0]] + full[1 + STEP * st_:1 + STEP * (st_ + 1)] + ([full[7]] if st_ == 0 else [])
        NS = 6 // STEP
        for st_ in range(NS):
            e.salu("s_cmp_ge_u32", sT, 16 + STEP * (st_ + 1))
            e.salu("s_cbranch_scc1", f"L_pg{st_}k")
            e.raw(f"L_pg{st_}:")
            for f_ in part(st_):
                f_()
            peek(3)
            e.nop(1)
            e.salu("s_cmp_ge_u32", sT, 16 + STEP * (st_ + 1))
            e.salu("s_cbranch_scc0", f"L_pg{st_}")
            e.raw(f"L_pg{st_}k:")
            if st_ == 0:
                e.salu("s_cmp_ge_u32", sT, 32)
                e.salu("s_cbranch_scc1", "L_agen")
                if opt.get("fine"):
                    st.cyc(10)
                else:
                    st.mark(10)
            fill = part(st_ + 1) if st_ + 1 < NS else []
            if st_ == 0:
                ls = [lambda: e.valu("v_add_f32", lw[0], lw[0], lw[1]), lambda: e.valu("v_add_f32", lw[2], lw[2], lw[3]),
                      lambda: e.valu("v_add_f32", lw[0], lw[0], lw[2]), lambda: e.valu("v_add_f32", lt, lt, lw[0])] + meta()
            for kk in range(STEP * st_, STEP * (st_ + 1)):
                for t3 in range(3):
                    e.mfma(MF32, D[t3], WVO[kk][t3], B[kk], D[t3])
                    if fill:
                        fill.pop(0)()
                    if ls:
                        ls.pop(0)()
            assert not fill
            if st_ + 1 < NS:
                peek(3)
                e.nop(1)
        assert not ls
        if opt.get("fine"):
            st.cyc(1)
        for f_ in fin0 + fin1:
            f_()
        e.salu("s_branch", "L_aend")

    e.raw("L_agen:")
    e.waitcnt(vm=0)
    sAlt, sW_, sOff = S(56, 2), S(58), S(59)
    Mx, ref, be, c0, c1, mw = V(9), V(10), V(13), V(14), V(204), V(205)
    vFa, vSa = V(2), V(3)
    B = Bf[0]
    lw = l4[0]
    for w in range(4):
        lb_ = newlabel("agw")
        e.label(lb_)
        e.ds_read("ds_read_b32", t1, vZ, S_FR + 4 * w)
        e.waitcnt(lgkm=0)
        e.valu("v_readfirstlane_b32", sT, t1)
        e.nop(1)
        e.salu("s_and_b32", sT, sT, 15)
        e.salu("s_cmp_eq_u32", sT, 6)
        e.salu("s_cbranch_scc0", lb_)
        e.valu("v_add_u32", vSa, RING0 + WST + w * WAVE_RING, vS)
        e.ds_read("ds_read_b32", mw, vSa, 512)
        e.waitcnt(lgkm=0)
        if w == 0:
            e.valu("v_mov_b32", Mx, mw)
        else:
            e.valu("v_max_f32", Mx, Mx, mw)
    e.valu("v_cmp_nlt_f32_e64", sAlt, "|%s|" % Mx, sHi)
    e.valu("v_cndmask_b32", ref, 0, Mx, sAlt)
    e.valu("v_mov_b32", lt, 0)
    for t3 in range(3):
        for r in range(4):
            e.valu("v_mov_b32", D[t3][r], 0)
    e.salu("s_mov_b32", sW_, 0)
    e.label("L_agen_w")
    e.salu("s_mul_i32", sOff, sW_, WAVE_RING)
    e.salu("s_add_u32", sOff, sOff, RING0)
    e.valu("v_add_u32", vFa, sOff, vLn16)
    e.valu("v_add_u32", vSa, sOff, vS)
    for kk in range(6):
        e.ds_read("ds_read_b128", B[kk], vFa, FRAG + 1024 * kk)
    e.ds_read("ds_read_b32", mw, vSa, WST + 512)
    e.ds_read("ds_read_b128", lw, vSa, WST)
    e.waitcnt(lgkm=0)
    for kk in range(6):
        for t3 in range(3):
            e.mfma(MF32, Dw2[t3], WVO[kk][t3], B[kk], Dw2[t3] if kk else 0)
    e.valu("v_sub_f32", c0, mw, ref)
    e.valu("v_exp_f32", be, c0)
    e.valu("v_add_f32", lw[0], lw[0], lw[1])
    e.valu("v_add_f32", lw[2], lw[2], lw[3])
    e.valu("v_add_f32", lw[0], lw[0], lw[2])
    e.valu("v_fmac_f32", lt, be, lw[0], rmw=True)
    for t3 in range(3):
        for r in range(4):
            e.valu("v_fmac_f32", D[t3][r], be, Dw2[t3][r], rmw=True)
    e.salu("s_add_u32", sW_, sW_, 1)
    e.salu("s_cmp_lt_u32", sW_, 4)
    e.fence()
    e.salu("s_cbranch_scc1", "L_agen_w")
    e.valu("v_cndmask_b32", c0, 0, 1, sAlt)
    e.valu("v_or_b32", vTg, vTg, c0)
    e.ds_read("ds_read_b64", lw[2:4], vZ, TAGS)
    e.valu("v_mov_b32", lw[0], ref)
    e.valu("v_lshrrev_b32", c0, 1, vS)
    e.salu("s_lshl_b32", sT2, S(2), 7)
    e.salu("s_add_u32", sT2, sT2, WS_E)
    e.waitcnt(lgkm=0)
    e.valu("v_lshl_or_b32", lw[1], lw[3], 16, lw[2])
    e.salu("s_mov_b64", EXEC, 0xFFFF)
    e.buf_store("buffer_store_dwordx2", lw[0:2], c0, sWS, sT2, flags="sc1")
    e.salu("s_mov_b64", EXEC, -1)
    for f_ in meta() + fin0 + fin1:
        f_()
    e.fence()
    e.salu("s_branch", "L_aend")
    e.raw("L_exit:")
    e.salu("s_endpgm")
    return e


def build(stamps=False, opt=None):
    m = gen_main(stamps, opt)
    return header(0) + m.text() + "L_code_end:\n" + kd(MAIN, 256, 96)


if __name__ == "__main__":
    import argparse
    ap = argparse.ArgumentParser()
    ap.add_argument("-o", default=os.path.join(os.path.dirname(os.path.abspath(__file__)), "..", NAME + ".s"))
    ap.add_argument("--stamps", action="store_true")
    ap.add_argument("--opt", default="")
    a = ap.parse_args()
    opt = {}
    for kv in a.opt.split(","):
        if kv:
            k, _, v = kv.partition("=")
            opt[k] = int(v) if v else 1
    open(a.o, "w").write(build(a.stamps, opt))
```
